```python
import torch

def _softmax(x, axis=-1):
    return torch.softmax(x, dim=axis)
def _gelu(x):
    return torch.nn.functional.gelu(x, approximate="tanh")
def _silu(x):
    return torch.nn.functional.silu(x)
def _sigmoid(x):
    return torch.sigmoid(x)
def _layernorm(x, axis=-1, eps=1e-5):
    m = x.mean(dim=axis, keepdim=True)
    v = x.var(dim=axis, keepdim=True, unbiased=False)
    return (x - m) / torch.sqrt(v + eps)
def _scatter_add(tgt, idx, src, axis=0):
    return tgt.clone().index_add_(axis, idx, src)
def _segment_sum(src, seg, n):
    out = torch.zeros((n,) + src.shape[1:], dtype=src.dtype)
    return out.index_add_(0, seg, src)
def _pad(x, pw):
    flat = tuple(v for pair in reversed(pw) for v in pair)
    return torch.nn.functional.pad(x, flat)

kernel_name = 'gather_scatter__molecular_angular_gemnet__graph'

def setup_inputs():

    _w = (lambda a: (lambda t: t.to(torch.bfloat16) if t.is_floating_point() else t)(torch.as_tensor(a)))
    N, deg, De, L = 50000, 16, 4, 1
    E = N * deg
    T = E * deg
    NR = 8
    dist = torch.rand(E).to(float)
    angle = (torch.rand(T) * torch.pi).to(float)
    centers = torch.linspace(0.0, 1.0, NR).to(float)
    ang_freq = torch.arange(1, L + 1).to(float)
    return {
        "m": _w((lambda *s: torch.randn(*s, dtype=torch.bfloat16) * 0.05)(E, De)),
        "idx_in": _w((lambda lo, hi, *s: torch.randint(lo, hi, s))(0, E, T).to(torch.int64)),
        "idx_out": _w((lambda lo, hi, *s: torch.randint(lo, hi, s))(0, E, T).to(torch.int64)),
        "dist": _w(dist),
        "angle": _w(angle),
        "centers": _w(centers),
        "ang_freq": _w(ang_freq),
        "w_rbf": _w((lambda *s: torch.randn(*s, dtype=torch.bfloat16) * 0.4)(NR, De)),
        "w_sbf": _w((lambda *s: torch.randn(*s, dtype=torch.bfloat16) * 0.4)(NR * L, De)),
        "w_down": _w((lambda *s: torch.randn(*s, dtype=torch.bfloat16) * 0.4)(De, De)),
        "w_up": _w((lambda *s: torch.randn(*s, dtype=torch.bfloat16) * 0.4)(De, De)),
    }

def reference(m, idx_in, idx_out, dist, angle, centers, ang_freq, w_rbf, w_sbf, w_down, w_up):
    E, De = m.shape[0], m.shape[1]
    NR = centers.shape[0]
    L = ang_freq.shape[0]
    rbf = torch.exp(-10.0 * (dist[:, None] - centers[None, :]) ** 2)
    cbf = torch.cos(ang_freq[None, :] * angle[:, None])
    rbf_t = rbf[idx_out]
    sbf = torch.reshape(rbf_t[:, :, None] * cbf[:, None, :], (-1, NR * L))
    x = (m[idx_in] @ w_down) * (sbf @ w_sbf)
    agg = _segment_sum(x, idx_out, E)
    return m + (agg @ w_up) * (rbf @ w_rbf)
```

```python
class Asm:
    def __init__(self):
        self.lines = []
        self.tail = []
        self._cur = self.lines
        self._uid = 0

    def __call__(self, s):
        for ln in s.strip("\n").split("\n"):
            ln = ln.strip()
            if not ln:
                continue
            if ln.endswith(":") or ln.startswith("."):
                self._cur.append(ln)
            else:
                self._cur.append("    " + ln)

    def label(self, name):
        self._cur.append(name + ":")

    def uid(self, prefix):
        self._uid += 1
        return f"L_{prefix}_{self._uid}"

    def begin_tail(self):
        self._cur = self.tail

    def end_tail(self):
        self._cur = self.lines

    def flush_tail(self):
        self.lines.extend(self.tail)
        self.tail = []
        self._cur = self.lines

    def text(self):
        return "\n".join(self.lines) + "\n"


def vr(base, n):
    return f"v[{base}:{base + n - 1}]"


def sr(base, n):
    return f"s[{base}:{base + n - 1}]"


def srd(a, dst, src, nbytes):
    a(f"""
    s_mov_b32 s{dst}, s{src}
    s_and_b32 s{dst + 1}, s{src + 1}, 0xffff
    s_mov_b32 s{dst + 2}, {nbytes}
    s_mov_b32 s{dst + 3}, 0x20000
    """)


def wave_scan(a, op, x):
    for ctl in ("row_shr:1 row_mask:0xf", "row_shr:2 row_mask:0xf", "row_shr:4 row_mask:0xf",
                "row_shr:8 row_mask:0xf", "row_bcast:15 row_mask:0xa", "row_bcast:31 row_mask:0xc"):
        a(f"""
        s_nop 1
        {op}_dpp v{x}, v{x}, v{x} {ctl} bank_mask:0xf
        """)


def kernel_header(a, name):
    a(f"""
    .globl {name}
    .p2align 8
    .type {name},@function
    {name}:
    """)


def kernel_desc(name, vgpr, sgpr):
    acc = (vgpr + 3) // 4 * 4
    return f""".p2align 6
.amdhsa_kernel {name}
  .amdhsa_next_free_vgpr {vgpr}
  .amdhsa_next_free_sgpr {sgpr}
  .amdhsa_accum_offset {acc}
  .amdhsa_group_segment_fixed_size 0
  .amdhsa_kernarg_size 112
  .amdhsa_user_sgpr_count 2
  .amdhsa_user_sgpr_kernarg_segment_ptr 1
  .amdhsa_system_sgpr_workgroup_id_x 1
  .amdhsa_float_denorm_mode_32 3
.end_amdhsa_kernel
"""
```

```python
import sys
from asmlib import Asm, vr, sr, srd, wave_scan, kernel_header, kernel_desc

E = 800000
T = 12800000
NB = 256
SPAN = 3125
CB = 1374390
N1 = 12800
NT1 = T // N1

R1A = 0
R1B = 51200000
OFF1 = 76800000
CNT = 77848576
DIR2 = 77849600
OFF2 = 77980672
R2 = 94757888
WS_BYTES = 268435456
PAD2 = 14336
FIX = 5
NS = 15
SEG = 63
MAGIC = 0x4C001000
TOPK = 0x13

OPT = dict(ld_in="nt", st1="", ld1="", st2="", ld2="", ld_m="", st_out="")


def k1(a):
    name = "part_in_kernel"
    kernel_header(a, name)
    HOFF, POFF, BUF = 0, 1024, 2048
    BUFB = BUF + N1 * 4
    sIN, sOUT, sANG, sWS = 12, 16, 20, 24
    sWAVE, sCB, sT, sA, sB = 3, 28, 29, 30, 31
    sTI = [32, 33, 34, 35]
    vX4, vX4b, vX2, vTI, vTA, vONE = 1, 2, 3, 4, 5, 6
    sets = []
    base = 8
    for s in range(2):
        sets.append(dict(i=base, o=base + 14, g=base + 28))
        base += 36
    vRANK = base
    vSTG = vRANK + 14
    nv = vSTG + 20
    ld = OPT["ld_in"]
    a(f"""
    s_cmp_ge_u32 s2, {NB}
    s_cbranch_scc1 L_k1_end
    s_load_dwordx4 s[4:7], s[0:1], 8
    s_load_dwordx2 s[8:9], s[0:1], 32
    s_load_dwordx2 s[10:11], s[0:1], 104
    v_lshrrev_b32 v{vONE}, 6, v0
    v_lshlrev_b32 v{vX4}, 4, v0
    v_readfirstlane_b32 s{sWAVE}, v{vONE}
    v_add_u32 v{vX4b}, 0x10000, v{vX4}
    v_lshlrev_b32 v{vX2}, 3, v0
    v_lshlrev_b32 v{vTI}, 2, v0
    v_lshlrev_b32 v{vTA}, 1, v0
    v_mov_b32 v{vONE}, 0x40000000
    v_cmp_gt_u32 vcc, 0x200, v0
    v_mov_b32 v{vSTG}, 0
    s_mov_b32 s{sCB}, {CB}
    v_cndmask_b32 v{vTI}, v{vONE}, v{vTI}, vcc
    v_cndmask_b32 v{vTA}, v{vONE}, v{vTA}, vcc
    v_mov_b32 v{vONE}, 1
    s_mov_b32 s{sTI[0]}, s2
    s_add_u32 s{sTI[1]}, s2, 256
    s_add_u32 s{sTI[2]}, s2, 512
    s_add_u32 s{sTI[3]}, s2, 768
    s_waitcnt lgkmcnt(0)
    """)
    srd(a, sIN, 4, T * 4)
    srd(a, sOUT, 6, T * 4)
    srd(a, sANG, 8, T * 2)
    srd(a, sWS, 10, WS_BYTES)

    def load_group(k, g):
        st = sets[k % 2]
        if g == 0:
            a(f"""
            s_mul_i32 s{sA}, s{sTI[k]}, {N1 * 4}
            s_mul_i32 s{sB}, s{sTI[k]}, {N1 * 2}
            """)
        if g < 3:
            a(f"""
            buffer_load_dwordx4 {vr(st['i'] + 4 * g, 4)}, v{vX4}, {sr(sIN, 4)}, s{sA} offen {ld}
            buffer_load_dwordx4 {vr(st['o'] + 4 * g, 4)}, v{vX4}, {sr(sOUT, 4)}, s{sA} offen {ld}
            buffer_load_dwordx2 {vr(st['g'] + 2 * g, 2)}, v{vX2}, {sr(sANG, 4)}, s{sB} offen {ld}
            s_add_u32 s{sA}, s{sA}, 16384
            s_add_u32 s{sB}, s{sB}, 8192
            """)
        else:
            a(f"""
            buffer_load_dword v{st['i'] + 12}, v{vTI}, {sr(sIN, 4)}, s{sA} offen {ld}
            buffer_load_dword v{st['o'] + 12}, v{vTI}, {sr(sOUT, 4)}, s{sA} offen {ld}
            buffer_load_ushort v{st['g'] + 6}, v{vTA}, {sr(sANG, 4)}, s{sB} offen {ld}
            """)

    for k in range(2):
        for g in range(4):
            load_group(k, g)
    a(f"""
    s_cmp_lg_u32 s{sWAVE}, 0
    s_cbranch_scc1 L_k1_noinit
    v_mov_b32 v{vSTG + 1}, 0
    v_mov_b32 v{vSTG + 2}, 0
    v_mov_b32 v{vSTG + 3}, 0
    ds_write_b128 v{vX4}, {vr(vSTG, 4)} offset:{HOFF}
    s_cmp_lg_u32 s2, 0
    s_cbranch_scc1 L_k1_noinit
    s_mov_b32 s{sT}, {CNT}
    buffer_store_dword v{vSTG}, v{vTI}, {sr(sWS, 4)}, s{sT} offen
    L_k1_noinit:
    s_waitcnt lgkmcnt(0)
    s_barrier
    """)

    def copy_reads():
        lab = a.uid("cr")
        for i in range(4):
            a(f"ds_read_b128 {vr(vSTG + 4 * i, 4)}, v{vX4} offset:{BUF + i * 16384}")
        a(f"""
        s_cmp_ge_u32 s{sWAVE}, 11
        s_cbranch_scc1 {lab}
        ds_read_b128 {vr(vSTG + 16, 4)}, v{vX4b} offset:{BUF}
        {lab}:
        """)

    def copy_store(i, sTile):
        st = OPT["st1"]
        if i < 3:
            a(f"""
            s_mul_i32 s{sT}, s{sTile}, {N1 * 4}
            s_add_u32 s{sT}, s{sT}, {R1A + i * 16384}
            buffer_store_dwordx4 {vr(vSTG + 4 * i, 4)}, v{vX4}, {sr(sWS, 4)}, s{sT} offen {st}
            """)
        elif i == 3:
            a(f"""
            s_mul_i32 s{sT}, s{sTile}, {N1 * 4}
            s_add_u32 s{sT}, s{sT}, {R1A + 49152}
            s_mul_i32 s36, s{sTile}, {N1 * 2}
            s_add_u32 s36, s36, {R1B - 2048}
            s_cmp_lt_u32 s{sWAVE}, 2
            s_cselect_b32 s{sT}, s{sT}, s36
            buffer_store_dwordx4 {vr(vSTG + 12, 4)}, v{vX4}, {sr(sWS, 4)}, s{sT} offen {st}
            """)
        else:
            lab = a.uid("cs")
            a(f"""
            s_cmp_ge_u32 s{sWAVE}, 11
            s_cbranch_scc1 {lab}
            s_mul_i32 s{sT}, s{sTile}, {N1 * 2}
            s_add_u32 s{sT}, s{sT}, {R1B + 14336}
            buffer_store_dwordx4 {vr(vSTG + 16, 4)}, v{vX4}, {sr(sWS, 4)}, s{sT} offen {st}
            {lab}:
            """)

    def hist(st, js):
        for j in js:
            a(f"v_mul_hi_u32_u24 v{vRANK + j}, s{sCB}, v{st['i'] + j}")
        for j in js:
            a(f"v_lshl_or_b32 v{st['o'] + j}, v{st['i'] + j}, 20, v{st['o'] + j}")
        for j in js:
            a(f"v_lshlrev_b32 v{st['i'] + j}, 2, v{vRANK + j}")
        for j in js:
            a(f"ds_add_rtn_u32 v{vRANK + j}, v{st['i'] + j}, v{vONE} offset:{HOFF}")

    def phase_h(k):
        st = sets[k % 2]
        if k > 0:
            copy_reads()
            a(f"s_waitcnt vmcnt({12 if k < 3 else 0})")
        for g in range(3):
            if k == 0:
                a(f"s_waitcnt vmcnt({24 - 3 * g - 2})")
            hist(st, range(4 * g, 4 * g + 4))
            if k > 0:
                if g == 0:
                    a("s_waitcnt lgkmcnt(4)")
                    copy_store(0, sTI[k - 1])
                    copy_store(1, sTI[k - 1])
                elif g == 1:
                    copy_store(2, sTI[k - 1])
                    copy_store(3, sTI[k - 1])
                else:
                    copy_store(4, sTI[k - 1])
        lab = a.uid("ht")
        if k == 0:
            a("s_waitcnt vmcnt(12)")
        a(f"""
        s_cmp_ge_u32 s{sWAVE}, 8
        s_cbranch_scc1 {lab}
        """)
        hist(st, [12])
        a(f"""
        {lab}:
        s_waitcnt lgkmcnt(0)
        s_barrier
        """)

    def phase_p(k):
        lab = a.uid("p")
        c, z, b, x = vSTG, vSTG + 4, vSTG + 8, vSTG + 12
        a(f"""
        s_cmp_lg_u32 s{sWAVE}, 0
        s_cbranch_scc1 {lab}
        ds_read_b128 {vr(c, 4)}, v{vX4} offset:{HOFF}
        v_mov_b32 v{z}, 0
        v_mov_b32 v{z + 1}, 0
        v_mov_b32 v{z + 2}, 0
        v_mov_b32 v{z + 3}, 0
        s_mul_i32 s{sT}, s{sTI[k]}, 1024
        s_add_u32 s{sT}, s{sT}, {OFF1}
        s_waitcnt lgkmcnt(0)
        ds_write_b128 v{vX4}, {vr(z, 4)} offset:{HOFF}
        v_add_u32 v{b + 2}, v{c}, v{c + 1}
        v_add_u32 v{b + 3}, v{b + 2}, v{c + 2}
        v_add_u32 v{x + 1}, v{b + 3}, v{c + 3}
        v_mov_b32 v{x}, v{x + 1}
        """)
        wave_scan(a, "v_add_u32", x)
        a(f"""
        v_sub_u32 v{b}, v{x}, v{x + 1}
        v_add_u32 v{b + 1}, v{b}, v{c}
        v_add_u32 v{b + 2}, v{b}, v{b + 2}
        v_add_u32 v{b + 3}, v{b}, v{b + 3}
        ds_write_b128 v{vX4}, {vr(b, 4)} offset:{POFF}
        v_lshl_or_b32 v{c}, v{c}, 16, v{b}
        v_lshl_or_b32 v{c + 1}, v{c + 1}, 16, v{b + 1}
        v_lshl_or_b32 v{c + 2}, v{c + 2}, 16, v{b + 2}
        v_lshl_or_b32 v{c + 3}, v{c + 3}, 16, v{b + 3}
        buffer_store_dwordx4 {vr(c, 4)}, v{vX4}, {sr(sWS, 4)}, s{sT} offen
        s_waitcnt lgkmcnt(0)
        {lab}:
        s_barrier
        """)

    def scatter(st, js):
        for j in js:
            a(f"v_add_lshl_u32 v{vRANK + j}, v{st['i'] + j}, v{vRANK + j}, 2")
        for j in js:
            a(f"ds_write_b32 v{vRANK + j}, v{st['o'] + j} offset:{BUF}")
        for j in js:
            a(f"v_lshrrev_b32 v{st['i'] + j}, 1, v{vRANK + j}")
        for j in js:
            op = "ds_write_b16" if j % 2 == 0 else "ds_write_b16_d16_hi"
            a(f"{op} v{st['i'] + j}, v{st['g'] + j // 2} offset:{BUFB}")

    def phase_s(k):
        st = sets[k % 2]
        for j in range(13):
            a(f"ds_read_b32 v{st['i'] + j}, v{st['i'] + j} offset:{POFF}")
        a("s_waitcnt lgkmcnt(0)")
        for g in range(3):
            scatter(st, range(4 * g, 4 * g + 4))
            if k + 2 < 4:
                load_group(k + 2, g)
        lab = a.uid("st")
        a(f"""
        s_cmp_ge_u32 s{sWAVE}, 8
        s_cbranch_scc1 {lab}
        """)
        scatter(st, [12])
        a(f"{lab}:")
        if k + 2 < 4:
            load_group(k + 2, 3)
        a("""
        s_waitcnt lgkmcnt(0)
        s_barrier
        """)

    for k in range(4):
        if k == 3:
            a(f"""
            s_cmp_lt_u32 s{sTI[3]}, {NT1}
            s_cbranch_scc1 L_k1_t3
            s_mov_b32 s{sTI[3]}, s{sTI[2]}
            s_branch L_k1_final
            L_k1_t3:
            """)
        phase_h(k)
        phase_p(k)
        phase_s(k)
    a("L_k1_final:")
    copy_reads()
    a("s_waitcnt lgkmcnt(0)")
    for i in range(5):
        copy_store(i, sTI[3])
    a("""
    L_k1_end:
    s_endpgm
    """)
    return name, nv, 40, BUFB + N1 * 2


def refill_code(a, vIDX, vLEN, vW, vT, sMASK, pend=None):
    a(f"""
    s_mov_b64 exec, -1
    v_add_u32 v{vIDX}, {SEG}, v{vIDX}
    v_subrev_u32 v{vLEN}, {SEG}, v{vLEN}
    v_max_i32 v{vLEN}, 0, v{vLEN}
    """)
    if pend is not None:
        cur, pen = pend
        a(f"""
        v_cmp_eq_u32 vcc, 0, v{vLEN}
        s_nop 1
        """)
        for c, p in zip(cur, pen):
            a(f"v_cndmask_b32 v{c}, v{c}, v{p}, vcc")
        a(f"v_cndmask_b32 v{pen[1]}, v{pen[1]}, 0, vcc")
    a(f"""
    v_min_u32 v{vT}, {SEG}, v{vLEN}
    v_cmp_lt_u32 {sr(sMASK, 2)}, 0, v{vLEN}
    v_lshl_or_b32 v{vW}, v{vIDX}, 6, v{vT}
    s_nop 3
    """)


def k2(a):
    name = "gather_part_kernel"
    kernel_header(a, name)
    HOFF, POFF, MISC, SLICE, SORT = 0, 1024, 2048, 4096, 36864
    LDS = SORT + NS * 1024 * 8
    sWAVE, sB = 3, 4
    sWS, sM = 8, 12
    sF, sSCALE, sK, sCB = 16, 17, 18, 19
    sMASK, sQUOTA, sNT, sKT, sT, sU, sL = 20, 22, 23, 24, 25, 26, 27
    sBASE, sNPREV, sEXP, sR1B, sBPREV = 28, 29, 30, 31, 64
    sW = [32, 48]
    sCM = [66, 68, 70]
    vLANE, vX4, vXA, vXB, vT2, vONE, vIDX, vLEN, vW, vZERO = 1, 2, 3, 4, 5, 6, 7, 8, 9, 10
    vT = 12
    vSTG = 16
    vR = [28, 28 + 2 * NS]
    vZ = 28 + 4 * NS
    nv = vZ + 2 * NS
    A = lambda st, s: vR[st] + 2 * s
    G = lambda st, s: vR[st] + 2 * s + 1
    Z = lambda s: vZ + 2 * s
    ld1 = OPT["ld1"]

    a(f"""
    s_cmp_ge_u32 s2, {NB}
    s_cbranch_scc1 L_k2_end
    s_load_dwordx2 s[6:7], s[0:1], 104
    s_load_dwordx2 s[32:33], s[0:1], 0
    s_load_dwordx2 s[34:35], s[0:1], 48
    v_lshrrev_b32 v{vONE}, 6, v0
    v_and_b32 v{vLANE}, 63, v0
    v_readfirstlane_b32 s{sWAVE}, v{vONE}
    s_and_b32 s{sB}, s2, 7
    s_lshl_b32 s{sB}, s{sB}, 5
    s_lshr_b32 s{sT}, s2, 3
    s_add_u32 s{sB}, s{sB}, s{sT}
    v_lshlrev_b32 v{vX4}, 4, v0
    v_lshlrev_b32 v{vT2}, 1, v0
    v_mov_b32 v{vZERO}, 0
    v_mov_b32 v{vONE}, 1
    v_add_u32 v{vXA}, {SORT}, v{vX4}
    v_add_u32 v{vXB}, {SORT + 65536}, v{vX4}
    v_lshl_add_u32 v{vIDX}, v{vLANE}, 4, s{sWAVE}
    s_mov_b32 s{sK}, {MAGIC}
    s_mov_b32 s{sCB}, {CB}
    s_mov_b32 s{sR1B}, {R1B}
    s_waitcnt lgkmcnt(0)
    s_load_dword s{sF}, s[34:35], 0
    """)
    srd(a, sWS, 6, WS_BYTES)
    srd(a, sM, 32, E * 8)
    a(f"""
    v_lshlrev_b32 v{vT}, 10, v{vIDX}
    s_lshl_b32 s{sT}, s{sB}, 2
    s_add_u32 s{sT}, s{sT}, {OFF1}
    buffer_load_dword v{vLEN}, v{vT}, {sr(sWS, 4)}, s{sT} offen
    s_mul_i32 s{sU}, s{sB}, {SPAN}
    s_and_b32 s{sU}, s{sU}, -2
    s_lshl_b32 s{sT}, s{sU}, 3
    v_mov_b32 v{vT + 1}, 0x40000000
    v_cmp_gt_u32 vcc, {(SPAN + 1) // 2 - 1024}, v0
    buffer_load_dwordx4 {vr(vSTG, 4)}, v{vX4}, {sr(sM, 4)}, s{sT} offen {OPT['ld_m']}
    s_add_u32 s{sT}, s{sT}, 16384
    v_cndmask_b32 v{vT + 1}, v{vT + 1}, v{vX4}, vcc
    buffer_load_dwordx4 {vr(vSTG + 4, 4)}, v{vT + 1}, {sr(sM, 4)}, s{sT} offen {OPT['ld_m']}
    v_lshlrev_b32 v{vT + 2}, 2, v0
    ds_write_b32 v{vT + 2}, v{vZERO}
    v_add_u32 v{vSTG + 8}, s{sU}, v{vT2}
    v_and_b32 v{vSTG + 8}, 0xfff, v{vSTG + 8}
    v_lshlrev_b32 v{vSTG + 8}, 3, v{vSTG + 8}
    v_xor_b32 v{vSTG + 9}, 0x4000, v{vSTG + 8}
    s_waitcnt lgkmcnt(0)
    s_barrier
    s_lshl_b32 s{sF}, s{sF}, 16
    v_cmp_gt_u32 vcc, {NT1}, v{vIDX}
    s_nop 0
    s_waitcnt vmcnt(2)
    v_cndmask_b32 v{vLEN}, 0, v{vLEN}, vcc
    v_mul_u32_u24 v{vIDX}, {N1}, v{vIDX}
    v_and_b32 v{vT}, 0xffff, v{vLEN}
    v_lshrrev_b32 v{vLEN}, 16, v{vLEN}
    v_add_u32 v{vIDX}, v{vIDX}, v{vT}
    v_add_u32 v{vT + 1}, {SEG - 1}, v{vLEN}
    v_mul_u32_u24 v{vT + 1}, 16645, v{vT + 1}
    v_lshrrev_b32 v{vT + 1}, 20, v{vT + 1}
    v_min_u32 v{vT + 2}, {SEG}, v{vLEN}
    v_cmp_lt_u32 {sr(sMASK, 2)}, 0, v{vLEN}
    v_lshl_or_b32 v{vW}, v{vIDX}, 6, v{vT + 2}
    """)
    wave_scan(a, "v_add_u32", vT + 1)
    a(f"""
    s_nop 0
    v_readlane_b32 s{sT}, v{vT + 1}, 63
    s_nop 3
    s_add_u32 s{sQUOTA}, s{sT}, {FIX - 1}
    s_mul_i32 s{sQUOTA}, s{sQUOTA}, 52429
    s_lshr_b32 s{sQUOTA}, s{sQUOTA}, 18
    s_min_u32 s{sQUOTA}, s{sQUOTA}, {NS}
    s_add_u32 s{sNT}, s{sT}, {NS - 1}
    s_mul_i32 s{sNT}, s{sNT}, 34953
    s_lshr_b32 s{sNT}, s{sNT}, 19
    """)

    def pops(st):
        done = a.uid("popdone")
        dummy = [a.uid("dummy") for _ in range(NS)]
        for s in range(NS):
            back = a.uid("popback")
            stub = a.uid("refill")
            if s >= 12:
                a(f"""
                s_cmp_le_u32 s{sQUOTA}, {s}
                s_cbranch_scc1 {dummy[s]}
                """)
            elif s == 0:
                pass
            a(f"""
            s_cmp_eq_u64 {sr(sMASK, 2)}, 0
            s_cbranch_scc1 {stub}
            {back}:
            s_ff1_i32_b64 s{sL}, {sr(sMASK, 2)}
            s_bitset0_b64 {sr(sMASK, 2)}, s{sL}
            v_readlane_b32 s{sW[st] + s}, v{vW}, s{sL}
            s_lshr_b32 s{sT}, s{sW[st] + s}, 6
            s_bfm_b64 exec, s{sW[st] + s}, 0
            v_add_lshl_u32 v{A(st, s)}, s{sT}, v{vLANE}, 2
            v_lshrrev_b32 v{G(st, s)}, 1, v{A(st, s)}
            buffer_load_dword v{A(st, s)}, v{A(st, s)}, {sr(sWS, 4)}, 0 offen {ld1}
            buffer_load_ushort v{G(st, s)}, v{G(st, s)}, {sr(sWS, 4)}, s{sR1B} offen {ld1}
            """)
            if s < 12:
                a(f"""
                s_cmp_le_u32 s{sQUOTA}, {s + 1}
                s_cbranch_scc1 {dummy[s + 1]}
                """) if s + 1 < 12 else None
            a.begin_tail()
            a(f"{stub}:")
            refill_code(a, vIDX, vLEN, vW, vT, sMASK)
            a(f"""
            s_cmp_eq_u64 {sr(sMASK, 2)}, 0
            s_cbranch_scc0 {back}
            s_branch {dummy[s]}
            """)
            a.end_tail()
        a(f"{done}:")
        a("s_mov_b64 exec, -1")
        a.begin_tail()
        for s in range(NS):
            a(f"""
            {dummy[s]}:
            s_mov_b64 exec, 1
            s_mov_b32 s{sW[st] + s}, 0
            buffer_load_dword v{A(st, s)}, v{vZERO}, {sr(sWS, 4)}, 0 offen
            buffer_load_ushort v{G(st, s)}, v{vZERO}, {sr(sWS, 4)}, 0 offen
            """)
        a(f"s_branch {done}")
        a.end_tail()

    wave_scan(a, "v_add_u32", vT)
    a(f"""
    s_nop 0
    v_readlane_b32 s{sBASE}, v{vT}, 63
    """)
    pops(0)
    pops(1)
    a(f"""
    s_waitcnt vmcnt({4 * NS})
    ds_write_b128 v{vSTG + 8}, {vr(vSTG, 4)} offset:{SLICE}
    ds_write_b128 v{vSTG + 9}, {vr(vSTG + 4, 4)} offset:{SLICE}
    """)
    for i in range(8):
        a(f"v_and_b32 v{vSTG + i}, 0x7fff7fff, v{vSTG + i}")
    for d, x, y in ((0, 0, 1), (2, 2, 3), (4, 4, 5), (6, 6, 7), (0, 0, 2), (4, 4, 6), (0, 0, 4)):
        a(f"v_pk_max_u16 v{vSTG + d}, v{vSTG + x}, v{vSTG + y}")
    a(f"""
    v_lshrrev_b32 v{vT}, 16, v{vSTG}
    v_and_b32 v{vSTG}, 0xffff, v{vSTG}
    v_max_u32 v{vT}, v{vT}, v{vSTG}
    """)
    wave_scan(a, "v_max_u32", vT)
    a(f"""
    v_mov_b32 v{vT + 1}, s{sNT}
    v_mov_b32 v{vT + 2}, s{sBASE}
    s_lshl_b64 exec, 1, 63
    ds_max_u32 v{vZERO}, v{vT} offset:{MISC}
    ds_max_u32 v{vZERO}, v{vT + 1} offset:{MISC + 4}
    ds_add_u32 v{vZERO}, v{vT + 2} offset:{MISC + 8}
    s_mov_b64 exec, -1
    s_waitcnt lgkmcnt(0)
    s_barrier
    ds_read_b96 {vr(vT, 3)}, v{vZERO} offset:{MISC}
    s_waitcnt lgkmcnt(0)
    v_readfirstlane_b32 s{sEXP}, v{vT}
    v_readfirstlane_b32 s{sNT}, v{vT + 1}
    v_readfirstlane_b32 s{sBASE}, v{vT + 2}
    s_nop 3
    s_lshr_b32 s{sEXP}, s{sEXP}, 7
    s_max_u32 s{sEXP}, s{sEXP}, 13
    s_sub_u32 s{sSCALE}, 267, s{sEXP}
    s_lshl_b32 s{sSCALE}, s{sSCALE}, 23
    s_max_u32 s{sNT}, s{sNT}, {FIX}
    s_mul_i32 s{sT}, s{sB}, {PAD2}
    s_add_u32 s{sBASE}, s{sBASE}, s{sT}
    s_add_u32 s{sBASE}, s{sBASE}, 15
    s_and_b32 s{sBASE}, s{sBASE}, -16
    s_mov_b32 s{sKT}, 0
    s_mov_b32 s{sNPREV}, 0
    s_mov_b32 s{sBPREV}, 0
    """)

    def copy_reads(chunks, regs, masks):
        for i, r, m in zip(chunks, regs, masks):
            lab = a.uid("cr")
            addr = vXA if i < 4 else vXB
            a(f"""
            s_sub_i32 s{sT}, s{sNPREV}, {i * 2048}
            v_cmp_gt_i32 {sr(m, 2)}, s{sT}, v{vT2}
            s_mov_b64 exec, {sr(m, 2)}
            s_cbranch_execz {lab}
            ds_read_b128 {vr(r, 4)}, v{addr} offset:{(i % 4) * 16384}
            {lab}:
            s_mov_b64 exec, -1
            """)

    def copy_stores(chunks, regs, masks):
        for i, r, m in zip(chunks, regs, masks):
            lab = a.uid("cs")
            a(f"""
            s_mov_b64 exec, {sr(m, 2)}
            s_cbranch_execz {lab}
            s_add_u32 s{sT}, s{sBPREV}, {i * 16384}
            buffer_store_dwordx4 {vr(r, 4)}, v{vX4}, {sr(sWS, 4)}, s{sT} offen {OPT['st2']}
            {lab}:
            """)
        a("s_mov_b64 exec, -1")

    def checkpoint(st, s, target):
        a(f"""
        s_cmp_eq_u32 s{sW[st] + s}, 0
        s_cbranch_scc1 {target}
        """)

    def phase_h(st):
        a(f"s_waitcnt vmcnt({2 * NS})")
        batches = [range(0, 5), range(5, 10), range(10, 13), range(13, 15)]
        chunks = [[0, 1, 2], [3, 4, 5], [6, 7], []]
        for bi, (bt, ch) in enumerate(zip(batches, chunks)):
            regs = [vSTG + 4 * i for i in range(len(ch))]
            skip_a = a.uid("ha")
            skip_c = a.uid("hc")
            copy_reads(ch, regs, sCM)
            checkpoint(st, bt[0], skip_a)
            for s in bt:
                a(f"""
                s_bfm_b64 exec, s{sW[st] + s}, 0
                v_lshrrev_b32 v{Z(s)}, 17, v{A(st, s)}
                v_and_b32 v{Z(s)}, 0x7ff8, v{Z(s)}
                ds_read_b64 {vr(Z(s), 2)}, v{Z(s)} offset:{SLICE}
                """)
            a("s_mov_b64 exec, -1")
            for op in ("v_lshlrev_b32 {g}, 16, {g}", f"v_mul_f32 {{g}}, s{sF}, {{g}}",
                       "v_cvt_pk_bf16_f32 {g}, {g}, {g}", "v_and_b32 {g}, 0xffff0000, {g}",
                       "v_mul_f32 {g}, 0.15915494, {g}", "v_fract_f32 {g}, {g}", "v_cos_f32 {g}, {g}",
                       "v_cvt_pk_bf16_f32 {g}, {g}, {g}", "v_and_b32 {g}, 0xffff0000, {g}",
                       f"v_mul_f32 {{g}}, s{sSCALE}, {{g}}"):
                for s in bt:
                    a(op.format(g=f"v{G(st, s)}"))
            a(f"{skip_a}:")
            a("s_waitcnt lgkmcnt(0)")
            copy_stores(ch, regs, sCM)
            checkpoint(st, bt[0], skip_c)
            for s in bt:
                z, aa = Z(s), A(st, s)
                a(f"""
                s_bfm_b64 exec, s{sW[st] + s}, 0
                v_lshlrev_b32 v{vT}, 16, v{z}
                v_and_b32 v{vT + 1}, 0xffff0000, v{z}
                v_lshlrev_b32 v{vT + 2}, 16, v{z + 1}
                v_and_b32 v{vT + 3}, 0xffff0000, v{z + 1}
                v_pk_fma_f32 {vr(vT, 2)}, {vr(vT, 2)}, {vr(aa, 2)}, {sr(sK, 2)} op_sel:[0,1,0] op_sel_hi:[1,1,0]
                v_pk_fma_f32 {vr(vT + 2, 2)}, {vr(vT + 2, 2)}, {vr(aa, 2)}, {sr(sK, 2)} op_sel:[0,1,0] op_sel_hi:[1,1,0]
                v_and_b32 v{aa + 1}, 0xfffff, v{aa}
                v_lshl_add_u32 v{z}, v{vT + 1}, 13, v{vT}
                v_lshl_add_u32 v{z + 1}, v{vT + 3}, 13, v{vT + 2}
                v_mul_hi_u32_u24 v{aa + 1}, s{sCB}, v{aa + 1}
                v_lshrrev_b32 v{vT}, 6, v{aa}
                v_lshl_add_u32 v{z}, v{aa}, 26, v{z}
                v_lshlrev_b32 v{aa}, 2, v{aa + 1}
                v_lshl_add_u32 v{z + 1}, v{vT}, 26, v{z + 1}
                ds_add_rtn_u32 v{aa + 1}, v{aa}, v{vONE} offset:{HOFF}
                """)
            a(f"""
            {skip_c}:
            s_mov_b64 exec, -1
            """)
        a("""
        s_waitcnt lgkmcnt(0)
        s_barrier
        """)

    def phase_p():
        lab, ovf, back = a.uid("p"), a.uid("ovf"), a.uid("ovfback")
        c, z, b, x = vSTG, vSTG + 4, vSTG + 8, vT
        a(f"""
        s_cmp_lg_u32 s{sWAVE}, 0
        s_cbranch_scc1 {lab}
        ds_read_b128 {vr(c, 4)}, v{vX4} offset:{HOFF}
        v_mov_b32 v{z}, 0
        v_mov_b32 v{z + 1}, 0
        v_mov_b32 v{z + 2}, 0
        v_mov_b32 v{z + 3}, 0
        s_lshl_b32 s{sU}, s{sKT}, 8
        s_add_u32 s{sU}, s{sU}, s{sB}
        s_cmp_ge_u32 s{sKT}, {FIX}
        s_cbranch_scc1 {ovf}
        {back}:
        s_waitcnt lgkmcnt(0)
        ds_write_b128 v{vX4}, {vr(z, 4)} offset:{HOFF}
        v_add_u32 v{b + 2}, v{c}, v{c + 1}
        v_add_u32 v{b + 3}, v{b + 2}, v{c + 2}
        v_add_u32 v{x + 1}, v{b + 3}, v{c + 3}
        v_mov_b32 v{x}, v{x + 1}
        """)
        wave_scan(a, "v_add_u32", x)
        a(f"""
        v_sub_u32 v{b}, v{x}, v{x + 1}
        v_add_u32 v{b + 1}, v{b}, v{c}
        v_add_u32 v{b + 2}, v{b}, v{b + 2}
        v_add_u32 v{b + 3}, v{b}, v{b + 3}
        ds_write_b128 v{vX4}, {vr(b, 4)} offset:{POFF}
        s_lshl_b64 exec, 1, 63
        ds_write_b32 v{vZERO}, v{x} offset:{MISC + 16}
        v_mov_b32 v{x + 2}, s{sBASE}
        v_mov_b32 v{x + 3}, s{sEXP}
        s_lshl_b32 s{sT}, s{sU}, 3
        s_add_u32 s{sT}, s{sT}, {DIR2}
        buffer_store_dwordx2 {vr(x + 2, 2)}, v{vZERO}, {sr(sWS, 4)}, s{sT} offen
        s_mov_b64 exec, -1
        v_lshl_or_b32 v{c}, v{c}, 16, v{b}
        v_lshl_or_b32 v{c + 1}, v{c + 1}, 16, v{b + 1}
        v_lshl_or_b32 v{c + 2}, v{c + 2}, 16, v{b + 2}
        v_lshl_or_b32 v{c + 3}, v{c + 3}, 16, v{b + 3}
        s_lshl_b32 s{sT}, s{sU}, 10
        s_add_u32 s{sT}, s{sT}, {OFF2}
        buffer_store_dwordx4 {vr(c, 4)}, v{vX4}, {sr(sWS, 4)}, s{sT} offen
        s_waitcnt lgkmcnt(0)
        {lab}:
        s_barrier
        """)
        a.begin_tail()
        a(f"""
        {ovf}:
        s_mov_b64 exec, 1
        v_mov_b32 v{x}, 1
        s_mov_b32 s{sT}, {CNT}
        buffer_atomic_add v{x}, v{vZERO}, {sr(sWS, 4)}, s{sT} offen sc0
        s_waitcnt vmcnt(0)
        v_readfirstlane_b32 s{sU}, v{x}
        s_mov_b64 exec, -1
        s_nop 3
        s_add_u32 s{sU}, s{sU}, {FIX * NB}
        s_branch {back}
        """)
        a.end_tail()

    def phase_s(st):
        l1, l2 = a.uid("sa"), a.uid("sb")
        a(f"ds_read_b32 v{vT}, v{vZERO} offset:{MISC + 16}")
        for s in range(NS):
            if s in (0, 5, 10, 13, 14):
                checkpoint(st, s, l1)
            a(f"""
            s_bfm_b64 exec, s{sW[st] + s}, 0
            ds_read_b32 v{A(st, s)}, v{A(st, s)} offset:{POFF}
            """)
        a(f"""
        {l1}:
        s_mov_b64 exec, -1
        s_waitcnt lgkmcnt(0)
        v_readfirstlane_b32 s{sNPREV}, v{vT}
        """)
        for s in range(NS):
            if s in (0, 5, 10, 13, 14):
                checkpoint(st, s, l2)
            a(f"""
            s_bfm_b64 exec, s{sW[st] + s}, 0
            v_add_lshl_u32 v{A(st, s)}, v{A(st, s)}, v{G(st, s)}, 3
            ds_write_b64 v{A(st, s)}, {vr(Z(s), 2)} offset:{SORT}
            """)
        a(f"""
        {l2}:
        s_add_u32 s{sNPREV}, s{sNPREV}, 15
        s_and_b32 s{sNPREV}, s{sNPREV}, -16
        s_lshl_b32 s{sBPREV}, s{sBASE}, 3
        s_add_u32 s{sBPREV}, s{sBPREV}, {R2}
        s_add_u32 s{sBASE}, s{sBASE}, s{sNPREV}
        """)
        pops(st)
        a("""
        s_waitcnt lgkmcnt(0)
        s_barrier
        """)

    a("L_k2_loop:")
    for st in range(2):
        phase_h(st)
        phase_p()
        phase_s(st)
        a(f"""
        s_add_u32 s{sKT}, s{sKT}, 1
        s_cmp_ge_u32 s{sKT}, s{sNT}
        """)
        a("s_cbranch_scc1 L_k2_final" if st == 0 else "s_cbranch_scc0 L_k2_loop")
    a("L_k2_final:")
    a("s_waitcnt vmcnt(0)")
    regs = [vR[0] + 4 * i for i in range(8)]
    masks = [32 + 2 * i for i in range(8)]
    copy_reads(list(range(8)), regs, masks)
    a("s_waitcnt lgkmcnt(0)")
    copy_stores(list(range(8)), regs, masks)
    a("""
    L_k2_end:
    s_endpgm
    """)
    a.flush_tail()
    return name, nv, 80, LDS


def k3(a):
    name = "accum_out_kernel"
    kernel_header(a, name)
    ACC, MISC = 0, 65536
    LDS = MISC + 64
    D = 8
    sWAVE, sB = 3, 4
    sWS, sM, sDI, sOUT = 8, 12, 16, 20
    sMASK, sT, sU, sL, sLIVE, sR2 = 24, 26, 27, 28, 29, 30
    sNE, sQB, sBSH, sUEXP = 31, 32, 33, 34
    sC = 36
    sW, sSH = 40, 48
    sWD, sWU, sC8 = 56, 64, 72
    sWS_, sWR = 76, 76
    vLANE, vZERO, vIDX, vLEN, vEX, vIDX2, vLEN2, vEX2, vW, vQ = 1, 2, 3, 4, 5, 6, 7, 8, 9, 10
    vSUM, vMAX = 11, 12
    vT = 14
    vZ = 24
    vM = vZ + 2 * D
    vS = vM + 8
    vRR = vS + 16
    vRB = vRR + 16
    vE8 = vRB + 32
    nv = vE8 + 4
    Z = lambda i: vZ + 2 * i

    a(f"""
    s_cmp_ge_u32 s2, {NB}
    s_cbranch_scc1 L_k3_end
    s_load_dwordx2 s[6:7], s[0:1], 104
    s_load_dwordx2 s[36:37], s[0:1], 0
    s_load_dwordx2 s[38:39], s[0:1], 24
    s_load_dwordx2 s[40:41], s[0:1], 88
    s_load_dwordx2 s[42:43], s[0:1], 40
    s_load_dwordx8 s[44:51], s[0:1], 56
    v_lshrrev_b32 v{vT}, 6, v0
    v_and_b32 v{vLANE}, 63, v0
    v_readfirstlane_b32 s{sWAVE}, v{vT}
    s_and_b32 s{sB}, s2, 7
    s_lshl_b32 s{sB}, s{sB}, 5
    s_lshr_b32 s{sT}, s2, 3
    s_add_u32 s{sB}, s{sB}, s{sT}
    v_mov_b32 v{vZERO}, 0
    v_lshl_add_u32 v{vQ}, v{vLANE}, 4, s{sWAVE}
    s_mov_b32 s{sR2}, {R2}
    s_mov_b32 s{sQB}, 0
    s_waitcnt lgkmcnt(0)
    """)
    srd(a, sWS, 6, WS_BYTES)
    srd(a, sM, 36, E * 8)
    srd(a, sDI, 38, E * 2)
    srd(a, sOUT, 40, E * 8)
    a(f"""
    s_add_u32 s6, s6, {CNT}
    s_addc_u32 s7, s7, 0
    s_load_dword s{sNE}, s[6:7], 0
    s_load_dwordx8 {sr(sWD, 8)}, s[48:49], 0
    s_load_dwordx8 {sr(sWU, 8)}, s[50:51], 0
    s_load_dwordx4 {sr(sC8, 4)}, s[42:43], 0
    s_load_dwordx16 {sr(sWS_, 16)}, s[46:47], 0
    s_mov_b32 s92, s44
    s_mov_b32 s93, s45
    """)

    def desc_loads():
        a(f"""
        v_add_u32 v{vT}, s{sQB}, v{vQ}
        s_lshl_b32 s{sT}, s{sB}, 2
        s_add_u32 s{sT}, s{sT}, {OFF2}
        s_mov_b32 s{sU}, {DIR2}
        v_lshlrev_b32 v{vT + 1}, 10, v{vT}
        v_lshlrev_b32 v{vT + 2}, 3, v{vT}
        buffer_load_dword v{vLEN}, v{vT + 1}, {sr(sWS, 4)}, s{sT} offen
        buffer_load_dwordx2 {vr(vT + 4, 2)}, v{vT + 2}, {sr(sWS, 4)}, s{sU} offen
        s_add_u32 s{sT}, s{sT}, {1024 * 1024}
        s_add_u32 s{sU}, s{sU}, {1024 * 8}
        buffer_load_dword v{vLEN2}, v{vT + 1}, {sr(sWS, 4)}, s{sT} offen
        buffer_load_dwordx2 {vr(vT + 6, 2)}, v{vT + 2}, {sr(sWS, 4)}, s{sU} offen
        """)

    def desc_build():
        a(f"""
        v_add_u32 v{vT}, s{sQB}, v{vQ}
        v_add_u32 v{vT + 1}, 0x400, v{vT}
        v_cmp_gt_u32 vcc, s{sNE}, v{vT}
        v_cmp_gt_u32 {sr(sMASK, 2)}, s{sNE}, v{vT + 1}
        s_nop 1
        v_cndmask_b32 v{vLEN}, 0, v{vLEN}, vcc
        v_cndmask_b32 v{vEX}, 0, v{vT + 5}, vcc
        v_cndmask_b32 v{vLEN2}, 0, v{vLEN2}, {sr(sMASK, 2)}
        v_cndmask_b32 v{vEX2}, 0, v{vT + 7}, {sr(sMASK, 2)}
        v_and_b32 v{vT}, 0xffff, v{vLEN}
        v_and_b32 v{vT + 1}, 0xffff, v{vLEN2}
        v_lshrrev_b32 v{vLEN}, 16, v{vLEN}
        v_lshrrev_b32 v{vLEN2}, 16, v{vLEN2}
        v_add_u32 v{vIDX}, v{vT + 4}, v{vT}
        v_add_u32 v{vIDX2}, v{vT + 6}, v{vT + 1}
        v_min_u32 v{vT}, {SEG}, v{vLEN}
        v_cmp_lt_u32 {sr(sMASK, 2)}, 0, v{vLEN}
        v_lshl_or_b32 v{vW}, v{vIDX}, 6, v{vT}
        s_nop 3
        """)

    def pop(i):
        back, stub, dummy, done = a.uid("pb"), a.uid("pr"), a.uid("pd"), a.uid("pe")
        a(f"""
        s_cmp_eq_u64 {sr(sMASK, 2)}, 0
        s_cbranch_scc1 {stub}
        {back}:
        s_ff1_i32_b64 s{sL}, {sr(sMASK, 2)}
        s_bitset0_b64 {sr(sMASK, 2)}, s{sL}
        v_readlane_b32 s{sW + i}, v{vW}, s{sL}
        v_readlane_b32 s{sSH + i}, v{vEX}, s{sL}
        s_lshr_b32 s{sT}, s{sW + i}, 6
        s_bfm_b64 exec, s{sW + i}, 0
        s_mov_b32 s{sLIVE}, 1
        v_add_lshl_u32 v{Z(i)}, s{sT}, v{vLANE}, 3
        buffer_load_dwordx2 {vr(Z(i), 2)}, v{Z(i)}, {sr(sWS, 4)}, s{sR2} offen {OPT['ld2']}
        {done}:
        """)
        a.begin_tail()
        a(f"{stub}:")
        refill_code(a, vIDX, vLEN, vW, vT, sMASK, pend=((vIDX, vLEN, vEX), (vIDX2, vLEN2, vEX2)))
        a(f"""
        s_cmp_eq_u64 {sr(sMASK, 2)}, 0
        s_cbranch_scc0 {back}
        s_mov_b64 exec, 1
        s_mov_b32 s{sW + i}, 0
        buffer_load_dwordx2 {vr(Z(i), 2)}, v{vZERO}, {sr(sWS, 4)}, 0 offen
        s_branch {done}
        """)
        a.end_tail()

    def process(i):
        neg, back, skip = a.uid("neg"), a.uid("nb"), a.uid("ps")
        z = Z(i)
        t = vT
        a(f"""
        s_bfm_b64 exec, s{sW + i}, 0
        s_cbranch_execz {skip}
        s_add_i32 s{sU}, s{sSH + i}, s{sBSH}
        v_and_b32 v{t}, 0x1fff, v{z}
        v_bfe_u32 v{t + 1}, v{z}, 13, 13
        v_and_b32 v{t + 2}, 0x1fff, v{z + 1}
        v_bfe_u32 v{t + 3}, v{z + 1}, 13, 13
        v_lshrrev_b32 v{t + 4}, 23, v{z}
        v_lshrrev_b32 v{t + 5}, 26, v{z + 1}
        s_cmp_lt_i32 s{sU}, 0
        s_cbranch_scc1 {neg}
        """)
        a(f"""
        s_lshl_b32 s{sT}, 0x1000, s{sU}
        v_mov_b32 v{t + 6}, s{sU}
        s_sub_u32 s{sC}, 0, s{sT}
        s_not_b32 s{sC + 1}, s{sT}
        v_and_b32 v{t + 4}, 0x1f8, v{t + 4}
        v_lshl_add_u64 {vr(t, 2)}, {vr(t, 2)}, v{t + 6}, {sr(sC, 2)}
        v_lshl_add_u64 {vr(t + 2, 2)}, {vr(t + 2, 2)}, v{t + 6}, {sr(sC, 2)}
        {back}:
        v_lshl_or_b32 v{t + 4}, v{t + 5}, 9, v{t + 4}
        ds_add_u64 v{t + 4}, {vr(t, 2)} offset:{ACC}
        ds_add_u64 v{t + 4}, {vr(t + 2, 2)} offset:{ACC + 32768}
        {skip}:
        """)
        a.begin_tail()
        a(f"""
        {neg}:
        s_sub_u32 s{sU}, 0, s{sU}
        s_min_u32 s{sU}, s{sU}, 16
        s_lshl_b32 s{sT}, 1, s{sU}
        s_lshr_b32 s{sT}, s{sT}, 1
        s_sub_u32 s{sT}, s{sT}, 0x1000
        v_and_b32 v{t + 4}, 0x1f8, v{t + 4}
        """)
        for j in range(4):
            a(f"v_add_u32 v{t + j}, s{sT}, v{t + j}")
        for j in range(4):
            a(f"v_ashrrev_i32 v{t + j}, s{sU}, v{t + j}")
        a(f"""
        v_ashrrev_i32 v{t + 6}, 31, v{t}
        v_ashrrev_i32 v{t + 7}, 31, v{t + 2}
        v_add_u32 v{t + 1}, v{t + 1}, v{t + 6}
        v_add_u32 v{t + 3}, v{t + 3}, v{t + 7}
        s_branch {back}
        """)
        a.end_tail()

    desc_loads()
    a(f"""
    s_mul_i32 s{sT}, s{sB}, {SPAN}
    v_mov_b32 v{vT + 8}, 0x8000000
    v_add_u32 v{vE8}, s{sT}, v0
    v_add_u32 v{vE8 + 1}, 0x400, v{vE8}
    v_add_u32 v{vE8 + 2}, 0x800, v{vE8}
    v_add_u32 v{vE8 + 3}, 0xc00, v{vE8}
    v_cmp_gt_u32 vcc, {SPAN - 3072}, v0
    s_nop 1
    v_cndmask_b32 v{vE8 + 3}, v{vT + 8}, v{vE8 + 3}, vcc
    """)
    for r in range(4):
        a(f"v_lshlrev_b32 v{vRB + 8 * r + 1}, 1, v{vE8 + r}")
    for r in range(4):
        a(f"buffer_load_ushort v{vRB + 8 * r}, v{vRB + 8 * r + 1}, {sr(sDI, 4)}, 0 offen")
    for r in range(4):
        a(f"v_lshlrev_b32 v{vE8 + r}, 3, v{vE8 + r}")
    for r in range(4):
        a(f"buffer_load_dwordx2 {vr(vM + 2 * r, 2)}, v{vE8 + r}, {sr(sM, 4)}, 0 offen {OPT['ld_m']}")
    a(f"""
    v_mov_b32 v{vS}, 0
    v_mov_b32 v{vS + 1}, 0
    v_mov_b32 v{vS + 2}, 0
    v_mov_b32 v{vS + 3}, 0
    v_lshlrev_b32 v{vT + 8}, 4, v0
    v_mov_b32 v{vT + 9}, {MISC}
    """)
    for i in range(4):
        a(f"ds_write_b128 v{vT + 8}, {vr(vS, 4)} offset:{ACC + i * 16384}")
    a(f"""
    ds_write_b64 v{vT + 9}, {vr(vS, 2)}
    s_waitcnt lgkmcnt(0)
    s_barrier
    s_add_u32 s{sNE}, s{sNE}, {FIX * NB}
    s_waitcnt vmcnt(8)
    """)
    desc_build()
    a(f"""
    v_add_u32 v{vSUM}, v{vLEN}, v{vLEN2}
    v_max_u32 v{vMAX}, v{vEX}, v{vEX2}
    s_cmp_gt_u32 s{sNE}, 2048
    s_cbranch_scc1 L_k3_more
    L_k3_moreback:
    """)
    a.begin_tail()
    a(f"""
    L_k3_more:
    s_mov_b32 s{sL}, 2048
    L_k3_moreloop:
    v_add_u32 v{vT}, s{sL}, v0
    s_lshl_b32 s{sT}, s{sB}, 2
    s_add_u32 s{sT}, s{sT}, {OFF2}
    s_mov_b32 s{sU}, {DIR2 + 4}
    v_lshlrev_b32 v{vT + 1}, 10, v{vT}
    v_lshlrev_b32 v{vT + 2}, 3, v{vT}
    buffer_load_dword v{vT + 1}, v{vT + 1}, {sr(sWS, 4)}, s{sT} offen
    buffer_load_dword v{vT + 2}, v{vT + 2}, {sr(sWS, 4)}, s{sU} offen
    v_cmp_gt_u32 vcc, s{sNE}, v{vT}
    s_waitcnt vmcnt(0)
    v_lshrrev_b32 v{vT + 1}, 16, v{vT + 1}
    v_cndmask_b32 v{vT + 1}, 0, v{vT + 1}, vcc
    v_cndmask_b32 v{vT + 2}, 0, v{vT + 2}, vcc
    v_add_u32 v{vSUM}, v{vSUM}, v{vT + 1}
    v_max_u32 v{vMAX}, v{vMAX}, v{vT + 2}
    s_add_u32 s{sL}, s{sL}, 1024
    s_cmp_lt_u32 s{sL}, s{sNE}
    s_cbranch_scc1 L_k3_moreloop
    s_branch L_k3_moreback
    """)
    a.end_tail()
    for i in range(D):
        pop(i)
    a("s_mov_b64 exec, -1")
    wave_scan(a, "v_add_u32", vSUM)
    wave_scan(a, "v_max_u32", vMAX)
    a(f"""
    v_mov_b32 v{vT + 9}, {MISC}
    s_lshl_b64 exec, 1, 63
    ds_add_u32 v{vT + 9}, v{vSUM}
    ds_max_u32 v{vT + 9}, v{vMAX} offset:4
    s_mov_b64 exec, -1
    s_waitcnt vmcnt({D + 4})
    """)

    def basis(rs):
        for r in rs:
            a(f"v_lshlrev_b32 v{vT + r}, 16, v{vRB + 8 * r}")
        for kp in range(4):
            a(f"""
            s_lshl_b32 s{sT}, s{sC8 + kp}, 16
            s_and_b32 s{sU}, s{sC8 + kp}, 0xffff0000
            """)
            x = lambda r: vRB + 8 * r + 2 * kp
            def rnd():
                for r in rs:
                    a(f"v_cvt_pk_bf16_f32 v{x(r)}, v{x(r)}, v{x(r) + 1}")
                for r in rs:
                    a(f"v_and_b32 v{x(r) + 1}, 0xffff0000, v{x(r)}")
                for r in rs:
                    a(f"v_lshlrev_b32 v{x(r)}, 16, v{x(r)}")
            for r in rs:
                a(f"v_subrev_f32 v{x(r)}, s{sT}, v{vT + r}")
                a(f"v_subrev_f32 v{x(r) + 1}, s{sU}, v{vT + r}")
            rnd()
            for r in rs:
                a(f"v_mul_f32 v{x(r)}, v{x(r)}, v{x(r)}")
                a(f"v_mul_f32 v{x(r) + 1}, v{x(r) + 1}, v{x(r) + 1}")
            rnd()
            for r in rs:
                a(f"v_mul_f32 v{x(r)}, 0xc1200000, v{x(r)}")
                a(f"v_mul_f32 v{x(r) + 1}, 0xc1200000, v{x(r) + 1}")
            rnd()
            for r in rs:
                a(f"v_mul_f32 v{x(r)}, 0x3fb8aa3b, v{x(r)}")
                a(f"v_mul_f32 v{x(r) + 1}, 0x3fb8aa3b, v{x(r) + 1}")
            for r in rs:
                a(f"v_exp_f32 v{x(r)}, v{x(r)}")
                a(f"v_exp_f32 v{x(r) + 1}, v{x(r) + 1}")
            a("s_nop 0")
            rnd()

    def project(rs, dst, sw):
        for k in range(8):
            for jp in range(2):
                a(f"""
                s_lshl_b32 s{sT}, s{sw + 2 * k + jp}, 16
                s_and_b32 s{sU}, s{sw + 2 * k + jp}, 0xffff0000
                """)
                for r in rs:
                    op = "v_mul_f32" if k == 0 else "v_fmac_f32"
                    a(f"{op} v{dst + 4 * r + 2 * jp}, s{sT}, v{vRB + 8 * r + k}")
                    a(f"{op} v{dst + 4 * r + 2 * jp + 1}, s{sU}, v{vRB + 8 * r + k}")

    def round_r(rs):
        for r in rs:
            for jp in range(2):
                x = vRR + 4 * r + 2 * jp
                a(f"""
                v_cvt_pk_bf16_f32 v{x}, v{x}, v{x + 1}
                v_and_b32 v{x + 1}, 0xffff0000, v{x}
                v_lshlrev_b32 v{x}, 16, v{x}
                """)

    a(f"""
    s_cmp_eq_u32 s{sWAVE}, 0
    s_cbranch_scc1 L_k3_basis4
    """)
    basis([0, 1, 2])
    project([0, 1, 2], vS, sWS_)
    a(f"""
    s_load_dwordx16 {sr(sWR, 16)}, s[92:93], 0
    s_waitcnt lgkmcnt(0)
    """)
    project([0, 1, 2], vRR, sWR)
    round_r([0, 1, 2])
    a("L_k3_basisdone:")
    a.begin_tail()
    a("L_k3_basis4:")
    basis([0, 1, 2, 3])
    project([0, 1, 2, 3], vS, sWS_)
    a(f"""
    s_load_dwordx16 {sr(sWR, 16)}, s[92:93], 0
    s_waitcnt lgkmcnt(0)
    """)
    project([0, 1, 2, 3], vRR, sWR)
    round_r([0, 1, 2, 3])
    a("s_branch L_k3_basisdone")
    a.end_tail()
    a(f"""
    v_mov_b32 v{vT + 9}, {MISC}
    s_waitcnt lgkmcnt(0)
    s_barrier
    ds_read_b64 {vr(vT, 2)}, v{vT + 9}
    s_waitcnt lgkmcnt(0)
    v_readfirstlane_b32 s{sT}, v{vT}
    v_readfirstlane_b32 s{sU}, v{vT + 1}
    s_nop 3
    s_or_b32 s{sT}, s{sT}, 1
    s_flbit_i32_b32 s{sT}, s{sT}
    s_sub_u32 s{sT}, s{sT}, 1
    s_min_u32 s{sT}, s{sT}, 16
    s_sub_i32 s{sBSH}, s{sT}, s{sU}
    s_sub_i32 s{sBSH}, s{sBSH}, 12
    s_sub_i32 s{sUEXP}, s{sU}, s{sT}
    s_sub_i32 s{sUEXP}, s{sUEXP}, 126
    L_k3_loop:
    s_mov_b32 s{sLIVE}, 0
    """)
    for i in range(D):
        a(f"s_waitcnt vmcnt({D - 1})")
        process(i)
        pop(i)
    a(f"""
    s_cmp_lg_u32 s{sLIVE}, 0
    s_cbranch_scc1 L_k3_loop
    s_mov_b64 exec, -1
    s_add_u32 s{sQB}, s{sQB}, 2048
    s_cmp_lt_u32 s{sQB}, s{sNE}
    s_cbranch_scc1 L_k3_next
    """)
    a.begin_tail()
    a("L_k3_next:")
    desc_loads()
    a("s_waitcnt vmcnt(0)")
    desc_build()
    a("s_branch L_k3_prime")
    a.end_tail()

    def epilogue(rs):
        for r in rs:
            t = vRB + 8 * r
            a(f"""
            v_lshrrev_b32 v{t}, 3, v{vE8 + r}
            v_add_u32 v{t + 1}, {TOPK}, v{t}
            v_add_u32 v{t}, {TOPK << 6}, v{t}
            v_and_b32 v{t + 1}, 63, v{t + 1}
            v_and_b32 v{t}, 0xfc0, v{t}
            v_or_b32 v{t}, v{t}, v{t + 1}
            v_lshlrev_b32 v{t + 4}, 3, v{t}
            ds_read_b64 {vr(t, 2)}, v{t + 4} offset:{ACC}
            ds_read_b64 {vr(t + 2, 2)}, v{t + 4} offset:{ACC + 32768}
            """)
        a("s_waitcnt lgkmcnt(0)")
        for r in rs:
            t = vRB + 8 * r
            a(f"""
            v_lshrrev_b32 v{t + 4}, 31, v{t}
            v_lshrrev_b32 v{t + 5}, 31, v{t + 2}
            v_add_u32 v{t + 1}, v{t + 1}, v{t + 4}
            v_add_u32 v{t + 3}, v{t + 3}, v{t + 5}
            """)
            for j in range(4):
                a(f"v_cvt_f32_i32 v{t + j}, v{t + j}")
            for j in range(4):
                a(f"v_ldexp_f32 v{t + j}, v{t + j}, s{sUEXP}")

        def mat4(sw, src, dst):
            for k in range(4):
                for jp in range(2):
                    a(f"""
                    s_lshl_b32 s{sT}, s{sw + 2 * k + jp}, 16
                    s_and_b32 s{sU}, s{sw + 2 * k + jp}, 0xffff0000
                    """)
                    op = "v_mul_f32" if k == 0 else "v_fmac_f32"
                    for r in rs:
                        t = vRB + 8 * r
                        a(f"{op} v{t + dst + 2 * jp}, s{sT}, v{t + src + k}")
                        a(f"{op} v{t + dst + 2 * jp + 1}, s{sU}, v{t + src + k}")
        mat4(sWD, 0, 4)
        for r in rs:
            t = vRB + 8 * r
            for j in range(4):
                a(f"v_mul_f32 v{t + 4 + j}, v{t + 4 + j}, v{vS + 4 * r + j}")
        mat4(sWU, 4, 0)
        for r in rs:
            t = vRB + 8 * r
            m = vM + 2 * r
            a(f"""
            v_lshlrev_b32 v{t + 4}, 16, v{m}
            v_and_b32 v{t + 5}, 0xffff0000, v{m}
            v_lshlrev_b32 v{t + 6}, 16, v{m + 1}
            v_and_b32 v{t + 7}, 0xffff0000, v{m + 1}
            """)
            for j in range(4):
                a(f"v_fmac_f32 v{t + 4 + j}, v{t + j}, v{vRR + 4 * r + j}")
            a(f"""
            v_cvt_pk_bf16_f32 v{t}, v{t + 4}, v{t + 5}
            v_cvt_pk_bf16_f32 v{t + 1}, v{t + 6}, v{t + 7}
            buffer_store_dwordx2 {vr(t, 2)}, v{vE8 + r}, {sr(sOUT, 4)}, 0 offen {OPT['st_out']}
            """)

    a(f"""
    s_waitcnt lgkmcnt(0)
    s_barrier
    s_cmp_eq_u32 s{sWAVE}, 0
    s_cbranch_scc1 L_k3_epi4
    """)
    epilogue([0, 1, 2])
    a("""
    L_k3_end:
    s_endpgm
    L_k3_epi4:
    """)
    epilogue([0, 1, 2, 3])
    a("s_endpgm")
    a("L_k3_prime:")
    for i in range(D):
        pop(i)
    a("s_branch L_k3_loop")
    a.flush_tail()
    return name, nv, 96, LDS


HEADER = """; Three launches: partition by idx_in, gather + partition by idx_out, accumulate + epilogue.
"""


def build():
    a = Asm()
    ks = [k1(a), k2(a), k3(a)]
    out = HEADER
    for name, nv, ns, lds in ks:
        out += f"; @launch kernel={name} grid=({NB},1,1) block=(1024,1,1) lds={lds}\n"
    out += '.amdgcn_target "amdgcn-amd-amdhsa--gfx950"\n.text\n'
    out += a.text()
    out += '.section .rodata,"a"\n'
    for name, nv, ns, lds in ks:
        assert nv <= 128, (name, nv)
        out += kernel_desc(name, nv, ns)
    return out


if __name__ == "__main__":
    path = sys.argv[1]
    for kv in sys.argv[2:]:
        k, v = kv.split("=")
        OPT[k] = v.replace("+", " ")
    open(path, "w").write(build())
```

```python
import sys
from asmlib import Asm, vr, sr, srd, wave_scan, kernel_header, kernel_desc

E = 800000
T = 12800000
NB = 256
SPAN = 3125
CB4 = 4 * 1374390
N1 = 12800
NT1 = T // N1

R1A = 0
R1B = 51200000
ROW1 = 4096 + 128
OFF1 = 76800000
CNT = 77900032
MAXS = CNT + 1024
DIR2 = MAXS + 1024
ROW2 = 65536 + 128
OFF2 = DIR2 + 65536
R2 = 94781440
WS_BYTES = 268435456
assert OFF1 + NB * ROW1 <= CNT and OFF2 + NB * ROW2 <= R2 and R2 % 128 == 0 and OFF2 % 128 == 0
assert R2 + (1 << 27) <= 240000000
PAD2 = 14336
FIX = 5
NS = 15
SEG = 63
MAGIC = 0x4C001000
TOPK = 0x13
QMAX = 4080
MAXFLOOR = 0x0880

OPT = dict(ld_in="nt", st1="sc1", ld1="", st2="sc1", ld2="", ld_m="", st_out="", prof="", d3="8")
PROF = 240000000
VPROF = 127


def stamp(a, i, dyn=None):
    if not OPT["prof"]:
        return
    a("""
    s_memrealtime s[98:99]
    s_waitcnt lgkmcnt(0)
    """)
    if dyn is None:
        a(f"v_writelane_b32 v{VPROF}, s98, {i}")
    else:
        a(f"""
        s_lshl_b32 s99, s{dyn}, 2
        s_add_u32 m0, s99, {i}
        s_nop 0
        v_writelane_b32 v{VPROF}, s98, m0
        """)


def stamp_flush(a, kidx, sWS, sWAVE):
    if not OPT["prof"]:
        return
    stamp(a, 2)
    a("s_waitcnt vmcnt(0)")
    stamp(a, 3)
    lab = a.uid("pf")
    a(f"""
    s_mov_b64 exec, -1
    s_and_b32 s98, s{sWAVE}, 7
    s_cmp_lg_u32 s98, 0
    s_cbranch_scc1 {lab}
    s_lshr_b32 s98, s{sWAVE}, 3
    s_lshl_b32 s99, s2, 1
    s_add_u32 s98, s98, s99
    s_lshl_b32 s98, s98, 8
    s_add_u32 s98, s98, {PROF + kidx * 512 * 256}
    v_and_b32 v0, 63, v0
    v_lshlrev_b32 v0, 2, v0
    buffer_store_dword v{VPROF}, v0, s[{sWS}:{sWS + 3}], s98 offen
    {lab}:
    """)


def slice_loads(a, sM, sROW, sT, vX4, vTMP, dst):
    a(f"""
    s_and_b32 s{sT}, s{sROW}, -2
    s_lshl_b32 s{sT}, s{sT}, 3
    v_mov_b32 v{vTMP}, 0x40000000
    v_cmp_gt_u32 vcc, {(SPAN + 1) // 2 - 1024}, v0
    buffer_load_dwordx4 {vr(dst, 4)}, v{vX4}, {sr(sM, 4)}, s{sT} offen {OPT['ld_m']}
    s_add_u32 s{sT}, s{sT}, 16384
    v_cndmask_b32 v{vTMP}, v{vTMP}, v{vX4}, vcc
    buffer_load_dwordx4 {vr(dst + 4, 4)}, v{vTMP}, {sr(sM, 4)}, s{sT} offen {OPT['ld_m']}
    """)


def prefix_core(a, c, z, b, x, vX4, HOFF, POFF):
    a(f"""
    ds_write_b128 v{vX4}, {vr(z, 4)} offset:{HOFF}
    v_add_u32 v{b + 2}, v{c}, v{c + 1}
    v_add_u32 v{b + 3}, v{b + 2}, v{c + 2}
    v_add_u32 v{x + 1}, v{b + 3}, v{c + 3}
    v_mov_b32 v{x}, v{x + 1}
    """)
    wave_scan(a, "v_add_u32", x)
    a(f"""
    v_sub_u32 v{b}, v{x}, v{x + 1}
    v_add_u32 v{b + 1}, v{b}, v{c}
    v_add_u32 v{b + 2}, v{b}, v{b + 2}
    v_add_u32 v{b + 3}, v{b}, v{b + 3}
    ds_write_b128 v{vX4}, {vr(b, 4)} offset:{POFF}
    """)


def global_max(a, v4, sDST):
    a(f"""
    v_max3_u32 v{v4}, v{v4}, v{v4 + 1}, v{v4 + 2}
    v_max_u32 v{v4}, v{v4}, v{v4 + 3}
    """)
    wave_scan(a, "v_max_u32", v4)
    a(f"""
    s_nop 0
    v_readlane_b32 s{sDST}, v{v4}, 63
    s_nop 3
    s_max_u32 s{sDST}, s{sDST}, {MAXFLOOR}
    s_lshl_b32 s{sDST}, s{sDST}, 16
    """)


def k1(a):
    name = "part_in_kernel"
    kernel_header(a, name)
    HOFF, POFF, MISC, BUF = 0, 1024, 2048, 2176
    BUFB = BUF + N1 * 4
    sIN, sOUT, sANG, sWS, sM = 12, 16, 20, 24, 40
    sWAVE, sCB, sT, sA, sB, sU, sPOS = 3, 28, 29, 30, 31, 36, 37
    sTI = [32, 33, 34, 35]
    vX4, vX4b, vX2, vTI, vTA, vFOUR, vF = 1, 2, 3, 4, 5, 6, 7
    sets = []
    base = 8
    for s in range(2):
        sets.append(dict(i=base, o=base + 14, g=base + 28))
        base += 36
    vRANK = base
    vROW = vRANK + 13
    vSTG = vRANK + 14
    vC = vSTG + 20
    nv = vC + 4
    ld = OPT["ld_in"]
    a(f"""
    s_cmp_ge_u32 s2, {NB}
    s_cbranch_scc1 L_k1_end
    s_load_dwordx4 s[4:7], s[0:1], 8
    s_load_dwordx2 s[8:9], s[0:1], 32
    s_load_dwordx2 s[10:11], s[0:1], 104
    s_load_dwordx2 s[38:39], s[0:1], 0
    s_load_dwordx2 s[44:45], s[0:1], 48
    v_lshrrev_b32 v{vFOUR}, 6, v0
    v_lshlrev_b32 v{vX4}, 4, v0
    v_readfirstlane_b32 s{sWAVE}, v{vFOUR}
    v_add_u32 v{vX4b}, 0x10000, v{vX4}
    v_lshlrev_b32 v{vX2}, 3, v0
    v_lshlrev_b32 v{vTI}, 2, v0
    v_lshlrev_b32 v{vTA}, 1, v0
    v_mov_b32 v{vFOUR}, 0x40000000
    v_cmp_gt_u32 vcc, 0x200, v0
    v_mov_b32 v{vSTG}, 0
    s_mov_b32 s{sCB}, {CB4}
    v_cndmask_b32 v{vTI}, v{vFOUR}, v{vTI}, vcc
    v_cndmask_b32 v{vTA}, v{vFOUR}, v{vTA}, vcc
    v_mov_b32 v{vFOUR}, 4
    v_mul_u32_u24 v{vROW}, {4 * ROW1}, v0
    s_mov_b32 s{sTI[0]}, s2
    s_add_u32 s{sTI[1]}, s2, 256
    s_add_u32 s{sTI[2]}, s2, 512
    s_add_u32 s{sTI[3]}, s2, 768
    s_and_b32 s{sPOS}, s2, 7
    s_lshl_b32 s{sPOS}, s{sPOS}, 7
    s_lshr_b32 s{sT}, s2, 3
    s_add_u32 s{sPOS}, s{sPOS}, s{sT}
    s_cmp_eq_u32 s{sT}, 31
    s_cselect_b32 s{sT}, 32, 0
    s_add_u32 s{sPOS}, s{sPOS}, s{sT}
    s_lshl_b32 s{sPOS}, s{sPOS}, 2
    s_add_u32 s{sPOS}, s{sPOS}, {OFF1}
    s_waitcnt lgkmcnt(0)
    s_load_dword s46, s[44:45], 0
    """)
    stamp(a, 0)
    srd(a, sIN, 4, T * 4)
    srd(a, sOUT, 6, T * 4)
    srd(a, sANG, 8, T * 2)
    srd(a, sWS, 10, WS_BYTES)
    srd(a, sM, 38, E * 8)

    def load_group(k, g):
        st = sets[k % 2]
        if g == 0:
            a(f"""
            s_mul_i32 s{sA}, s{sTI[k]}, {N1 * 4}
            s_mul_i32 s{sB}, s{sTI[k]}, {N1 * 2}
            """)
        if g < 3:
            a(f"""
            buffer_load_dwordx4 {vr(st['i'] + 4 * g, 4)}, v{vX4}, {sr(sIN, 4)}, s{sA} offen {ld}
            buffer_load_dwordx4 {vr(st['o'] + 4 * g, 4)}, v{vX4}, {sr(sOUT, 4)}, s{sA} offen {ld}
            buffer_load_dwordx2 {vr(st['g'] + 2 * g, 2)}, v{vX2}, {sr(sANG, 4)}, s{sB} offen {ld}
            s_add_u32 s{sA}, s{sA}, 16384
            s_add_u32 s{sB}, s{sB}, 8192
            """)
        else:
            a(f"""
            buffer_load_dword v{st['i'] + 12}, v{vTI}, {sr(sIN, 4)}, s{sA} offen {ld}
            buffer_load_dword v{st['o'] + 12}, v{vTI}, {sr(sOUT, 4)}, s{sA} offen {ld}
            buffer_load_ushort v{st['g'] + 6}, v{vTA}, {sr(sANG, 4)}, s{sB} offen {ld}
            """)

    for g in range(4):
        load_group(0, g)
    a(f"""
    s_cmp_lg_u32 s{sWAVE}, 0
    s_cbranch_scc1 L_k1_noinit
    v_mov_b32 v{vSTG + 1}, 0
    v_mov_b32 v{vSTG + 2}, 0
    v_mov_b32 v{vSTG + 3}, 0
    ds_write_b128 v{vX4}, {vr(vSTG, 4)} offset:{HOFF}
    ds_write_b32 v{vSTG}, v{vSTG} offset:{MISC}
    s_cmp_lg_u32 s2, 0
    s_cbranch_scc1 L_k1_noinit
    s_mov_b32 s{sT}, {CNT}
    buffer_store_dword v{vSTG}, v{vTI}, {sr(sWS, 4)}, s{sT} offen
    L_k1_noinit:
    s_waitcnt lgkmcnt(0)
    s_lshl_b32 s46, s46, 16
    v_mov_b32 v{vF}, s46
    s_barrier
    """)
    for g in range(4):
        load_group(1, g)

    def copy_reads():
        lab = a.uid("cr")
        for i in range(4):
            a(f"ds_read_b128 {vr(vSTG + 4 * i, 4)}, v{vX4} offset:{BUF + i * 16384}")
        a(f"""
        s_cmp_ge_u32 s{sWAVE}, 11
        s_cbranch_scc1 {lab}
        ds_read_b128 {vr(vSTG + 16, 4)}, v{vX4b} offset:{BUF}
        {lab}:
        """)

    def copy_store(i, sTile):
        st = OPT["st1"]
        if i < 3:
            a(f"""
            s_mul_i32 s{sT}, s{sTile}, {N1 * 4}
            s_add_u32 s{sT}, s{sT}, {R1A + i * 16384}
            buffer_store_dwordx4 {vr(vSTG + 4 * i, 4)}, v{vX4}, {sr(sWS, 4)}, s{sT} offen {st}
            """)
        elif i == 3:
            a(f"""
            s_mul_i32 s{sT}, s{sTile}, {N1 * 4}
            s_add_u32 s{sT}, s{sT}, {R1A + 49152}
            s_mul_i32 s{sU}, s{sTile}, {N1 * 2}
            s_add_u32 s{sU}, s{sU}, {R1B - 2048}
            s_cmp_lt_u32 s{sWAVE}, 2
            s_cselect_b32 s{sT}, s{sT}, s{sU}
            buffer_store_dwordx4 {vr(vSTG + 12, 4)}, v{vX4}, {sr(sWS, 4)}, s{sT} offen {st}
            """)
        else:
            lab = a.uid("cs")
            a(f"""
            s_cmp_ge_u32 s{sWAVE}, 11
            s_cbranch_scc1 {lab}
            s_mul_i32 s{sT}, s{sTile}, {N1 * 2}
            s_add_u32 s{sT}, s{sT}, {R1B + 14336}
            buffer_store_dwordx4 {vr(vSTG + 16, 4)}, v{vX4}, {sr(sWS, 4)}, s{sT} offen {st}
            {lab}:
            """)

    def hist(st, js):
        for j in js:
            a(f"v_mul_hi_u32_u24 v{vRANK + j}, s{sCB}, v{st['i'] + j}")
        for j in js:
            a(f"v_lshl_or_b32 v{st['o'] + j}, v{st['i'] + j}, 20, v{st['o'] + j}")
        for j in js:
            a(f"v_and_b32 v{st['i'] + j}, 0x3fc, v{vRANK + j}")
        for j in js:
            a(f"ds_add_rtn_u32 v{vRANK + j}, v{st['i'] + j}, v{vFOUR} offset:{HOFF}")

    def cosines(regs):
        ops = ["v_lshlrev_b32 {x}, 16, {g}", "v_and_b32 {y}, 0xffff0000, {g}",
               f"v_mul_f32 {{x}}, v{vF}, {{x}}", f"v_mul_f32 {{y}}, v{vF}, {{y}}",
               "v_cvt_pk_bf16_f32 {g}, {x}, {y}",
               "v_lshlrev_b32 {x}, 16, {g}", "v_and_b32 {y}, 0xffff0000, {g}",
               "v_mul_f32 {x}, 0.15915494, {x}", "v_mul_f32 {y}, 0.15915494, {y}",
               "v_fract_f32 {x}, {x}", "v_fract_f32 {y}, {y}",
               "v_cos_f32 {x}, {x}", "v_cos_f32 {y}, {y}"]
        for op in ops:
            for n, g in enumerate(regs):
                a(op.format(g=f"v{g}", x=f"v{vC + 2 * n}", y=f"v{vC + 2 * n + 1}"))
        a("s_nop 0")
        for n, g in enumerate(regs):
            a(f"v_cvt_pk_f16_f32 v{g}, v{vC + 2 * n}, v{vC + 2 * n + 1}")

    def phase_h(k):
        st = sets[k % 2]
        if k > 0:
            copy_reads()
            a(f"s_waitcnt vmcnt({[0, 12, 12, 2][k]})")
        for g in range(3):
            if k == 0:
                a(f"s_waitcnt vmcnt({24 - 3 * g - 2})")
            hist(st, range(4 * g, 4 * g + 4))
            if k > 0:
                if g == 0:
                    a("s_waitcnt lgkmcnt(4)")
                    copy_store(0, sTI[k - 1])
                    copy_store(1, sTI[k - 1])
                elif g == 1:
                    copy_store(2, sTI[k - 1])
                    copy_store(3, sTI[k - 1])
                else:
                    copy_store(4, sTI[k - 1])
            if k == 0:
                a(f"s_waitcnt vmcnt({24 - 3 * g - 3})")
            cosines([st['g'] + 2 * g, st['g'] + 2 * g + 1])
        lab = a.uid("ht")
        if k == 0:
            a("s_waitcnt vmcnt(12)")
        a(f"""
        s_cmp_ge_u32 s{sWAVE}, 8
        s_cbranch_scc1 {lab}
        """)
        hist(st, [12])
        cosines([st['g'] + 6])
        a(f"""
        {lab}:
        s_waitcnt lgkmcnt(0)
        s_barrier
        """)

    def phase_p(k):
        lab = a.uid("p")
        c, z, b, x = vSTG, vSTG + 4, vSTG + 8, vSTG + 12
        a(f"""
        s_cmp_lg_u32 s{sWAVE}, 0
        s_cbranch_scc1 {lab}
        ds_read_b128 {vr(c, 4)}, v{vX4} offset:{HOFF}
        v_mov_b32 v{z}, 0
        v_mov_b32 v{z + 1}, 0
        v_mov_b32 v{z + 2}, 0
        v_mov_b32 v{z + 3}, 0
        s_waitcnt lgkmcnt(0)
        """)
        prefix_core(a, c, z, b, x, vX4, HOFF, POFF)
        a(f"""
        s_waitcnt lgkmcnt(0)
        {lab}:
        s_barrier
        """)

    def offsets_store(k):
        lab = a.uid("os")
        c, b = vSTG, vSTG + 8
        a(f"""
        s_cmp_lg_u32 s{sWAVE}, 0
        s_cbranch_scc1 {lab}
        s_add_u32 s{sT}, s{sPOS}, {k * 128}
        """)
        for j in range(4):
            a(f"v_lshl_or_b32 v{c + j}, v{c + j}, 16, v{b + j}")
        for j in range(4):
            a(f"buffer_store_dword v{c + j}, v{vROW}, {sr(sWS, 4)}, s{sT} offen")
            if j < 3:
                a(f"s_add_u32 s{sT}, s{sT}, {ROW1}")
        a(f"{lab}:")

    def scatter(st, js):
        for j in js:
            a(f"v_add_u32 v{vRANK + j}, v{st['i'] + j}, v{vRANK + j}")
        for j in js:
            a(f"ds_write_b32 v{vRANK + j}, v{st['o'] + j} offset:{BUF}")
        for j in js:
            a(f"v_lshrrev_b32 v{st['i'] + j}, 1, v{vRANK + j}")
        for j in js:
            op = "ds_write_b16" if j % 2 == 0 else "ds_write_b16_d16_hi"
            a(f"{op} v{st['i'] + j}, v{st['g'] + j // 2} offset:{BUFB}")

    vM8 = sets[0]['i']

    def phase_s(k):
        st = sets[k % 2]
        for j in range(13):
            a(f"ds_read_b32 v{st['i'] + j}, v{st['i'] + j} offset:{POFF}")
        offsets_store(k)
        a("s_waitcnt lgkmcnt(0)")
        for g in range(3):
            scatter(st, range(4 * g, 4 * g + 4))
            if k + 2 < 4:
                load_group(k + 2, g)
        lab = a.uid("st")
        a(f"""
        s_cmp_ge_u32 s{sWAVE}, 8
        s_cbranch_scc1 {lab}
        """)
        scatter(st, [12])
        a(f"{lab}:")
        if k + 2 < 4:
            load_group(k + 2, 3)
        if k == 2:
            a(f"s_mul_i32 s{sU}, s2, {SPAN}")
            slice_loads(a, sM, sU, sT, vX4, vC, vM8)
        a("""
        s_waitcnt lgkmcnt(0)
        s_barrier
        """)

    for k in range(4):
        if k == 3:
            a(f"""
            s_cmp_lt_u32 s{sTI[3]}, {NT1}
            s_cbranch_scc1 L_k1_t3
            s_mov_b32 s{sTI[3]}, s{sTI[2]}
            s_branch L_k1_final
            L_k1_t3:
            """)
        stamp(a, 4 + 4 * k)
        phase_h(k)
        stamp(a, 5 + 4 * k)
        phase_p(k)
        stamp(a, 6 + 4 * k)
        phase_s(k)
    a("L_k1_final:")
    stamp(a, 1)
    copy_reads()
    a("s_waitcnt lgkmcnt(0)")
    for i in range(5):
        copy_store(i, sTI[3])
    a("s_waitcnt vmcnt(4)")
    for i in range(8):
        a(f"v_and_b32 v{vM8 + i}, 0x7fff7fff, v{vM8 + i}")
    for d, x, y in ((0, 0, 1), (2, 2, 3), (4, 4, 5), (6, 6, 7), (0, 0, 2), (4, 4, 6), (0, 0, 4)):
        a(f"v_pk_max_u16 v{vM8 + d}, v{vM8 + x}, v{vM8 + y}")
    a(f"""
    v_lshrrev_b32 v{vC}, 16, v{vM8}
    v_and_b32 v{vM8}, 0xffff, v{vM8}
    v_max_u32 v{vC}, v{vC}, v{vM8}
    v_mov_b32 v{vC + 1}, 0
    """)
    wave_scan(a, "v_max_u32", vC)
    a(f"""
    s_lshl_b64 exec, 1, 63
    ds_max_u32 v{vC + 1}, v{vC} offset:{MISC}
    s_waitcnt lgkmcnt(0)
    s_barrier
    s_cmp_lg_u32 s{sWAVE}, 0
    s_cbranch_scc1 L_k1_nomax
    ds_read_b32 v{vC}, v{vC + 1} offset:{MISC}
    s_lshl_b32 s{sT}, s2, 2
    s_add_u32 s{sT}, s{sT}, {MAXS}
    s_waitcnt lgkmcnt(0)
    buffer_store_dword v{vC}, v{vC + 1}, {sr(sWS, 4)}, s{sT} offen
    L_k1_nomax:
    """)
    stamp_flush(a, 0, sWS, sWAVE)
    a("""
    L_k1_end:
    s_endpgm
    """)
    return name, nv, 48, BUFB + N1 * 2


def refill_code(a, vIDX, vLEN, vW, vT, sMASK, pend=None):
    a(f"""
    s_mov_b64 exec, -1
    v_add_u32 v{vIDX}, {SEG}, v{vIDX}
    v_subrev_u32 v{vLEN}, {SEG}, v{vLEN}
    v_max_i32 v{vLEN}, 0, v{vLEN}
    """)
    if pend is not None:
        cur, pen = pend
        a(f"""
        v_cmp_eq_u32 vcc, 0, v{vLEN}
        s_nop 1
        """)
        for c, p in zip(cur, pen):
            a(f"v_cndmask_b32 v{c}, v{c}, v{p}, vcc")
        a(f"v_cndmask_b32 v{pen[1]}, v{pen[1]}, 0, vcc")
    a(f"""
    v_min_u32 v{vT}, {SEG}, v{vLEN}
    v_cmp_lt_u32 {sr(sMASK, 2)}, 0, v{vLEN}
    v_lshl_or_b32 v{vW}, v{vIDX}, 6, v{vT}
    s_nop 3
    """)


def k2(a):
    name = "gather_part_kernel"
    kernel_header(a, name)
    HOFF, POFF, MISC, SLICE, SORT = 0, 1024, 2048, 4096, 36864
    LDS = SORT + NS * 1024 * 8
    sWAVE, sB = 3, 4
    sWS, sM = 8, 12
    sK, sCB, sDONE = 16, 17, 18
    sMASK, sQUOTA, sNT, sKT, sT, sU, sL = 20, 22, 23, 24, 25, 26, 27
    sBASE, sNPREV, sR1B, sBPREV, sQ = 28, 29, 31, 64, 65
    sW = [32, 48]
    sCM = [66, 68, 70]
    vLANE, vX4, vXA, vXB, vT2, vEIGHT, vIDX, vLEN, vW, vZERO, vROW = 1, 2, 3, 4, 5, 6, 7, 8, 9, 10, 11
    vT = 12
    vSTG = 16
    vR = [28, 28 + 2 * NS]
    vZ = 28 + 4 * NS
    nv = vZ + 2 * NS
    A = lambda st, s: vR[st] + 2 * s
    G = lambda st, s: vR[st] + 2 * s + 1
    Z = lambda s: vZ + 2 * s
    ld1 = OPT["ld1"]

    a(f"""
    s_cmp_ge_u32 s2, {NB}
    s_cbranch_scc1 L_k2_end
    s_load_dwordx2 s[6:7], s[0:1], 104
    s_load_dwordx2 s[32:33], s[0:1], 0
    v_lshrrev_b32 v{vEIGHT}, 6, v0
    v_and_b32 v{vLANE}, 63, v0
    v_readfirstlane_b32 s{sWAVE}, v{vEIGHT}
    s_and_b32 s{sB}, s2, 7
    s_lshl_b32 s{sB}, s{sB}, 5
    s_lshr_b32 s{sT}, s2, 3
    s_add_u32 s{sB}, s{sB}, s{sT}
    v_lshlrev_b32 v{vX4}, 4, v0
    v_lshlrev_b32 v{vT2}, 1, v0
    v_lshlrev_b32 v{vT + 2}, 2, v0
    v_lshlrev_b32 v{vT + 3}, 4, v{vLANE}
    v_mov_b32 v{vZERO}, 0
    v_mov_b32 v{vEIGHT}, 8
    s_mul_i32 s{sT}, s{sB}, {ROW1}
    s_add_u32 s{sT}, s{sT}, {OFF1}
    s_mov_b32 s{sU}, {MAXS}
    s_waitcnt lgkmcnt(0)
    """)
    stamp(a, 0)
    srd(a, sWS, 6, WS_BYTES)
    a(f"""
    buffer_load_dword v{vLEN}, v{vT + 2}, {sr(sWS, 4)}, s{sT} offen
    buffer_load_dwordx4 {vr(vZ, 4)}, v{vT + 3}, {sr(sWS, 4)}, s{sU} offen
    """)
    srd(a, sM, 32, E * 8)
    a(f"s_mul_i32 s{sU}, s{sB}, {SPAN}")
    slice_loads(a, sM, sU, sT, vX4, vT + 1, vSTG)
    a(f"""
    ds_write_b32 v{vT + 2}, v{vZERO}
    s_and_b32 s{sU}, s{sU}, -2
    v_add_u32 v{vXA}, {SORT}, v{vX4}
    v_add_u32 v{vXB}, {SORT + 65536}, v{vX4}
    v_mul_u32_u24 v{vROW}, {4 * ROW2}, v{vLANE}
    s_mov_b32 s{sK}, {MAGIC}
    s_mov_b32 s{sCB}, {CB4}
    s_mov_b32 s{sR1B}, {R1B}
    s_mov_b32 s{sDONE}, 0
    v_add_u32 v{vSTG + 8}, s{sU}, v{vT2}
    v_and_b32 v{vSTG + 8}, 0xfff, v{vSTG + 8}
    v_lshlrev_b32 v{vSTG + 8}, 3, v{vSTG + 8}
    v_xor_b32 v{vSTG + 9}, 0x4000, v{vSTG + 8}
    v_and_b32 v{vT}, 31, v0
    v_bfe_u32 v{vT + 1}, v0, 5, 2
    v_cmp_eq_u32 vcc, 31, v{vT}
    v_lshrrev_b32 v{vT + 2}, 7, v0
    v_lshl_add_u32 v{vT}, v{vT}, 3, v{vT + 2}
    v_subb_co_u32 v{vT + 1}, vcc, v{vT + 1}, 0, vcc
    v_lshl_add_u32 v{vIDX}, v{vT + 1}, 8, v{vT}
    v_cmp_gt_u32 vcc, {NT1}, v{vIDX}
    v_mul_u32_u24 v{vIDX}, {N1}, v{vIDX}
    """)
    for st in range(2):
        for s in range(NS):
            a(f"v_mov_b32 v{A(st, s)}, 0")
            a(f"v_mov_b32 v{G(st, s)}, 0")
    a(f"""
    s_waitcnt vmcnt(3)
    v_cndmask_b32 v{vLEN}, 0, v{vLEN}, vcc
    v_bfe_u32 v{vT}, v{vLEN}, 2, 14
    v_lshrrev_b32 v{vLEN}, 18, v{vLEN}
    v_add_u32 v{vIDX}, v{vIDX}, v{vT}
    v_add_u32 v{vT + 1}, {SEG - 1}, v{vLEN}
    v_mul_u32_u24 v{vT + 1}, 16645, v{vT + 1}
    v_lshrrev_b32 v{vT + 1}, 20, v{vT + 1}
    v_min_u32 v{vT + 2}, {SEG}, v{vLEN}
    v_cmp_lt_u32 {sr(sMASK, 2)}, 0, v{vLEN}
    v_lshl_or_b32 v{vW}, v{vIDX}, 6, v{vT + 2}
    """)
    wave_scan(a, "v_add_u32", vT + 1)
    a(f"""
    s_nop 0
    v_readlane_b32 s{sT}, v{vT + 1}, 63
    s_nop 3
    s_add_u32 s{sQUOTA}, s{sT}, {FIX - 1}
    s_mul_i32 s{sQUOTA}, s{sQUOTA}, 52429
    s_lshr_b32 s{sQUOTA}, s{sQUOTA}, 18
    s_add_u32 s{sNT}, s{sT}, {NS - 1}
    s_mul_i32 s{sNT}, s{sNT}, 34953
    s_lshr_b32 s{sNT}, s{sNT}, 19
    """)

    def pop(st, s):
        back, stub, empty, issue = a.uid("pb"), a.uid("pr"), a.uid("pe"), a.uid("pi")
        w = sW[st] + s
        if s >= 12:
            a(f"""
            s_cmp_le_u32 s{sQUOTA}, {s}
            s_cbranch_scc1 {empty}
            """)
        a(f"""
        s_cmp_eq_u64 {sr(sMASK, 2)}, 0
        s_cbranch_scc1 {stub}
        {back}:
        s_ff1_i32_b64 s{sL}, {sr(sMASK, 2)}
        s_bitset0_b64 {sr(sMASK, 2)}, s{sL}
        v_readlane_b32 s{w}, v{vW}, s{sL}
        s_lshr_b32 s{sT}, s{w}, 6
        s_bfm_b64 exec, s{w}, 0
        v_add_lshl_u32 v{A(st, s)}, s{sT}, v{vLANE}, 2
        v_lshrrev_b32 v{G(st, s)}, 1, v{A(st, s)}
        {issue}:
        buffer_load_dword v{A(st, s)}, v{A(st, s)}, {sr(sWS, 4)}, 0 offen {ld1}
        buffer_load_ushort v{G(st, s)}, v{G(st, s)}, {sr(sWS, 4)}, s{sR1B} offen {ld1}
        """)
        a.begin_tail()
        a(f"""
        {stub}:
        s_cmp_lg_u32 s{sDONE}, 0
        s_cbranch_scc1 {empty}
        """)
        refill_code(a, vIDX, vLEN, vW, vT + 3, sMASK)
        a(f"""
        s_cmp_eq_u64 {sr(sMASK, 2)}, 0
        s_cbranch_scc0 {back}
        s_mov_b32 s{sDONE}, 1
        {empty}:
        s_mov_b32 s{w}, 0
        s_mov_b64 exec, 0
        s_branch {issue}
        """)
        a.end_tail()

    stamp(a, 60)
    for s in range(NS):
        pop(0, s)
    a("s_mov_b64 exec, -1")
    wave_scan(a, "v_add_u32", vT)
    a(f"""
    v_mov_b32 v{vT + 1}, s{sNT}
    s_waitcnt lgkmcnt(0)
    s_barrier
    s_lshl_b64 exec, 1, 63
    ds_max_u32 v{vZERO}, v{vT + 1} offset:{MISC}
    ds_add_u32 v{vZERO}, v{vT} offset:{MISC + 4}
    """)
    for s in range(NS):
        pop(1, s)
    a(f"""
    s_mov_b64 exec, -1
    s_waitcnt vmcnt({4 * NS})
    """)
    stamp(a, 61)
    global_max(a, vZ, sT)
    a(f"""
    v_rcp_f32 v{vT}, s{sT}
    s_nop 0
    v_mul_f32 v{vT}, {float(QMAX * 4)}, v{vT}
    """.replace(str(float(QMAX * 4)), "0x467f0000"))
    for i in range(8):
        a(f"""
        v_lshlrev_b32 v{vT + 2}, 16, v{vSTG + i}
        v_and_b32 v{vT + 3}, 0xffff0000, v{vSTG + i}
        v_mul_f32 v{vT + 2}, v{vT}, v{vT + 2}
        v_mul_f32 v{vT + 3}, v{vT}, v{vT + 3}
        v_cvt_pk_f16_f32 v{vSTG + i}, v{vT + 2}, v{vT + 3}
        """)
    a(f"""
    ds_write_b128 v{vSTG + 8}, {vr(vSTG, 4)} offset:{SLICE}
    ds_write_b128 v{vSTG + 9}, {vr(vSTG + 4, 4)} offset:{SLICE}
    s_waitcnt lgkmcnt(0)
    s_barrier
    ds_read_b64 {vr(vT, 2)}, v{vZERO} offset:{MISC}
    s_waitcnt lgkmcnt(0)
    v_readfirstlane_b32 s{sNT}, v{vT}
    v_readfirstlane_b32 s{sBASE}, v{vT + 1}
    s_nop 3
    s_max_u32 s{sNT}, s{sNT}, {FIX}
    s_mul_i32 s{sT}, s{sB}, {PAD2}
    s_add_u32 s{sBASE}, s{sBASE}, s{sT}
    s_add_u32 s{sBASE}, s{sBASE}, 15
    s_and_b32 s{sBASE}, s{sBASE}, -16
    s_mov_b32 s{sKT}, 0
    s_mov_b32 s{sNPREV}, 0
    s_mov_b32 s{sBPREV}, {R2}
    """)

    def copy_reads(chunks, regs, masks):
        a("s_mov_b64 exec, -1")
        for i, m in zip(chunks, masks):
            a(f"""
            s_sub_i32 s{sT}, s{sNPREV}, {i * 2048}
            v_cmp_gt_i32 {sr(m, 2)}, s{sT}, v{vT2}
            """)
        for i, r, m in zip(chunks, regs, masks):
            addr = vXA if i < 4 else vXB
            a(f"""
            s_mov_b64 exec, {sr(m, 2)}
            ds_read_b128 {vr(r, 4)}, v{addr} offset:{(i % 4) * 16384}
            """)

    def copy_stores(chunks, regs, masks):
        for i, r, m in zip(chunks, regs, masks):
            lab = a.uid("cs")
            a(f"""
            s_mov_b64 exec, {sr(m, 2)}
            s_cbranch_execz {lab}
            s_add_u32 s{sT}, s{sBPREV}, {i * 16384}
            buffer_store_dwordx4 {vr(r, 4)}, v{vX4}, {sr(sWS, 4)}, s{sT} offen {OPT['st2']}
            {lab}:
            """)

    def gathers(st, bt):
        for s in bt:
            a(f"""
            s_bfm_b64 exec, s{sW[st] + s}, 0
            v_lshrrev_b32 v{Z(s)}, 17, v{A(st, s)}
            v_and_b32 v{Z(s)}, 0x7ff8, v{Z(s)}
            ds_read_b64 {vr(Z(s), 2)}, v{Z(s)} offset:{SLICE}
            """)

    def encode(st, bt):
        for s in bt:
            z, aa, g = Z(s), A(st, s), G(st, s)
            a(f"""
            s_bfm_b64 exec, s{sW[st] + s}, 0
            v_fma_mix_f32 v{vT}, v{z}, v{g}, s{sK} op_sel_hi:[1,1,0]
            v_fma_mix_f32 v{vT + 1}, v{z}, v{g}, s{sK} op_sel:[1,0,0] op_sel_hi:[1,1,0]
            v_fma_mix_f32 v{vT + 2}, v{z + 1}, v{g}, s{sK} op_sel_hi:[1,1,0]
            v_fma_mix_f32 v{vT + 3}, v{z + 1}, v{g}, s{sK} op_sel:[1,0,0] op_sel_hi:[1,1,0]
            v_and_b32 v{g}, 0xfffff, v{aa}
            v_lshl_add_u32 v{z}, v{vT + 1}, 13, v{vT}
            v_mul_hi_u32_u24 v{g}, s{sCB}, v{g}
            v_lshl_add_u32 v{z + 1}, v{vT + 3}, 13, v{vT + 2}
            v_lshrrev_b32 v{vT}, 6, v{aa}
            v_lshl_add_u32 v{z}, v{aa}, 26, v{z}
            v_and_b32 v{aa}, 0x3fc, v{g}
            v_lshl_add_u32 v{z + 1}, v{vT}, 26, v{z + 1}
            ds_add_rtn_u32 v{g}, v{aa}, v{vEIGHT} offset:{HOFF}
            """)

    def phase_h(st):
        b0, b1, b2, b3 = range(0, 5), range(5, 9), range(9, 13), range(13, 15)
        regs = [vSTG, vSTG + 4, vSTG + 8]
        lab = a.uid("h3")
        copy_reads([0, 1, 2], regs, sCM)
        a(f"s_waitcnt vmcnt({2 * NS})")
        gathers(st, b0)
        gathers(st, b1)
        a("s_waitcnt lgkmcnt(4)")
        copy_stores([0, 1, 2], regs, sCM)
        copy_reads([3, 4, 5], regs, sCM)
        encode(st, b0)
        gathers(st, b2)
        a("s_waitcnt lgkmcnt(9)")
        copy_stores([3, 4, 5], regs, sCM)
        copy_reads([6, 7], regs, sCM)
        encode(st, b1)
        a("s_waitcnt lgkmcnt(4)")
        copy_stores([6, 7], regs, sCM)
        encode(st, b2)
        a(f"""
        s_cmp_eq_u32 s{sW[st] + 13}, 0
        s_cbranch_scc1 {lab}
        """)
        gathers(st, b3)
        a("s_waitcnt lgkmcnt(0)")
        encode(st, b3)
        a(f"""
        {lab}:
        s_mov_b64 exec, -1
        s_waitcnt lgkmcnt(0)
        s_barrier
        """)

    c, z4, b4, x = vSTG, vSTG + 4, vSTG + 8, vT

    def phase_p():
        lab = a.uid("p")
        a(f"""
        s_cmp_lg_u32 s{sWAVE}, 0
        s_cbranch_scc1 {lab}
        ds_read_b128 {vr(c, 4)}, v{vX4} offset:{HOFF}
        v_mov_b32 v{z4}, 0
        v_mov_b32 v{z4 + 1}, 0
        v_mov_b32 v{z4 + 2}, 0
        v_mov_b32 v{z4 + 3}, 0
        s_waitcnt lgkmcnt(0)
        """)
        prefix_core(a, c, z4, b4, x, vX4, HOFF, POFF)
        a(f"""
        s_lshl_b64 exec, 1, 63
        ds_write_b32 v{vZERO}, v{x} offset:{MISC + 16}
        s_mov_b64 exec, -1
        s_waitcnt lgkmcnt(0)
        {lab}:
        s_barrier
        """)

    def offsets_store():
        lab, ovf, back = a.uid("os"), a.uid("ovf"), a.uid("ovfback")
        a(f"""
        s_cmp_lg_u32 s{sWAVE}, 0
        s_cbranch_scc1 {lab}
        s_mov_b64 exec, -1
        s_lshl_b32 s{sQ}, s{sKT}, 8
        s_add_u32 s{sQ}, s{sQ}, s{sB}
        s_cmp_ge_u32 s{sKT}, {FIX}
        s_cbranch_scc1 {ovf}
        {back}:
        s_lshl_b32 s{sQ}, s{sQ}, 2
        s_add_u32 s{sT}, s{sQ}, {OFF2}
        """)
        for j in range(4):
            a(f"v_lshrrev_b32 v{b4 + j}, 3, v{b4 + j}")
        for j in range(4):
            a(f"v_lshl_or_b32 v{c + j}, v{c + j}, 13, v{b4 + j}")
        for j in range(4):
            a(f"buffer_store_dword v{c + j}, v{vROW}, {sr(sWS, 4)}, s{sT} offen")
            if j < 3:
                a(f"s_add_u32 s{sT}, s{sT}, {ROW2}")
        a(f"""
        v_mov_b32 v{z4}, s{sBASE}
        s_add_u32 s{sT}, s{sQ}, {DIR2}
        s_mov_b64 exec, 1
        buffer_store_dword v{z4}, v{vZERO}, {sr(sWS, 4)}, s{sT} offen
        {lab}:
        """)
        a.begin_tail()
        a(f"""
        {ovf}:
        s_mov_b64 exec, 1
        v_mov_b32 v{z4}, 1
        s_mov_b32 s{sT}, {CNT}
        buffer_atomic_add v{z4}, v{vZERO}, {sr(sWS, 4)}, s{sT} offen sc0
        s_waitcnt vmcnt(0)
        v_readfirstlane_b32 s{sQ}, v{z4}
        s_mov_b64 exec, -1
        s_nop 3
        s_add_u32 s{sQ}, s{sQ}, {FIX * NB}
        s_branch {back}
        """)
        a.end_tail()

    def phase_s(st):
        l1 = a.uid("sa")
        a(f"ds_read_b32 v{vT}, v{vZERO} offset:{MISC + 16}")
        for s in range(NS):
            if s == 13:
                a(f"""
                s_cmp_eq_u32 s{sW[st] + s}, 0
                s_cbranch_scc1 {l1}
                """)
            a(f"""
            s_bfm_b64 exec, s{sW[st] + s}, 0
            ds_read_b32 v{A(st, s)}, v{A(st, s)} offset:{POFF}
            """)
        a(f"{l1}:")
        offsets_store()
        a(f"""
        s_mov_b64 exec, -1
        s_waitcnt lgkmcnt(0)
        v_readfirstlane_b32 s{sNPREV}, v{vT}
        s_lshl_b32 s{sBPREV}, s{sBASE}, 3
        s_add_u32 s{sBPREV}, s{sBPREV}, {R2}
        """)
        for s in range(NS):
            a(f"""
            s_bfm_b64 exec, s{sW[st] + s}, 0
            v_add_u32 v{A(st, s)}, v{A(st, s)}, v{G(st, s)}
            ds_write_b64 v{A(st, s)}, {vr(Z(s), 2)} offset:{SORT}
            """)
            pop(st, s)
        a(f"""
        s_lshr_b32 s{sNPREV}, s{sNPREV}, 3
        s_add_u32 s{sNPREV}, s{sNPREV}, 15
        s_and_b32 s{sNPREV}, s{sNPREV}, -16
        s_add_u32 s{sBASE}, s{sBASE}, s{sNPREV}
        s_waitcnt lgkmcnt(0)
        s_barrier
        """)

    a("L_k2_loop:")
    for st in range(2):
        stamp(a, 4, sKT)
        phase_h(st)
        stamp(a, 5, sKT)
        phase_p()
        stamp(a, 6, sKT)
        phase_s(st)
        a(f"""
        s_add_u32 s{sKT}, s{sKT}, 1
        s_cmp_ge_u32 s{sKT}, s{sNT}
        """)
        a("s_cbranch_scc1 L_k2_final" if st == 0 else "s_cbranch_scc0 L_k2_loop")
    a("L_k2_final:")
    stamp(a, 1)
    regs = [vSTG, vSTG + 4, vSTG + 8] + [vZ + 4 * i for i in range(5)]
    masks = [32 + 2 * i for i in range(8)]
    copy_reads(list(range(8)), regs, masks)
    a("s_waitcnt lgkmcnt(0)")
    copy_stores(list(range(8)), regs, masks)
    stamp_flush(a, 1, sWS, sWAVE)
    a("""
    L_k2_end:
    s_endpgm
    """)
    a.flush_tail()
    return name, nv, 80, LDS


def k3(a):
    name = "accum_out_kernel"
    kernel_header(a, name)
    D = int(OPT["d3"])
    ACC, MISC = 0, 1024
    LDS = 131072
    sWAVE, sB = 3, 4
    sWS, sM, sDI, sOUT = 8, 12, 16, 20
    sMASK, sT, sU, sL, sLIVE, sR2 = 24, 26, 27, 28, 29, 30
    sNE, sQB, sPASS, sBAS, sUNIT, sDONE = 31, 32, 33, 34, 35, 5
    sC, sP, sSEL = 36, 38, 6
    sW = 40
    sWD, sWU, sC8, sWX = 56, 64, 72, 76
    vLANE, vZERO, vIDX, vLEN, vIDX2, vLEN2, vW, vQ2 = 1, 2, 3, 4, 5, 6, 7, 8
    vT = 10
    vZ = 20
    vM = vZ + 2 * D
    vS = vM + 8
    vRR = vS + 16
    vFA = vRR + 16
    vDI = vFA + 16
    vE8 = vDI + 4
    vRB = vE8 + 4
    nrb = 2
    nv = vRB + 8 * nrb
    Z = lambda i: vZ + 2 * i
    EPOCH = 512 // D

    a(f"""
    s_cmp_ge_u32 s2, {NB}
    s_cbranch_scc1 L_k3_end
    s_load_dwordx2 s[6:7], s[0:1], 104
    s_load_dwordx2 s[36:37], s[0:1], 0
    s_load_dwordx2 s[38:39], s[0:1], 24
    s_load_dwordx2 s[40:41], s[0:1], 88
    s_load_dwordx2 s[42:43], s[0:1], 40
    s_load_dwordx8 s[44:51], s[0:1], 56
    v_lshrrev_b32 v{vT}, 6, v0
    v_and_b32 v{vLANE}, 63, v0
    v_readfirstlane_b32 s{sWAVE}, v{vT}
    s_and_b32 s{sB}, s2, 7
    s_lshl_b32 s{sB}, s{sB}, 5
    s_lshr_b32 s{sT}, s2, 3
    s_add_u32 s{sB}, s{sB}, s{sT}
    v_mov_b32 v{vZERO}, 0
    v_and_b32 v{vQ2}, 15, v0
    v_lshl_add_u32 v{vQ2}, v{vT}, 4, v{vQ2}
    v_bfe_u32 v{vT + 1}, v0, 4, 2
    v_lshl_add_u32 v{vQ2}, v{vT + 1}, 8, v{vQ2}
    v_add_u32 v{vQ2}, 0x400, v{vQ2}
    s_mov_b32 s{sR2}, {R2}
    s_mov_b32 s{sQB}, 0
    s_waitcnt lgkmcnt(0)
    """)
    stamp(a, 0)
    srd(a, sWS, 6, WS_BYTES)

    def desc_loads():
        a(f"""
        v_add_lshl_u32 v{vT}, s{sQB}, v0, 2
        v_add_lshl_u32 v{vT + 1}, s{sQB}, v{vQ2}, 2
        s_mul_i32 s{sT}, s{sB}, {ROW2}
        s_add_u32 s{sT}, s{sT}, {OFF2}
        s_mov_b32 s{sU}, {DIR2}
        buffer_load_dword v{vLEN}, v{vT}, {sr(sWS, 4)}, s{sT} offen
        buffer_load_dword v{vIDX}, v{vT}, {sr(sWS, 4)}, s{sU} offen
        buffer_load_dword v{vLEN2}, v{vT + 1}, {sr(sWS, 4)}, s{sT} offen
        buffer_load_dword v{vIDX2}, v{vT + 1}, {sr(sWS, 4)}, s{sU} offen
        """)

    def desc_build():
        a(f"""
        v_add_u32 v{vT}, s{sQB}, v0
        v_add_u32 v{vT + 1}, s{sQB}, v{vQ2}
        v_cmp_gt_u32 vcc, s{sNE}, v{vT}
        v_cmp_gt_u32 {sr(sMASK, 2)}, s{sNE}, v{vT + 1}
        s_mov_b32 s{sDONE}, 0
        s_nop 0
        v_cndmask_b32 v{vLEN}, 0, v{vLEN}, vcc
        v_cndmask_b32 v{vLEN2}, 0, v{vLEN2}, {sr(sMASK, 2)}
        v_and_b32 v{vT}, 0xffff, v{vLEN}
        v_and_b32 v{vT + 1}, 0xffff, v{vLEN2}
        v_lshrrev_b32 v{vLEN}, 16, v{vLEN}
        v_lshrrev_b32 v{vLEN2}, 16, v{vLEN2}
        v_add_u32 v{vIDX}, v{vIDX}, v{vT}
        v_add_u32 v{vIDX2}, v{vIDX2}, v{vT + 1}
        v_min_u32 v{vT}, {SEG}, v{vLEN}
        v_cmp_lt_u32 {sr(sMASK, 2)}, 0, v{vLEN}
        v_lshl_or_b32 v{vW}, v{vIDX}, 6, v{vT}
        s_nop 3
        """)

    def pop(i):
        back, stub, empty, issue = a.uid("pb"), a.uid("pr"), a.uid("pe"), a.uid("pi")
        a(f"""
        s_cmp_eq_u64 {sr(sMASK, 2)}, 0
        s_cbranch_scc1 {stub}
        {back}:
        s_ff1_i32_b64 s{sL}, {sr(sMASK, 2)}
        s_bitset0_b64 {sr(sMASK, 2)}, s{sL}
        v_readlane_b32 s{sW + i}, v{vW}, s{sL}
        s_lshr_b32 s{sT}, s{sW + i}, 6
        s_bfm_b64 exec, s{sW + i}, 0
        v_add_lshl_u32 v{Z(i)}, s{sT}, v{vLANE}, 3
        {issue}:
        buffer_load_dwordx2 {vr(Z(i), 2)}, v{Z(i)}, {sr(sWS, 4)}, s{sR2} offen {OPT['ld2']}
        """)
        a.begin_tail()
        a(f"""
        {stub}:
        s_cmp_lg_u32 s{sDONE}, 0
        s_cbranch_scc1 {empty}
        """)
        refill_code(a, vIDX, vLEN, vW, vT + 8, sMASK, pend=((vIDX, vLEN), (vIDX2, vLEN2)))
        a(f"""
        s_cmp_eq_u64 {sr(sMASK, 2)}, 0
        s_cbranch_scc0 {back}
        s_mov_b32 s{sDONE}, 1
        {empty}:
        s_mov_b32 s{sW + i}, 0
        s_mov_b64 exec, 0
        s_branch {issue}
        """)
        a.end_tail()

    def process(i):
        z, t = Z(i), vT
        a(f"""
        s_bfm_b64 exec, s{sW + i}, 0
        v_perm_b32 v{t + 4}, v{z + 1}, v{z}, s{sSEL}
        v_and_b32 v{t}, 0x1fff, v{z}
        v_bfe_u32 v{t + 1}, v{z}, 13, 13
        v_and_b32 v{t + 4}, 0xfcfc, v{t + 4}
        v_and_b32 v{t + 2}, 0x1fff, v{z + 1}
        v_bfe_u32 v{t + 3}, v{z + 1}, 13, 13
        v_add_u32 v{t + 4}, v{t + 4}, v{t + 4}
        v_lshl_add_u64 {vr(t, 2)}, {vr(t, 2)}, 0, {sr(sC, 2)}
        v_lshl_add_u64 {vr(t + 2, 2)}, {vr(t + 2, 2)}, 0, {sr(sC, 2)}
        ds_add_u64 v{t + 4}, {vr(t, 2)} offset:{ACC}
        ds_add_u64 v{t + 4}, {vr(t + 2, 2)} offset:{ACC + 512}
        """)

    def zero_acc():
        a(f"""
        v_mov_b32 v{vT}, 0
        v_mov_b32 v{vT + 1}, 0
        v_mov_b32 v{vT + 2}, 0
        v_mov_b32 v{vT + 3}, 0
        v_lshlrev_b32 v{vT + 4}, 4, v{vLANE}
        s_lshl_b32 s{sT}, s{sWAVE}, 11
        v_add_u32 v{vT + 4}, s{sT}, v{vT + 4}
        v_add_u32 v{vT + 5}, 0x10000, v{vT + 4}
        ds_write_b128 v{vT + 4}, {vr(vT, 4)} offset:{ACC}
        ds_write_b128 v{vT + 4}, {vr(vT, 4)} offset:{ACC + 32768}
        ds_write_b128 v{vT + 5}, {vr(vT, 4)} offset:{ACC}
        ds_write_b128 v{vT + 5}, {vr(vT, 4)} offset:{ACC + 32768}
        ds_write_b32 v{vZERO}, v{vZERO} offset:{MISC}
        """)

    desc_loads()
    srd(a, sM, 36, E * 8)
    srd(a, sDI, 38, E * 2)
    srd(a, sOUT, 40, E * 8)
    a(f"""
    s_add_u32 s6, s6, {CNT}
    s_addc_u32 s7, s7, 0
    s_load_dword s{sNE}, s[6:7], 0
    s_load_dwordx8 {sr(sWD, 8)}, s[48:49], 0
    s_load_dwordx8 {sr(sWU, 8)}, s[50:51], 0
    s_load_dwordx4 {sr(sC8, 4)}, s[42:43], 0
    s_mov_b64 s[92:93], s[44:45]
    s_mov_b64 s[94:95], s[46:47]
    """)
    for i in range(D):
        a(f"v_mov_b32 v{Z(i)}, 0")
    for i in range(16):
        a(f"v_mov_b32 v{vFA + i}, 0")
    zero_acc()
    a(f"""
    s_mul_i32 s{sT}, s{sB}, {SPAN}
    v_mov_b32 v{vT + 8}, 0x8000000
    v_add_u32 v{vE8}, s{sT}, v0
    v_add_u32 v{vE8 + 1}, 0x400, v{vE8}
    v_add_u32 v{vE8 + 2}, 0x800, v{vE8}
    v_add_u32 v{vE8 + 3}, 0xc00, v{vE8}
    v_cmp_gt_u32 vcc, {SPAN - 3072}, v0
    s_mov_b32 s{sC}, 0xfffff000
    s_mov_b32 s{sC + 1}, 0xffffefff
    v_cndmask_b32 v{vE8 + 3}, v{vT + 8}, v{vE8 + 3}, vcc
    s_lshr_b32 s{sBAS}, s{sWAVE}, 2
    s_lshl_b32 s{sBAS}, s{sBAS}, 1
    s_add_u32 s{sBAS}, s{sBAS}, 1
    s_mov_b32 s{sPASS}, 0
    s_waitcnt lgkmcnt(0)
    s_mov_b32 s{sSEL}, 0x0c0c0703
    s_add_u32 s{sNE}, s{sNE}, {FIX * NB}
    s_waitcnt vmcnt(0)
    """)
    stamp(a, 4)
    desc_build()
    for i in range(D):
        pop(i)
    a(f"""
    s_mov_b64 exec, -1
    v_lshlrev_b32 v{vT + 8}, 4, v{vLANE}
    s_mov_b32 s{sT}, {MAXS}
    buffer_load_dwordx4 {vr(vS, 4)}, v{vT + 8}, {sr(sWS, 4)}, s{sT} offen
    """)
    for r in range(4):
        a(f"v_lshlrev_b32 v{vDI + r}, 1, v{vE8 + r}")
    for r in range(4):
        a(f"buffer_load_ushort v{vDI + r}, v{vDI + r}, {sr(sDI, 4)}, 0 offen")
    for r in range(4):
        a(f"v_lshlrev_b32 v{vE8 + r}, 3, v{vE8 + r}")
    for r in range(4):
        a(f"buffer_load_dwordx2 {vr(vM + 2 * r, 2)}, v{vE8 + r}, {sr(sM, 4)}, 0 offen {OPT['ld_m']}")
    a("s_barrier")
    stamp(a, 7)
    for i in range(D):
        a(f"s_waitcnt vmcnt({D - 1 + 9})")
        process(i)
        pop(i)
    a(f"""
    L_k3_loop:
    s_add_u32 s{sPASS}, s{sPASS}, 1
    s_cmp_eq_u32 s{sPASS}, s{sBAS}
    s_cbranch_scc1 L_k3_basis
    L_k3_basisback:
    s_cmp_eq_u32 s{sW}, 0
    s_cbranch_scc1 L_k3_drained
    s_cmp_ge_u32 s{sPASS}, {EPOCH}
    s_cbranch_scc1 L_k3_full
    L_k3_pass:
    """)
    for i in range(D):
        a(f"s_waitcnt vmcnt({D - 1})")
        process(i)
        pop(i)
    a(f"""
    s_branch L_k3_loop
    L_k3_drained:
    s_mov_b64 exec, -1
    s_add_u32 s{sQB}, s{sQB}, 2048
    s_cmp_lt_u32 s{sQB}, s{sNE}
    s_cbranch_scc1 L_k3_next
    s_sub_u32 s{sQB}, s{sQB}, 2048
    s_cmp_lt_u32 s{sPASS}, s{sBAS}
    s_cbranch_scc0 L_k3_join
    s_mov_b32 s{sBAS}, s{sPASS}
    s_branch L_k3_basis
    L_k3_join:
    """)
    stamp(a, 8)
    a(f"""
    s_waitcnt lgkmcnt(0)
    s_barrier
    """)
    stamp(a, 9)

    a.begin_tail()
    a("L_k3_next:")
    desc_loads()
    a("s_waitcnt vmcnt(0)")
    desc_build()
    a(f"""
    s_branch L_k3_prime
    L_k3_full:
    s_mov_b64 exec, -1
    v_mov_b32 v{vT}, 1
    ds_write_b32 v{vZERO}, v{vT} offset:{MISC}
    s_branch L_k3_join
    """)
    a.end_tail()

    def fold(rs):
        for r in rs:
            t = vRB + 4 * r
            a(f"""
            v_lshrrev_b32 v{vT}, 3, v{vE8 + r}
            v_add_u32 v{vT + 1}, {TOPK}, v{vT}
            v_add_u32 v{vT}, {TOPK << 6}, v{vT}
            v_and_b32 v{vT + 1}, 63, v{vT + 1}
            v_and_b32 v{vT}, 0xfc0, v{vT}
            v_lshl_or_b32 v{vT}, v{vT}, 2, v{vT + 1}
            v_lshlrev_b32 v{vT}, 3, v{vT}
            ds_read_b64 {vr(t, 2)}, v{vT} offset:{ACC}
            ds_read_b64 {vr(t + 2, 2)}, v{vT} offset:{ACC + 512}
            """)
        a(f"""
        ds_read_b32 v{vT + 4}, v{vZERO} offset:{MISC}
        s_waitcnt lgkmcnt(0)
        v_readfirstlane_b32 s{sLIVE}, v{vT + 4}
        """)
        for r in rs:
            t = vRB + 4 * r
            a(f"""
            v_lshrrev_b32 v{vT}, 31, v{t}
            v_lshrrev_b32 v{vT + 1}, 31, v{t + 2}
            v_add_u32 v{t + 1}, v{t + 1}, v{vT}
            v_add_u32 v{t + 3}, v{t + 3}, v{vT + 1}
            """)
            for j in range(4):
                a(f"v_cvt_f32_i32 v{t + j}, v{t + j}")
            for j in range(4):
                a(f"v_add_f32 v{vFA + 4 * r + j}, v{vFA + 4 * r + j}, v{t + j}")

    def wpair(sw):
        a(f"""
        s_lshl_b32 s{sP}, s{sw}, 16
        s_and_b32 s{sP + 1}, s{sw}, 0xffff0000
        """)

    def pkmac(first, dst, src):
        base, hi = src & ~1, src & 1
        if first:
            a(f"v_pk_mul_f32 {vr(dst, 2)}, {vr(base, 2)}, {sr(sP, 2)} op_sel:[{hi},0] op_sel_hi:[{hi},1]")
        else:
            a(f"v_pk_fma_f32 {vr(dst, 2)}, {vr(base, 2)}, {sr(sP, 2)}, {vr(dst, 2)} op_sel:[{hi},0,0] op_sel_hi:[{hi},1,1]")

    def epilogue(rs):
        for k in range(4):
            for jp in range(2):
                wpair(sWD + 2 * k + jp)
                for r in rs:
                    pkmac(k == 0, vRB + 4 * r + 2 * jp, vFA + 4 * r + k)
        for r in rs:
            for j in range(4):
                a(f"v_mul_f32 v{vRB + 4 * r + j}, v{vRB + 4 * r + j}, v{vS + 4 * r + j}")
        for k in range(4):
            for jp in range(2):
                wpair(sWU + 2 * k + jp)
                for r in rs:
                    pkmac(k == 0, vFA + 4 * r + 2 * jp, vRB + 4 * r + k)
        for r in rs:
            t, m = vRB + 4 * r, vM + 2 * r
            a(f"""
            v_lshlrev_b32 v{t}, 16, v{m}
            v_and_b32 v{t + 1}, 0xffff0000, v{m}
            v_lshlrev_b32 v{t + 2}, 16, v{m + 1}
            v_and_b32 v{t + 3}, 0xffff0000, v{m + 1}
            """)
            for j in range(4):
                a(f"v_fmac_f32 v{t + j}, v{vFA + 4 * r + j}, v{vRR + 4 * r + j}")
            a(f"""
            v_cvt_pk_bf16_f32 v{t}, v{t}, v{t + 1}
            v_cvt_pk_bf16_f32 v{t + 1}, v{t + 2}, v{t + 3}
            buffer_store_dwordx2 {vr(t, 2)}, v{vE8 + r}, {sr(sOUT, 4)}, 0 offen {OPT['st_out']}
            """)

    a(f"""
    s_cmp_eq_u32 s{sWAVE}, 0
    s_cbranch_scc1 L_k3_epi4
    """)
    for rs, pre in (([0, 1, 2], ""), ([0, 1, 2, 3], "L_k3_epi4:")):
        if pre:
            a(pre)
        fold(rs)
        a(f"""
        s_cmp_lg_u32 s{sLIVE}, 0
        s_cbranch_scc1 L_k3_again
        """)
        epilogue(rs)
        stamp_flush(a, 2, sWS, sWAVE)
        a("s_endpgm")
    a(f"""
    L_k3_again:
    s_barrier
    """)
    zero_acc()
    a(f"""
    s_mov_b32 s{sPASS}, s{sBAS}
    s_waitcnt lgkmcnt(0)
    s_barrier
    s_branch L_k3_basisback
    L_k3_prime:
    """)
    for i in range(D):
        pop(i)
    a("s_branch L_k3_basisback")

    def basis(rs):
        x = lambda n, kp: vRB + 8 * n + 2 * kp
        for n, r in enumerate(rs):
            a(f"v_lshlrev_b32 v{vDI + r}, 16, v{vDI + r}")
        for kp in range(4):
            wpair(sC8 + kp)

            def rnd():
                for n in range(len(rs)):
                    a(f"v_cvt_pk_bf16_f32 v{x(n, kp)}, v{x(n, kp)}, v{x(n, kp) + 1}")
                for n in range(len(rs)):
                    a(f"v_and_b32 v{x(n, kp) + 1}, 0xffff0000, v{x(n, kp)}")
                for n in range(len(rs)):
                    a(f"v_lshlrev_b32 v{x(n, kp)}, 16, v{x(n, kp)}")

            def each(op):
                for n in range(len(rs)):
                    for h in range(2):
                        a(op.format(v=f"v{x(n, kp) + h}"))
            for n, r in enumerate(rs):
                d = vDI + r
                hi = d & 1
                a(f"v_pk_add_f32 {vr(x(n, kp), 2)}, {vr(d & ~1, 2)}, {sr(sP, 2)} op_sel:[{hi},0] op_sel_hi:[{hi},1] neg_lo:[0,1] neg_hi:[0,1]")
            rnd()
            each("v_mul_f32 {v}, {v}, {v}")
            rnd()
            each("v_mul_f32 {v}, 0xc1200000, {v}")
            rnd()
            each("v_mul_f32 {v}, 0x3fb8aa3b, {v}")
            each("v_exp_f32 {v}, {v}")
            a("s_nop 0")
            rnd()
        for dst, ptr in ((vS, 94), (vRR, 92)):
            a(f"""
            s_load_dwordx16 {sr(sWX, 16)}, s[{ptr}:{ptr + 1}], 0
            s_waitcnt lgkmcnt(0)
            """)
            for k in range(8):
                for jp in range(2):
                    wpair(sWX + 2 * k + jp)
                    for n, r in enumerate(rs):
                        pkmac(k == 0, dst + 4 * r + 2 * jp, vRB + 8 * n + k)
        for r in rs:
            for j in range(4):
                a(f"v_mul_f32 v{vS + 4 * r + j}, v{vT + 9}, v{vS + 4 * r + j}")
            for jp in range(2):
                y = vRR + 4 * r + 2 * jp
                a(f"""
                v_cvt_pk_bf16_f32 v{y}, v{y}, v{y + 1}
                v_and_b32 v{y + 1}, 0xffff0000, v{y}
                v_lshlrev_b32 v{y}, 16, v{y}
                """)

    a(f"""
    L_k3_basis:
    s_mov_b64 exec, -1
    s_waitcnt vmcnt({D})
    """)
    stamp(a, 5)
    global_max(a, vS, sUNIT)
    a(f"""
    v_mov_b32 v{vT + 9}, s{sUNIT}
    v_mul_f32 v{vT + 9}, 0x39808081, v{vT + 9}
    """)
    basis([0, 1])
    a(f"""
    s_cmp_eq_u32 s{sWAVE}, 0
    s_cbranch_scc1 L_k3_basis23
    """)
    basis([2])
    stamp(a, 6)
    a("""
    s_branch L_k3_basisback
    L_k3_basis23:
    """)
    basis([2, 3])
    stamp(a, 6)
    a("""
    s_branch L_k3_basisback
    L_k3_end:
    s_endpgm
    """)
    a.flush_tail()
    return name, nv, 96, LDS


HEADER = """; Three launches: partition by idx_in, gather + partition by idx_out, accumulate + epilogue.
"""


def build():
    a = Asm()
    ks = [k1(a), k2(a), k3(a)]
    out = HEADER
    for name, nv, ns, lds in ks:
        out += f"; @launch kernel={name} grid=({NB},1,1) block=(1024,1,1) lds={lds}\n"
    out += '.amdgcn_target "amdgcn-amd-amdhsa--gfx950"\n.text\n'
    out += a.text()
    out += '.section .rodata,"a"\n'
    for name, nv, ns, lds in ks:
        assert nv <= (127 if OPT["prof"] else 128), (name, nv)
        out += kernel_desc(name, 128 if OPT["prof"] else nv, 102 if OPT["prof"] else ns)
    return out


if __name__ == "__main__":
    path = sys.argv[1]
    for kv in sys.argv[2:]:
        k, v = kv.split("=")
        OPT[k] = v.replace("+", " ")
    open(path, "w").write(build())
```

```python
import sys
from asmlib import Asm, vr, sr, srd, wave_scan, kernel_header, kernel_desc

E = 800000
T = 12800000
NB = 256
SPAN = 3125
CB4 = 4 * 1374390
N1 = 12800
NT1 = T // N1

R1A = 0
R1B = 51200000
ROW1 = 4096 + 128
OFF1 = 76800000
CNT = 77900032
MAXS = CNT + 1024
DIR2 = MAXS + 1024
ROW2 = 65536 + 128
OFF2 = DIR2 + 65536
R2 = 94781440
WS_BYTES = 268435456
assert OFF1 + NB * ROW1 <= CNT and OFF2 + NB * ROW2 <= R2 and R2 % 128 == 0 and OFF2 % 128 == 0
assert R2 + (1 << 27) <= 240000000
PAD2 = 14336
FIX = 5
NS = 15
SEG = 63
MAGIC = 0x4C001000
TOPK = 0x13
QMAX = 4080
MAXFLOOR = 0x0880

OPT = dict(ld_in="nt", st1="sc1", ld1="", st2="sc1", ld2="", ld_m="", st_out="", prof="", d3="8", k1early="1", k2early="1", greedy="1", prio3="1", late3="1")
PROF = 240000000
VPROF = 127


def stamp(a, i, dyn=None):
    if not OPT["prof"]:
        return
    a("""
    s_memrealtime s[98:99]
    s_waitcnt lgkmcnt(0)
    """)
    if dyn is None:
        a(f"v_writelane_b32 v{VPROF}, s98, {i}")
    else:
        a(f"""
        s_lshl_b32 s99, s{dyn}, 2
        s_add_u32 m0, s99, {i}
        s_nop 0
        v_writelane_b32 v{VPROF}, s98, m0
        """)


def stamp_flush(a, kidx, sWS, sWAVE):
    if not OPT["prof"]:
        return
    stamp(a, 2)
    a("s_waitcnt vmcnt(0)")
    stamp(a, 3)
    lab = a.uid("pf")
    a(f"""
    s_mov_b64 exec, -1
    s_and_b32 s98, s{sWAVE}, 7
    s_cmp_lg_u32 s98, 0
    s_cbranch_scc1 {lab}
    s_lshr_b32 s98, s{sWAVE}, 3
    s_lshl_b32 s99, s2, 1
    s_add_u32 s98, s98, s99
    s_lshl_b32 s98, s98, 8
    s_add_u32 s98, s98, {PROF + kidx * 512 * 256}
    v_and_b32 v0, 63, v0
    v_lshlrev_b32 v0, 2, v0
    buffer_store_dword v{VPROF}, v0, s[{sWS}:{sWS + 3}], s98 offen
    {lab}:
    """)


def slice_loads(a, sM, sROW, sT, vX4, vTMP, dst):
    a(f"""
    s_and_b32 s{sT}, s{sROW}, -2
    s_lshl_b32 s{sT}, s{sT}, 3
    v_mov_b32 v{vTMP}, 0x40000000
    v_cmp_gt_u32 vcc, {(SPAN + 1) // 2 - 1024}, v0
    buffer_load_dwordx4 {vr(dst, 4)}, v{vX4}, {sr(sM, 4)}, s{sT} offen {OPT['ld_m']}
    s_add_u32 s{sT}, s{sT}, 16384
    v_cndmask_b32 v{vTMP}, v{vTMP}, v{vX4}, vcc
    buffer_load_dwordx4 {vr(dst + 4, 4)}, v{vTMP}, {sr(sM, 4)}, s{sT} offen {OPT['ld_m']}
    """)


def prefix_core(a, c, z, b, x, vX4, HOFF, POFF):
    a(f"""
    ds_write_b128 v{vX4}, {vr(z, 4)} offset:{HOFF}
    v_add_u32 v{b + 2}, v{c}, v{c + 1}
    v_add_u32 v{b + 3}, v{b + 2}, v{c + 2}
    v_add_u32 v{x + 1}, v{b + 3}, v{c + 3}
    v_mov_b32 v{x}, v{x + 1}
    """)
    wave_scan(a, "v_add_u32", x)
    a(f"""
    v_sub_u32 v{b}, v{x}, v{x + 1}
    v_add_u32 v{b + 1}, v{b}, v{c}
    v_add_u32 v{b + 2}, v{b}, v{b + 2}
    v_add_u32 v{b + 3}, v{b}, v{b + 3}
    ds_write_b128 v{vX4}, {vr(b, 4)} offset:{POFF}
    """)


def global_max(a, v4, sDST):
    a(f"""
    v_max3_u32 v{v4}, v{v4}, v{v4 + 1}, v{v4 + 2}
    v_max_u32 v{v4}, v{v4}, v{v4 + 3}
    """)
    wave_scan(a, "v_max_u32", v4)
    a(f"""
    s_nop 0
    v_readlane_b32 s{sDST}, v{v4}, 63
    s_nop 3
    s_max_u32 s{sDST}, s{sDST}, {MAXFLOOR}
    s_lshl_b32 s{sDST}, s{sDST}, 16
    """)


def k1(a):
    name = "part_in_kernel"
    kernel_header(a, name)
    HOFF, POFF, MISC, BUF = 0, 1024, 2048, 2176
    BUFB = BUF + N1 * 4
    sIN, sOUT, sANG, sWS, sM = 12, 16, 20, 24, 40
    sWAVE, sCB, sT, sA, sB, sU, sPOS = 3, 28, 29, 30, 31, 36, 37
    sTI = [32, 33, 34, 35]
    vX4, vX4b, vX2, vTI, vTA, vFOUR, vF = 1, 2, 3, 4, 5, 6, 7
    sets = []
    base = 8
    for s in range(2):
        sets.append(dict(i=base, o=base + 14, g=base + 28))
        base += 36
    vRANK = base
    vROW = vRANK + 13
    vSTG = vRANK + 14
    vC = vSTG + 20
    nv = vC + 4
    ld = OPT["ld_in"]
    a(f"""
    s_cmp_ge_u32 s2, {NB}
    s_cbranch_scc1 L_k1_end
    s_load_dwordx4 s[4:7], s[0:1], 8
    s_load_dwordx2 s[8:9], s[0:1], 32
    s_load_dwordx2 s[10:11], s[0:1], 104
    s_load_dwordx2 s[38:39], s[0:1], 0
    s_load_dwordx2 s[44:45], s[0:1], 48
    v_lshrrev_b32 v{vFOUR}, 6, v0
    v_lshlrev_b32 v{vX4}, 4, v0
    v_readfirstlane_b32 s{sWAVE}, v{vFOUR}
    v_add_u32 v{vX4b}, 0x10000, v{vX4}
    v_lshlrev_b32 v{vX2}, 3, v0
    v_lshlrev_b32 v{vTI}, 2, v0
    v_lshlrev_b32 v{vTA}, 1, v0
    v_mov_b32 v{vFOUR}, 0x40000000
    v_cmp_gt_u32 vcc, 0x200, v0
    v_mov_b32 v{vSTG}, 0
    s_mov_b32 s{sCB}, {CB4}
    v_cndmask_b32 v{vTI}, v{vFOUR}, v{vTI}, vcc
    v_cndmask_b32 v{vTA}, v{vFOUR}, v{vTA}, vcc
    v_mov_b32 v{vFOUR}, 4
    v_mul_u32_u24 v{vROW}, {4 * ROW1}, v0
    s_mov_b32 s{sTI[0]}, s2
    s_add_u32 s{sTI[1]}, s2, 256
    s_add_u32 s{sTI[2]}, s2, 512
    s_add_u32 s{sTI[3]}, s2, 768
    s_and_b32 s{sPOS}, s2, 7
    s_lshl_b32 s{sPOS}, s{sPOS}, 7
    s_lshr_b32 s{sT}, s2, 3
    s_add_u32 s{sPOS}, s{sPOS}, s{sT}
    s_cmp_eq_u32 s{sT}, 31
    s_cselect_b32 s{sT}, 32, 0
    s_add_u32 s{sPOS}, s{sPOS}, s{sT}
    s_lshl_b32 s{sPOS}, s{sPOS}, 2
    s_add_u32 s{sPOS}, s{sPOS}, {OFF1}
    s_waitcnt lgkmcnt(0)
    s_load_dword s46, s[44:45], 0
    """)
    stamp(a, 0)
    srd(a, sIN, 4, T * 4)
    srd(a, sOUT, 6, T * 4)
    srd(a, sANG, 8, T * 2)
    srd(a, sWS, 10, WS_BYTES)
    srd(a, sM, 38, E * 8)

    def load_group(k, g):
        st = sets[k % 2]
        if g == 0:
            a(f"""
            s_mul_i32 s{sA}, s{sTI[k]}, {N1 * 4}
            s_mul_i32 s{sB}, s{sTI[k]}, {N1 * 2}
            """)
        if g < 3:
            a(f"""
            buffer_load_dwordx4 {vr(st['i'] + 4 * g, 4)}, v{vX4}, {sr(sIN, 4)}, s{sA} offen {ld}
            buffer_load_dwordx4 {vr(st['o'] + 4 * g, 4)}, v{vX4}, {sr(sOUT, 4)}, s{sA} offen {ld}
            buffer_load_dwordx2 {vr(st['g'] + 2 * g, 2)}, v{vX2}, {sr(sANG, 4)}, s{sB} offen {ld}
            s_add_u32 s{sA}, s{sA}, 16384
            s_add_u32 s{sB}, s{sB}, 8192
            """)
        else:
            a(f"""
            buffer_load_dword v{st['i'] + 12}, v{vTI}, {sr(sIN, 4)}, s{sA} offen {ld}
            buffer_load_dword v{st['o'] + 12}, v{vTI}, {sr(sOUT, 4)}, s{sA} offen {ld}
            buffer_load_ushort v{st['g'] + 6}, v{vTA}, {sr(sANG, 4)}, s{sB} offen {ld}
            """)

    for g in range(4):
        load_group(0, g)
    a(f"""
    s_cmp_lg_u32 s{sWAVE}, 0
    s_cbranch_scc1 L_k1_noinit
    v_mov_b32 v{vSTG + 1}, 0
    v_mov_b32 v{vSTG + 2}, 0
    v_mov_b32 v{vSTG + 3}, 0
    ds_write_b128 v{vX4}, {vr(vSTG, 4)} offset:{HOFF}
    ds_write_b32 v{vSTG}, v{vSTG} offset:{MISC}
    s_cmp_lg_u32 s2, 0
    s_cbranch_scc1 L_k1_noinit
    s_mov_b32 s{sT}, {CNT}
    buffer_store_dword v{vSTG}, v{vTI}, {sr(sWS, 4)}, s{sT} offen
    L_k1_noinit:
    s_waitcnt lgkmcnt(0)
    s_lshl_b32 s46, s46, 16
    v_mov_b32 v{vF}, s46
    s_barrier
    """)
    early = OPT["k1early"] == "1"
    if not early:
        for g in range(4):
            load_group(1, g)

    def copy_reads():
        lab = a.uid("cr")
        for i in range(4):
            a(f"ds_read_b128 {vr(vSTG + 4 * i, 4)}, v{vX4} offset:{BUF + i * 16384}")
        a(f"""
        s_cmp_ge_u32 s{sWAVE}, 11
        s_cbranch_scc1 {lab}
        ds_read_b128 {vr(vSTG + 16, 4)}, v{vX4b} offset:{BUF}
        {lab}:
        """)

    def copy_store(i, sTile):
        st = OPT["st1"]
        if i < 3:
            a(f"""
            s_mul_i32 s{sT}, s{sTile}, {N1 * 4}
            s_add_u32 s{sT}, s{sT}, {R1A + i * 16384}
            buffer_store_dwordx4 {vr(vSTG + 4 * i, 4)}, v{vX4}, {sr(sWS, 4)}, s{sT} offen {st}
            """)
        elif i == 3:
            a(f"""
            s_mul_i32 s{sT}, s{sTile}, {N1 * 4}
            s_add_u32 s{sT}, s{sT}, {R1A + 49152}
            s_mul_i32 s{sU}, s{sTile}, {N1 * 2}
            s_add_u32 s{sU}, s{sU}, {R1B - 2048}
            s_cmp_lt_u32 s{sWAVE}, 2
            s_cselect_b32 s{sT}, s{sT}, s{sU}
            buffer_store_dwordx4 {vr(vSTG + 12, 4)}, v{vX4}, {sr(sWS, 4)}, s{sT} offen {st}
            """)
        else:
            lab = a.uid("cs")
            a(f"""
            s_cmp_ge_u32 s{sWAVE}, 11
            s_cbranch_scc1 {lab}
            s_mul_i32 s{sT}, s{sTile}, {N1 * 2}
            s_add_u32 s{sT}, s{sT}, {R1B + 14336}
            buffer_store_dwordx4 {vr(vSTG + 16, 4)}, v{vX4}, {sr(sWS, 4)}, s{sT} offen {st}
            {lab}:
            """)

    def hist(st, js):
        for j in js:
            a(f"v_mul_hi_u32_u24 v{vRANK + j}, s{sCB}, v{st['i'] + j}")
        for j in js:
            a(f"v_lshl_or_b32 v{st['o'] + j}, v{st['i'] + j}, 20, v{st['o'] + j}")
        for j in js:
            a(f"v_and_b32 v{st['i'] + j}, 0x3fc, v{vRANK + j}")
        for j in js:
            a(f"ds_add_rtn_u32 v{vRANK + j}, v{st['i'] + j}, v{vFOUR} offset:{HOFF}")

    def cosines(regs):
        ops = ["v_lshlrev_b32 {x}, 16, {g}", "v_and_b32 {y}, 0xffff0000, {g}",
               f"v_mul_f32 {{x}}, v{vF}, {{x}}", f"v_mul_f32 {{y}}, v{vF}, {{y}}",
               "v_cvt_pk_bf16_f32 {g}, {x}, {y}",
               "v_lshlrev_b32 {x}, 16, {g}", "v_and_b32 {y}, 0xffff0000, {g}",
               "v_mul_f32 {x}, 0.15915494, {x}", "v_mul_f32 {y}, 0.15915494, {y}",
               "v_fract_f32 {x}, {x}", "v_fract_f32 {y}, {y}",
               "v_cos_f32 {x}, {x}", "v_cos_f32 {y}, {y}"]
        for op in ops:
            for n, g in enumerate(regs):
                a(op.format(g=f"v{g}", x=f"v{vC + 2 * n}", y=f"v{vC + 2 * n + 1}"))
        a("s_nop 0")
        for n, g in enumerate(regs):
            a(f"v_cvt_pk_f16_f32 v{g}, v{vC + 2 * n}, v{vC + 2 * n + 1}")

    def phase_h(k):
        st = sets[k % 2]
        if k > 0:
            copy_reads()
            a(f"s_waitcnt vmcnt({[0, 12, 12, 2][k]})")
        for g in range(3):
            if k == 0:
                a(f"s_waitcnt vmcnt({10 if early else 24 - 3 * g - 2})")
            hist(st, range(4 * g, 4 * g + 4))
            if k == 0 and early:
                load_group(1, g)
            if k > 0:
                if g == 0:
                    a("s_waitcnt lgkmcnt(4)")
                    copy_store(0, sTI[k - 1])
                    copy_store(1, sTI[k - 1])
                elif g == 1:
                    copy_store(2, sTI[k - 1])
                    copy_store(3, sTI[k - 1])
                else:
                    copy_store(4, sTI[k - 1])
            if k == 0:
                a(f"s_waitcnt vmcnt({12 if early else 24 - 3 * g - 3})")
            cosines([st['g'] + 2 * g, st['g'] + 2 * g + 1])
        lab = a.uid("ht")
        if k == 0:
            if early:
                load_group(1, 3)
            a("s_waitcnt vmcnt(12)")
        a(f"""
        s_cmp_ge_u32 s{sWAVE}, 8
        s_cbranch_scc1 {lab}
        """)
        hist(st, [12])
        cosines([st['g'] + 6])
        a(f"""
        {lab}:
        s_waitcnt lgkmcnt(0)
        s_barrier
        """)

    def phase_p(k):
        lab = a.uid("p")
        c, z, b, x = vSTG, vSTG + 4, vSTG + 8, vSTG + 12
        a(f"""
        s_cmp_lg_u32 s{sWAVE}, 0
        s_cbranch_scc1 {lab}
        ds_read_b128 {vr(c, 4)}, v{vX4} offset:{HOFF}
        v_mov_b32 v{z}, 0
        v_mov_b32 v{z + 1}, 0
        v_mov_b32 v{z + 2}, 0
        v_mov_b32 v{z + 3}, 0
        s_waitcnt lgkmcnt(0)
        """)
        prefix_core(a, c, z, b, x, vX4, HOFF, POFF)
        a(f"""
        s_waitcnt lgkmcnt(0)
        {lab}:
        s_barrier
        """)

    def offsets_store(k):
        lab = a.uid("os")
        c, b = vSTG, vSTG + 8
        a(f"""
        s_cmp_lg_u32 s{sWAVE}, 0
        s_cbranch_scc1 {lab}
        s_add_u32 s{sT}, s{sPOS}, {k * 128}
        """)
        for j in range(4):
            a(f"v_lshl_or_b32 v{c + j}, v{c + j}, 16, v{b + j}")
        for j in range(4):
            a(f"buffer_store_dword v{c + j}, v{vROW}, {sr(sWS, 4)}, s{sT} offen")
            if j < 3:
                a(f"s_add_u32 s{sT}, s{sT}, {ROW1}")
        a(f"{lab}:")

    def scatter(st, js):
        for j in js:
            a(f"v_add_u32 v{vRANK + j}, v{st['i'] + j}, v{vRANK + j}")
        for j in js:
            a(f"ds_write_b32 v{vRANK + j}, v{st['o'] + j} offset:{BUF}")
        for j in js:
            a(f"v_lshrrev_b32 v{st['i'] + j}, 1, v{vRANK + j}")
        for j in js:
            op = "ds_write_b16" if j % 2 == 0 else "ds_write_b16_d16_hi"
            a(f"{op} v{st['i'] + j}, v{st['g'] + j // 2} offset:{BUFB}")

    vM8 = sets[0]['i']

    def phase_s(k):
        st = sets[k % 2]
        for j in range(13):
            a(f"ds_read_b32 v{st['i'] + j}, v{st['i'] + j} offset:{POFF}")
        offsets_store(k)
        a("s_waitcnt lgkmcnt(0)")
        for g in range(3):
            scatter(st, range(4 * g, 4 * g + 4))
            if k + 2 < 4:
                load_group(k + 2, g)
        lab = a.uid("st")
        a(f"""
        s_cmp_ge_u32 s{sWAVE}, 8
        s_cbranch_scc1 {lab}
        """)
        scatter(st, [12])
        a(f"{lab}:")
        if k + 2 < 4:
            load_group(k + 2, 3)
        if k == 2:
            a(f"s_mul_i32 s{sU}, s2, {SPAN}")
            slice_loads(a, sM, sU, sT, vX4, vC, vM8)
        a("""
        s_waitcnt lgkmcnt(0)
        s_barrier
        """)

    for k in range(4):
        if k == 3:
            a(f"""
            s_cmp_lt_u32 s{sTI[3]}, {NT1}
            s_cbranch_scc1 L_k1_t3
            s_mov_b32 s{sTI[3]}, s{sTI[2]}
            s_branch L_k1_final
            L_k1_t3:
            """)
        stamp(a, 4 + 4 * k)
        phase_h(k)
        stamp(a, 5 + 4 * k)
        phase_p(k)
        stamp(a, 6 + 4 * k)
        phase_s(k)
    a("L_k1_final:")
    stamp(a, 1)
    copy_reads()
    a("s_waitcnt lgkmcnt(0)")
    for i in range(5):
        copy_store(i, sTI[3])
    a("s_waitcnt vmcnt(4)")
    for i in range(8):
        a(f"v_and_b32 v{vM8 + i}, 0x7fff7fff, v{vM8 + i}")
    for d, x, y in ((0, 0, 1), (2, 2, 3), (4, 4, 5), (6, 6, 7), (0, 0, 2), (4, 4, 6), (0, 0, 4)):
        a(f"v_pk_max_u16 v{vM8 + d}, v{vM8 + x}, v{vM8 + y}")
    a(f"""
    v_lshrrev_b32 v{vC}, 16, v{vM8}
    v_and_b32 v{vM8}, 0xffff, v{vM8}
    v_max_u32 v{vC}, v{vC}, v{vM8}
    v_mov_b32 v{vC + 1}, 0
    """)
    wave_scan(a, "v_max_u32", vC)
    a(f"""
    s_lshl_b64 exec, 1, 63
    ds_max_u32 v{vC + 1}, v{vC} offset:{MISC}
    s_waitcnt lgkmcnt(0)
    s_barrier
    s_cmp_lg_u32 s{sWAVE}, 0
    s_cbranch_scc1 L_k1_nomax
    ds_read_b32 v{vC}, v{vC + 1} offset:{MISC}
    s_lshl_b32 s{sT}, s2, 2
    s_add_u32 s{sT}, s{sT}, {MAXS}
    s_waitcnt lgkmcnt(0)
    buffer_store_dword v{vC}, v{vC + 1}, {sr(sWS, 4)}, s{sT} offen
    L_k1_nomax:
    """)
    stamp_flush(a, 0, sWS, sWAVE)
    a("""
    L_k1_end:
    s_endpgm
    """)
    return name, nv, 48, BUFB + N1 * 2


def refill_code(a, vIDX, vLEN, vW, vT, sMASK, pend=None):
    a(f"""
    s_mov_b64 exec, -1
    v_add_u32 v{vIDX}, {SEG}, v{vIDX}
    v_subrev_u32 v{vLEN}, {SEG}, v{vLEN}
    v_max_i32 v{vLEN}, 0, v{vLEN}
    """)
    if pend is not None:
        cur, pen = pend
        a(f"""
        v_cmp_eq_u32 vcc, 0, v{vLEN}
        s_nop 1
        """)
        for c, p in zip(cur, pen):
            a(f"v_cndmask_b32 v{c}, v{c}, v{p}, vcc")
        a(f"v_cndmask_b32 v{pen[1]}, v{pen[1]}, 0, vcc")
    a(f"""
    v_min_u32 v{vT}, {SEG}, v{vLEN}
    v_cmp_lt_u32 {sr(sMASK, 2)}, 0, v{vLEN}
    v_lshl_or_b32 v{vW}, v{vIDX}, 6, v{vT}
    s_nop 3
    """)


def k2(a):
    name = "gather_part_kernel"
    kernel_header(a, name)
    HOFF, POFF, MISC, SLICE, SORT = 0, 1024, 2048, 4096, 36864
    LDS = SORT + NS * 1024 * 8
    sWAVE, sB = 3, 4
    sWS, sM = 8, 12
    sK, sCB, sDONE, sNOLD = 16, 17, 18, 19
    sMASK, sQUOTA, sNT, sKT, sT, sU, sL = 20, 22, 23, 24, 25, 26, 27
    sBASE, sNPREV, sR1B, sBPREV, sQ = 28, 29, 31, 64, 65
    sW = [32, 48]
    sCM = [66, 68, 70]
    vLANE, vX4, vXA, vXB, vT2, vEIGHT, vIDX, vLEN, vW, vZERO, vROW = 1, 2, 3, 4, 5, 6, 7, 8, 9, 10, 11
    vT = 12
    vSTG = 16
    vR = [28, 28 + 2 * NS]
    vZ = 28 + 4 * NS
    nv = vZ + 2 * NS
    A = lambda st, s: vR[st] + 2 * s
    G = lambda st, s: vR[st] + 2 * s + 1
    Z = lambda s: vZ + 2 * s
    ld1 = OPT["ld1"]

    a(f"""
    s_cmp_ge_u32 s2, {NB}
    s_cbranch_scc1 L_k2_end
    s_load_dwordx2 s[6:7], s[0:1], 104
    s_load_dwordx2 s[32:33], s[0:1], 0
    v_lshrrev_b32 v{vEIGHT}, 6, v0
    v_and_b32 v{vLANE}, 63, v0
    v_readfirstlane_b32 s{sWAVE}, v{vEIGHT}
    s_and_b32 s{sB}, s2, 7
    s_lshl_b32 s{sB}, s{sB}, 5
    s_lshr_b32 s{sT}, s2, 3
    s_add_u32 s{sB}, s{sB}, s{sT}
    v_lshlrev_b32 v{vX4}, 4, v0
    v_lshlrev_b32 v{vT2}, 1, v0
    v_lshlrev_b32 v{vT + 2}, 2, v0
    v_lshlrev_b32 v{vT + 3}, 4, v{vLANE}
    v_mov_b32 v{vZERO}, 0
    v_mov_b32 v{vEIGHT}, 8
    s_mul_i32 s{sT}, s{sB}, {ROW1}
    s_add_u32 s{sT}, s{sT}, {OFF1}
    s_mov_b32 s{sU}, {MAXS}
    s_waitcnt lgkmcnt(0)
    """)
    stamp(a, 0)
    srd(a, sWS, 6, WS_BYTES)
    a(f"""
    buffer_load_dword v{vLEN}, v{vT + 2}, {sr(sWS, 4)}, s{sT} offen
    buffer_load_dwordx4 {vr(vZ, 4)}, v{vT + 3}, {sr(sWS, 4)}, s{sU} offen
    """)
    srd(a, sM, 32, E * 8)
    a(f"s_mul_i32 s{sU}, s{sB}, {SPAN}")
    slice_loads(a, sM, sU, sT, vX4, vT + 1, vSTG)
    a(f"""
    ds_write_b32 v{vT + 2}, v{vZERO}
    s_and_b32 s{sU}, s{sU}, -2
    v_add_u32 v{vXA}, {SORT}, v{vX4}
    v_add_u32 v{vXB}, {SORT + 65536}, v{vX4}
    v_mul_u32_u24 v{vROW}, {4 * ROW2}, v{vLANE}
    s_mov_b32 s{sK}, {MAGIC}
    s_mov_b32 s{sCB}, {CB4}
    s_mov_b32 s{sR1B}, {R1B}
    s_mov_b32 s{sDONE}, 0
    s_mov_b32 s{sNOLD}, 0
    v_add_u32 v{vSTG + 8}, s{sU}, v{vT2}
    v_and_b32 v{vSTG + 8}, 0xfff, v{vSTG + 8}
    v_lshlrev_b32 v{vSTG + 8}, 3, v{vSTG + 8}
    v_xor_b32 v{vSTG + 9}, 0x4000, v{vSTG + 8}
    v_and_b32 v{vT}, 31, v0
    v_bfe_u32 v{vT + 1}, v0, 5, 2
    v_cmp_eq_u32 vcc, 31, v{vT}
    v_lshrrev_b32 v{vT + 2}, 7, v0
    v_lshl_add_u32 v{vT}, v{vT}, 3, v{vT + 2}
    v_subb_co_u32 v{vT + 1}, vcc, v{vT + 1}, 0, vcc
    v_lshl_add_u32 v{vIDX}, v{vT + 1}, 8, v{vT}
    v_cmp_gt_u32 vcc, {NT1}, v{vIDX}
    v_mul_u32_u24 v{vIDX}, {N1}, v{vIDX}
    """)
    for st in range(2):
        for s in range(NS):
            a(f"v_mov_b32 v{A(st, s)}, 0")
            a(f"v_mov_b32 v{G(st, s)}, 0")
    a(f"""
    s_waitcnt vmcnt(3)
    v_cndmask_b32 v{vLEN}, 0, v{vLEN}, vcc
    v_bfe_u32 v{vT}, v{vLEN}, 2, 14
    v_lshrrev_b32 v{vLEN}, 18, v{vLEN}
    v_add_u32 v{vIDX}, v{vIDX}, v{vT}
    v_add_u32 v{vT + 1}, {SEG - 1}, v{vLEN}
    v_mul_u32_u24 v{vT + 1}, 16645, v{vT + 1}
    v_lshrrev_b32 v{vT + 1}, 20, v{vT + 1}
    v_min_u32 v{vT + 2}, {SEG}, v{vLEN}
    v_cmp_lt_u32 {sr(sMASK, 2)}, 0, v{vLEN}
    v_lshl_or_b32 v{vW}, v{vIDX}, 6, v{vT + 2}
    """)
    wave_scan(a, "v_add_u32", vT + 1)
    a(f"""
    s_nop 0
    v_readlane_b32 s{sT}, v{vT + 1}, 63
    s_nop 3
    s_add_u32 s{sQUOTA}, s{sT}, {FIX - 1}
    s_mul_i32 s{sQUOTA}, s{sQUOTA}, 52429
    s_lshr_b32 s{sQUOTA}, s{sQUOTA}, 18
    s_add_u32 s{sNT}, s{sT}, {NS - 1}
    s_mul_i32 s{sNT}, s{sNT}, 34953
    s_lshr_b32 s{sNT}, s{sNT}, 19
    """)

    def pop(st, s):
        back, stub, empty, issue = a.uid("pb"), a.uid("pr"), a.uid("pe"), a.uid("pi")
        w = sW[st] + s
        if s >= 12 and OPT["greedy"] != "1":
            a(f"""
            s_cmp_le_u32 s{sQUOTA}, {s}
            s_cbranch_scc1 {empty}
            """)
        a(f"""
        s_cmp_eq_u64 {sr(sMASK, 2)}, 0
        s_cbranch_scc1 {stub}
        {back}:
        s_ff1_i32_b64 s{sL}, {sr(sMASK, 2)}
        s_bitset0_b64 {sr(sMASK, 2)}, s{sL}
        v_readlane_b32 s{w}, v{vW}, s{sL}
        s_lshr_b32 s{sT}, s{w}, 6
        s_bfm_b64 exec, s{w}, 0
        v_add_lshl_u32 v{A(st, s)}, s{sT}, v{vLANE}, 2
        v_lshrrev_b32 v{G(st, s)}, 1, v{A(st, s)}
        {issue}:
        buffer_load_dword v{A(st, s)}, v{A(st, s)}, {sr(sWS, 4)}, 0 offen {ld1}
        buffer_load_ushort v{G(st, s)}, v{G(st, s)}, {sr(sWS, 4)}, s{sR1B} offen {ld1}
        """)
        a.begin_tail()
        a(f"""
        {stub}:
        s_cmp_lg_u32 s{sDONE}, 0
        s_cbranch_scc1 {empty}
        """)
        refill_code(a, vIDX, vLEN, vW, vT + 3, sMASK)
        a(f"""
        s_cmp_eq_u64 {sr(sMASK, 2)}, 0
        s_cbranch_scc0 {back}
        s_mov_b32 s{sDONE}, 1
        {empty}:
        s_mov_b32 s{w}, 0
        s_mov_b64 exec, 0
        s_branch {issue}
        """)
        a.end_tail()

    stamp(a, 60)
    for s in range(NS):
        pop(0, s)
    a("s_mov_b64 exec, -1")
    wave_scan(a, "v_add_u32", vT)
    a(f"""
    v_mov_b32 v{vT + 1}, s{sNT}
    s_waitcnt lgkmcnt(0)
    s_barrier
    s_lshl_b64 exec, 1, 63
    ds_max_u32 v{vZERO}, v{vT + 1} offset:{MISC}
    ds_add_u32 v{vZERO}, v{vT} offset:{MISC + 4}
    """)
    for s in range(NS):
        pop(1, s)
    a(f"""
    s_mov_b64 exec, -1
    s_waitcnt vmcnt({4 * NS})
    """)
    stamp(a, 61)
    global_max(a, vZ, sT)
    a(f"""
    v_rcp_f32 v{vT}, s{sT}
    s_nop 0
    v_mul_f32 v{vT}, {float(QMAX * 4)}, v{vT}
    """.replace(str(float(QMAX * 4)), "0x467f0000"))
    for i in range(8):
        a(f"""
        v_lshlrev_b32 v{vT + 2}, 16, v{vSTG + i}
        v_and_b32 v{vT + 3}, 0xffff0000, v{vSTG + i}
        v_mul_f32 v{vT + 2}, v{vT}, v{vT + 2}
        v_mul_f32 v{vT + 3}, v{vT}, v{vT + 3}
        v_cvt_pk_f16_f32 v{vSTG + i}, v{vT + 2}, v{vT + 3}
        """)
    a(f"""
    ds_write_b128 v{vSTG + 8}, {vr(vSTG, 4)} offset:{SLICE}
    ds_write_b128 v{vSTG + 9}, {vr(vSTG + 4, 4)} offset:{SLICE}
    s_waitcnt lgkmcnt(0)
    s_barrier
    ds_read_b64 {vr(vT, 2)}, v{vZERO} offset:{MISC}
    s_waitcnt lgkmcnt(0)
    v_readfirstlane_b32 s{sNT}, v{vT}
    v_readfirstlane_b32 s{sBASE}, v{vT + 1}
    s_nop 3
    s_max_u32 s{sNT}, s{sNT}, {FIX}
    s_mul_i32 s{sT}, s{sB}, {PAD2}
    s_add_u32 s{sBASE}, s{sBASE}, s{sT}
    s_add_u32 s{sBASE}, s{sBASE}, 15
    s_and_b32 s{sBASE}, s{sBASE}, -16
    s_mov_b32 s{sKT}, 0
    s_mov_b32 s{sNPREV}, 0
    s_mov_b32 s{sBPREV}, {R2}
    """)

    def copy_reads(chunks, regs, masks):
        a("s_mov_b64 exec, -1")
        for i, m in zip(chunks, masks):
            a(f"""
            s_sub_i32 s{sT}, s{sNPREV}, {i * 2048}
            v_cmp_gt_i32 {sr(m, 2)}, s{sT}, v{vT2}
            """)
        for i, r, m in zip(chunks, regs, masks):
            addr = vXA if i < 4 else vXB
            a(f"""
            s_mov_b64 exec, {sr(m, 2)}
            ds_read_b128 {vr(r, 4)}, v{addr} offset:{(i % 4) * 16384}
            """)

    def copy_stores(chunks, regs, masks):
        for i, r, m in zip(chunks, regs, masks):
            lab = a.uid("cs")
            a(f"""
            s_mov_b64 exec, {sr(m, 2)}
            s_cbranch_execz {lab}
            s_add_u32 s{sT}, s{sBPREV}, {i * 16384}
            buffer_store_dwordx4 {vr(r, 4)}, v{vX4}, {sr(sWS, 4)}, s{sT} offen {OPT['st2']}
            {lab}:
            """)

    def gathers(st, bt):
        for s in bt:
            a(f"""
            s_bfm_b64 exec, s{sW[st] + s}, 0
            v_lshrrev_b32 v{Z(s)}, 17, v{A(st, s)}
            v_and_b32 v{Z(s)}, 0x7ff8, v{Z(s)}
            ds_read_b64 {vr(Z(s), 2)}, v{Z(s)} offset:{SLICE}
            """)

    def encode(st, bt):
        for s in bt:
            z, aa, g = Z(s), A(st, s), G(st, s)
            a(f"""
            s_bfm_b64 exec, s{sW[st] + s}, 0
            v_fma_mix_f32 v{vT}, v{z}, v{g}, s{sK} op_sel_hi:[1,1,0]
            v_fma_mix_f32 v{vT + 1}, v{z}, v{g}, s{sK} op_sel:[1,0,0] op_sel_hi:[1,1,0]
            v_fma_mix_f32 v{vT + 2}, v{z + 1}, v{g}, s{sK} op_sel_hi:[1,1,0]
            v_fma_mix_f32 v{vT + 3}, v{z + 1}, v{g}, s{sK} op_sel:[1,0,0] op_sel_hi:[1,1,0]
            v_and_b32 v{g}, 0xfffff, v{aa}
            v_lshl_add_u32 v{z}, v{vT + 1}, 13, v{vT}
            v_mul_hi_u32_u24 v{g}, s{sCB}, v{g}
            v_lshl_add_u32 v{z + 1}, v{vT + 3}, 13, v{vT + 2}
            v_lshrrev_b32 v{vT}, 6, v{aa}
            v_lshl_add_u32 v{z}, v{aa}, 26, v{z}
            v_and_b32 v{aa}, 0x3fc, v{g}
            v_lshl_add_u32 v{z + 1}, v{vT}, 26, v{z + 1}
            ds_add_rtn_u32 v{g}, v{aa}, v{vEIGHT} offset:{HOFF}
            """)

    def phase_h(st):
        greedy = OPT["greedy"] == "1"
        if greedy:
            b0, b1, b2, b3 = range(0, 5), range(5, 10), range(10, 15), None
        else:
            b0, b1, b2, b3 = range(0, 5), range(5, 9), range(9, 13), range(13, 15)
        regs = [vSTG, vSTG + 4, vSTG + 8]
        lab, w0, w1, short = a.uid("h3"), a.uid("hw0"), a.uid("hw1"), a.uid("hs")
        copy_reads([0, 1, 2], regs, sCM)
        a(f"""
        s_cmp_lg_u32 s{sNOLD}, 0
        s_cbranch_scc1 {w0}
        s_waitcnt vmcnt({2 * NS})
        {w1}:
        """)
        a.begin_tail()
        a(f"""
        {w0}:
        s_waitcnt vmcnt(0)
        s_branch {w1}
        """)
        a.end_tail()
        gathers(st, b0)
        a(f"""
        s_cmp_eq_u32 s{sW[st] + 5}, 0
        s_cbranch_scc1 {short}
        """)
        gathers(st, b1)
        a(f"s_waitcnt lgkmcnt({len(b1)})")
        copy_stores([0, 1, 2], regs, sCM)
        copy_reads([3, 4, 5], regs, sCM)
        encode(st, b0)
        gathers(st, b2)
        a(f"s_waitcnt lgkmcnt({len(b0) + len(b2)})")
        copy_stores([3, 4, 5], regs, sCM)
        copy_reads([6, 7], regs, sCM)
        encode(st, b1)
        a(f"s_waitcnt lgkmcnt({len(b1)})")
        copy_stores([6, 7], regs, sCM)
        encode(st, b2)
        if b3:
            a(f"""
            s_cmp_eq_u32 s{sW[st] + 13}, 0
            s_cbranch_scc1 {lab}
            """)
            gathers(st, b3)
            a("s_waitcnt lgkmcnt(0)")
            encode(st, b3)
        a(f"""
        {lab}:
        s_mov_b64 exec, -1
        s_waitcnt lgkmcnt(0)
        s_barrier
        """)
        a.begin_tail()
        a(f"""
        {short}:
        s_waitcnt lgkmcnt(0)
        """)
        copy_stores([0, 1, 2], regs, sCM)
        copy_reads([3, 4, 5], regs, sCM)
        a("s_waitcnt lgkmcnt(0)")
        copy_stores([3, 4, 5], regs, sCM)
        copy_reads([6, 7], regs, sCM)
        encode(st, b0)
        a(f"s_waitcnt lgkmcnt({len(b0)})")
        copy_stores([6, 7], regs, sCM)
        a(f"s_branch {lab}")
        a.end_tail()

    c, z4, b4, x = vSTG, vSTG + 4, vSTG + 8, vT

    def phase_p():
        lab = a.uid("p")
        a(f"""
        s_cmp_lg_u32 s{sWAVE}, 0
        s_cbranch_scc1 {lab}
        ds_read_b128 {vr(c, 4)}, v{vX4} offset:{HOFF}
        v_mov_b32 v{z4}, 0
        v_mov_b32 v{z4 + 1}, 0
        v_mov_b32 v{z4 + 2}, 0
        v_mov_b32 v{z4 + 3}, 0
        s_waitcnt lgkmcnt(0)
        """)
        prefix_core(a, c, z4, b4, x, vX4, HOFF, POFF)
        a(f"""
        s_lshl_b64 exec, 1, 63
        ds_write_b32 v{vZERO}, v{x} offset:{MISC + 16}
        s_mov_b64 exec, -1
        s_waitcnt lgkmcnt(0)
        {lab}:
        s_barrier
        """)

    def offsets_store():
        lab, ovf, back = a.uid("os"), a.uid("ovf"), a.uid("ovfback")
        a(f"""
        s_cmp_lg_u32 s{sWAVE}, 0
        s_cbranch_scc1 {lab}
        s_mov_b64 exec, -1
        s_lshl_b32 s{sQ}, s{sKT}, 8
        s_add_u32 s{sQ}, s{sQ}, s{sB}
        s_cmp_ge_u32 s{sKT}, {FIX}
        s_cbranch_scc1 {ovf}
        {back}:
        s_lshl_b32 s{sQ}, s{sQ}, 2
        s_add_u32 s{sT}, s{sQ}, {OFF2}
        """)
        for j in range(4):
            a(f"v_lshrrev_b32 v{b4 + j}, 3, v{b4 + j}")
        for j in range(4):
            a(f"v_lshl_or_b32 v{c + j}, v{c + j}, 13, v{b4 + j}")
        for j in range(4):
            a(f"buffer_store_dword v{c + j}, v{vROW}, {sr(sWS, 4)}, s{sT} offen")
            if j < 3:
                a(f"s_add_u32 s{sT}, s{sT}, {ROW2}")
        a(f"""
        v_mov_b32 v{z4}, s{sBASE}
        s_add_u32 s{sT}, s{sQ}, {DIR2}
        s_mov_b64 exec, 1
        buffer_store_dword v{z4}, v{vZERO}, {sr(sWS, 4)}, s{sT} offen
        {lab}:
        """)
        a.begin_tail()
        a(f"""
        {ovf}:
        s_mov_b64 exec, 1
        v_mov_b32 v{z4}, 1
        s_mov_b32 s{sT}, {CNT}
        buffer_atomic_add v{z4}, v{vZERO}, {sr(sWS, 4)}, s{sT} offen sc0
        s_waitcnt vmcnt(0)
        v_readfirstlane_b32 s{sQ}, v{z4}
        s_mov_b64 exec, -1
        s_nop 3
        s_add_u32 s{sQ}, s{sQ}, {FIX * NB}
        s_branch {back}
        """)
        a.end_tail()

    def phase_s(st):
        l1, nop, fin = a.uid("sa"), a.uid("sn"), a.uid("sf")
        a(f"ds_read_b32 v{vT}, v{vZERO} offset:{MISC + 16}")
        for s in range(NS):
            if s in (5, 13):
                a(f"""
                s_cmp_eq_u32 s{sW[st] + s}, 0
                s_cbranch_scc1 {l1}
                """)
            a(f"""
            s_bfm_b64 exec, s{sW[st] + s}, 0
            ds_read_b32 v{A(st, s)}, v{A(st, s)} offset:{POFF}
            """)
        a(f"{l1}:")
        offsets_store()
        a(f"""
        s_mov_b64 exec, -1
        s_mov_b32 s{sNOLD}, s{sDONE}
        s_lshl_b32 s{sBPREV}, s{sBASE}, 3
        s_add_u32 s{sBPREV}, s{sBPREV}, {R2}
        s_cmp_lg_u32 s{sDONE}, 0
        s_waitcnt lgkmcnt(0)
        v_readfirstlane_b32 s{sNPREV}, v{vT}
        s_cbranch_scc1 {nop}
        """)

        def put(s):
            a(f"""
            s_bfm_b64 exec, s{sW[st] + s}, 0
            v_add_u32 v{A(st, s)}, v{A(st, s)}, v{G(st, s)}
            ds_write_b64 v{A(st, s)}, {vr(Z(s), 2)} offset:{SORT}
            """)
        for s in range(NS):
            put(s)
            pop(st, s)
        a(f"""
        {fin}:
        s_lshr_b32 s{sNPREV}, s{sNPREV}, 3
        s_add_u32 s{sNPREV}, s{sNPREV}, 15
        s_and_b32 s{sNPREV}, s{sNPREV}, -16
        s_add_u32 s{sBASE}, s{sBASE}, s{sNPREV}
        s_waitcnt lgkmcnt(0)
        s_barrier
        """)
        a.begin_tail()
        a(f"{nop}:")
        for s in range(NS):
            if s in (5, 10):
                a(f"""
                s_cmp_eq_u32 s{sW[st] + s}, 0
                s_cbranch_scc1 {fin}
                """)
            put(s)
            a(f"s_mov_b32 s{sW[st] + s}, 0")
        a(f"s_branch {fin}")
        a.end_tail()

    a("L_k2_loop:")
    for st in range(2):
        stamp(a, 4, sKT)
        phase_h(st)
        stamp(a, 5, sKT)
        phase_p()
        stamp(a, 6, sKT)
        phase_s(st)
        a(f"""
        s_add_u32 s{sKT}, s{sKT}, 1
        s_cmp_ge_u32 s{sKT}, s{sNT}
        """)
        a("s_cbranch_scc1 L_k2_final" if st == 0 else "s_cbranch_scc0 L_k2_loop")
    a("L_k2_final:")
    stamp(a, 1)
    regs = [vSTG, vSTG + 4, vSTG + 8] + [vZ + 4 * i for i in range(5)]
    masks = [32 + 2 * i for i in range(8)]
    copy_reads(list(range(8)), regs, masks)
    a("s_waitcnt lgkmcnt(0)")
    copy_stores(list(range(8)), regs, masks)
    stamp_flush(a, 1, sWS, sWAVE)
    a("""
    L_k2_end:
    s_endpgm
    """)
    a.flush_tail()
    return name, nv, 80, LDS


def k3(a):
    name = "accum_out_kernel"
    kernel_header(a, name)
    D = int(OPT["d3"])
    ACC, MISC = 0, 1024
    LDS = 131072
    sWAVE, sB = 3, 4
    sWS, sM, sDI, sOUT = 8, 12, 16, 20
    sMASK, sT, sU, sL, sLIVE, sR2 = 24, 26, 27, 28, 29, 30
    sNE, sQB, sPASS, sBAS, sUNIT, sDONE = 31, 32, 33, 34, 35, 5
    sC, sP, sSEL = 36, 38, 6
    sW = 40
    sWD, sWU, sC8, sWX = 56, 64, 72, 76
    vLANE, vZERO, vIDX, vLEN, vIDX2, vLEN2, vW, vQ2 = 1, 2, 3, 4, 5, 6, 7, 8
    vT = 10
    vZ = 20
    vM = vZ + 2 * D
    vS = vM + 8
    vRR = vS + 16
    vFA = vRR + 16
    vDI = vFA + 16
    vE8 = vDI + 4
    vRB = vE8 + 4
    nrb = 2
    nv = vRB + 8 * nrb
    Z = lambda i: vZ + 2 * i
    EPOCH = 512 // D

    a(f"""
    s_cmp_ge_u32 s2, {NB}
    s_cbranch_scc1 L_k3_end
    s_load_dwordx2 s[6:7], s[0:1], 104
    s_load_dwordx2 s[36:37], s[0:1], 0
    s_load_dwordx2 s[38:39], s[0:1], 24
    s_load_dwordx2 s[40:41], s[0:1], 88
    s_load_dwordx2 s[42:43], s[0:1], 40
    s_load_dwordx8 s[44:51], s[0:1], 56
    v_lshrrev_b32 v{vT}, 6, v0
    v_and_b32 v{vLANE}, 63, v0
    v_readfirstlane_b32 s{sWAVE}, v{vT}
    s_and_b32 s{sB}, s2, 7
    s_lshl_b32 s{sB}, s{sB}, 5
    s_lshr_b32 s{sT}, s2, 3
    s_add_u32 s{sB}, s{sB}, s{sT}
    v_mov_b32 v{vZERO}, 0
    v_and_b32 v{vQ2}, 15, v0
    v_lshl_add_u32 v{vQ2}, v{vT}, 4, v{vQ2}
    v_bfe_u32 v{vT + 1}, v0, 4, 2
    v_lshl_add_u32 v{vQ2}, v{vT + 1}, 8, v{vQ2}
    v_add_u32 v{vQ2}, 0x400, v{vQ2}
    s_mov_b32 s{sR2}, {R2}
    s_mov_b32 s{sQB}, 0
    s_waitcnt lgkmcnt(0)
    """)
    stamp(a, 0)
    srd(a, sWS, 6, WS_BYTES)

    def desc_loads():
        a(f"""
        v_add_lshl_u32 v{vT}, s{sQB}, v0, 2
        v_add_lshl_u32 v{vT + 1}, s{sQB}, v{vQ2}, 2
        s_mul_i32 s{sT}, s{sB}, {ROW2}
        s_add_u32 s{sT}, s{sT}, {OFF2}
        s_mov_b32 s{sU}, {DIR2}
        buffer_load_dword v{vLEN}, v{vT}, {sr(sWS, 4)}, s{sT} offen
        buffer_load_dword v{vIDX}, v{vT}, {sr(sWS, 4)}, s{sU} offen
        buffer_load_dword v{vLEN2}, v{vT + 1}, {sr(sWS, 4)}, s{sT} offen
        buffer_load_dword v{vIDX2}, v{vT + 1}, {sr(sWS, 4)}, s{sU} offen
        """)

    def desc_build():
        a(f"""
        v_add_u32 v{vT}, s{sQB}, v0
        v_add_u32 v{vT + 1}, s{sQB}, v{vQ2}
        v_cmp_gt_u32 vcc, s{sNE}, v{vT}
        v_cmp_gt_u32 {sr(sMASK, 2)}, s{sNE}, v{vT + 1}
        s_mov_b32 s{sDONE}, 0
        s_nop 0
        v_cndmask_b32 v{vLEN}, 0, v{vLEN}, vcc
        v_cndmask_b32 v{vLEN2}, 0, v{vLEN2}, {sr(sMASK, 2)}
        v_and_b32 v{vT}, 0xffff, v{vLEN}
        v_and_b32 v{vT + 1}, 0xffff, v{vLEN2}
        v_lshrrev_b32 v{vLEN}, 16, v{vLEN}
        v_lshrrev_b32 v{vLEN2}, 16, v{vLEN2}
        v_add_u32 v{vIDX}, v{vIDX}, v{vT}
        v_add_u32 v{vIDX2}, v{vIDX2}, v{vT + 1}
        v_min_u32 v{vT}, {SEG}, v{vLEN}
        v_cmp_lt_u32 {sr(sMASK, 2)}, 0, v{vLEN}
        v_lshl_or_b32 v{vW}, v{vIDX}, 6, v{vT}
        s_nop 3
        """)

    def pop(i):
        back, stub, empty, issue = a.uid("pb"), a.uid("pr"), a.uid("pe"), a.uid("pi")
        a(f"""
        s_cmp_eq_u64 {sr(sMASK, 2)}, 0
        s_cbranch_scc1 {stub}
        {back}:
        s_ff1_i32_b64 s{sL}, {sr(sMASK, 2)}
        s_bitset0_b64 {sr(sMASK, 2)}, s{sL}
        v_readlane_b32 s{sW + i}, v{vW}, s{sL}
        s_lshr_b32 s{sT}, s{sW + i}, 6
        s_bfm_b64 exec, s{sW + i}, 0
        v_add_lshl_u32 v{Z(i)}, s{sT}, v{vLANE}, 3
        {issue}:
        buffer_load_dwordx2 {vr(Z(i), 2)}, v{Z(i)}, {sr(sWS, 4)}, s{sR2} offen {OPT['ld2']}
        """)
        a.begin_tail()
        a(f"""
        {stub}:
        s_cmp_lg_u32 s{sDONE}, 0
        s_cbranch_scc1 {empty}
        """)
        refill_code(a, vIDX, vLEN, vW, vT + 8, sMASK, pend=((vIDX, vLEN), (vIDX2, vLEN2)))
        a(f"""
        s_cmp_eq_u64 {sr(sMASK, 2)}, 0
        s_cbranch_scc0 {back}
        s_mov_b32 s{sDONE}, 1
        {empty}:
        s_mov_b32 s{sW + i}, 0
        s_mov_b64 exec, 0
        s_branch {issue}
        """)
        a.end_tail()

    def process(i):
        z, t = Z(i), vT
        a(f"""
        s_bfm_b64 exec, s{sW + i}, 0
        v_perm_b32 v{t + 4}, v{z + 1}, v{z}, s{sSEL}
        v_and_b32 v{t}, 0x1fff, v{z}
        v_bfe_u32 v{t + 1}, v{z}, 13, 13
        v_and_b32 v{t + 4}, 0xfcfc, v{t + 4}
        v_and_b32 v{t + 2}, 0x1fff, v{z + 1}
        v_bfe_u32 v{t + 3}, v{z + 1}, 13, 13
        v_add_u32 v{t + 4}, v{t + 4}, v{t + 4}
        v_lshl_add_u64 {vr(t, 2)}, {vr(t, 2)}, 0, {sr(sC, 2)}
        v_lshl_add_u64 {vr(t + 2, 2)}, {vr(t + 2, 2)}, 0, {sr(sC, 2)}
        ds_add_u64 v{t + 4}, {vr(t, 2)} offset:{ACC}
        ds_add_u64 v{t + 4}, {vr(t + 2, 2)} offset:{ACC + 512}
        """)

    def zero_acc():
        a(f"""
        v_mov_b32 v{vT}, 0
        v_mov_b32 v{vT + 1}, 0
        v_mov_b32 v{vT + 2}, 0
        v_mov_b32 v{vT + 3}, 0
        v_lshlrev_b32 v{vT + 4}, 4, v{vLANE}
        s_lshl_b32 s{sT}, s{sWAVE}, 11
        v_add_u32 v{vT + 4}, s{sT}, v{vT + 4}
        v_add_u32 v{vT + 5}, 0x10000, v{vT + 4}
        ds_write_b128 v{vT + 4}, {vr(vT, 4)} offset:{ACC}
        ds_write_b128 v{vT + 4}, {vr(vT, 4)} offset:{ACC + 32768}
        ds_write_b128 v{vT + 5}, {vr(vT, 4)} offset:{ACC}
        ds_write_b128 v{vT + 5}, {vr(vT, 4)} offset:{ACC + 32768}
        ds_write_b32 v{vZERO}, v{vZERO} offset:{MISC}
        """)

    desc_loads()
    srd(a, sM, 36, E * 8)
    srd(a, sDI, 38, E * 2)
    srd(a, sOUT, 40, E * 8)
    a(f"""
    s_add_u32 s6, s6, {CNT}
    s_addc_u32 s7, s7, 0
    s_load_dword s{sNE}, s[6:7], 0
    s_load_dwordx8 {sr(sWD, 8)}, s[48:49], 0
    s_load_dwordx8 {sr(sWU, 8)}, s[50:51], 0
    s_load_dwordx4 {sr(sC8, 4)}, s[42:43], 0
    s_mov_b64 s[92:93], s[44:45]
    s_mov_b64 s[94:95], s[46:47]
    """)
    for i in range(D):
        a(f"v_mov_b32 v{Z(i)}, 0")
    for i in range(16):
        a(f"v_mov_b32 v{vFA + i}, 0")
    zero_acc()
    a(f"""
    s_mul_i32 s{sT}, s{sB}, {SPAN}
    v_mov_b32 v{vT + 8}, 0x8000000
    v_add_u32 v{vE8}, s{sT}, v0
    v_add_u32 v{vE8 + 1}, 0x400, v{vE8}
    v_add_u32 v{vE8 + 2}, 0x800, v{vE8}
    v_add_u32 v{vE8 + 3}, 0xc00, v{vE8}
    v_cmp_gt_u32 vcc, {SPAN - 3072}, v0
    s_mov_b32 s{sC}, 0xfffff000
    s_mov_b32 s{sC + 1}, 0xffffefff
    v_cndmask_b32 v{vE8 + 3}, v{vT + 8}, v{vE8 + 3}, vcc
    s_lshr_b32 s{sBAS}, s{sWAVE}, 2
    s_lshl_b32 s{sBAS}, s{sBAS}, 1
    s_add_u32 s{sBAS}, s{sBAS}, 1
    s_mov_b32 s{sPASS}, 0
    s_waitcnt lgkmcnt(0)
    s_mov_b32 s{sSEL}, 0x0c0c0703
    s_add_u32 s{sNE}, s{sNE}, {FIX * NB}
    s_waitcnt vmcnt(0)
    """)
    stamp(a, 4)
    desc_build()
    for i in range(D):
        pop(i)
    def side_loads():
        a(f"""
        s_mov_b64 exec, -1
        v_lshlrev_b32 v{vT + 8}, 4, v{vLANE}
        s_mov_b32 s{sT}, {MAXS}
        buffer_load_dwordx4 {vr(vS, 4)}, v{vT + 8}, {sr(sWS, 4)}, s{sT} offen
        """)
        for r in range(4):
            a(f"v_lshlrev_b32 v{vDI + r}, 1, v{vE8 + r}")
        for r in range(4):
            a(f"buffer_load_ushort v{vDI + r}, v{vDI + r}, {sr(sDI, 4)}, 0 offen")
        for r in range(4):
            a(f"v_lshlrev_b32 v{vE8 + r}, 3, v{vE8 + r}")
        for r in range(4):
            a(f"buffer_load_dwordx2 {vr(vM + 2 * r, 2)}, v{vE8 + r}, {sr(sM, 4)}, 0 offen {OPT['ld_m']}")

    late = OPT["late3"] == "1"
    if OPT["prio3"] == "1":
        a("s_setprio 3")
    if late:
        a("s_barrier")
        side_loads()
    else:
        side_loads()
        a("s_barrier")
    stamp(a, 7)
    for i in range(D):
        a(f"s_waitcnt vmcnt({D - 1 + 9})")
        process(i)
        pop(i)
    a(f"""
    L_k3_loop:
    s_add_u32 s{sPASS}, s{sPASS}, 1
    s_cmp_eq_u32 s{sPASS}, s{sBAS}
    s_cbranch_scc1 L_k3_basis
    L_k3_basisback:
    """)
    if OPT["prio3"] == "1":
        n = 80 // D
        for p, at in ((2, n * 3 // 10), (1, n * 6 // 10), (0, n * 8 // 10)):
            lab = a.uid("prio")
            a(f"""
            s_cmp_lg_u32 s{sPASS}, {at}
            s_cbranch_scc1 {lab}
            s_setprio {p}
            {lab}:
            """)
    a(f"""
    s_cmp_eq_u32 s{sW}, 0
    s_cbranch_scc1 L_k3_drained
    s_cmp_ge_u32 s{sPASS}, {EPOCH}
    s_cbranch_scc1 L_k3_full
    L_k3_pass:
    """)
    for i in range(D):
        a(f"s_waitcnt vmcnt({D - 1})")
        process(i)
        pop(i)
    a(f"""
    s_branch L_k3_loop
    L_k3_drained:
    s_mov_b64 exec, -1
    s_add_u32 s{sQB}, s{sQB}, 2048
    s_cmp_lt_u32 s{sQB}, s{sNE}
    s_cbranch_scc1 L_k3_next
    s_sub_u32 s{sQB}, s{sQB}, 2048
    s_cmp_lt_u32 s{sPASS}, s{sBAS}
    s_cbranch_scc0 L_k3_join
    s_mov_b32 s{sBAS}, s{sPASS}
    s_branch L_k3_basis
    L_k3_join:
    """)
    stamp(a, 8)
    a(f"""
    s_waitcnt lgkmcnt(0)
    s_barrier
    """)
    stamp(a, 9)

    a.begin_tail()
    a("L_k3_next:")
    desc_loads()
    a("s_waitcnt vmcnt(0)")
    desc_build()
    a(f"""
    s_branch L_k3_prime
    L_k3_full:
    s_mov_b64 exec, -1
    v_mov_b32 v{vT}, 1
    ds_write_b32 v{vZERO}, v{vT} offset:{MISC}
    s_branch L_k3_join
    """)
    a.end_tail()

    def fold(rs):
        for r in rs:
            t = vRB + 4 * r
            a(f"""
            v_lshrrev_b32 v{vT}, 3, v{vE8 + r}
            v_add_u32 v{vT + 1}, {TOPK}, v{vT}
            v_add_u32 v{vT}, {TOPK << 6}, v{vT}
            v_and_b32 v{vT + 1}, 63, v{vT + 1}
            v_and_b32 v{vT}, 0xfc0, v{vT}
            v_lshl_or_b32 v{vT}, v{vT}, 2, v{vT + 1}
            v_lshlrev_b32 v{vT}, 3, v{vT}
            ds_read_b64 {vr(t, 2)}, v{vT} offset:{ACC}
            ds_read_b64 {vr(t + 2, 2)}, v{vT} offset:{ACC + 512}
            """)
        a(f"""
        ds_read_b32 v{vT + 4}, v{vZERO} offset:{MISC}
        s_waitcnt lgkmcnt(0)
        v_readfirstlane_b32 s{sLIVE}, v{vT + 4}
        """)
        for r in rs:
            t = vRB + 4 * r
            a(f"""
            v_lshrrev_b32 v{vT}, 31, v{t}
            v_lshrrev_b32 v{vT + 1}, 31, v{t + 2}
            v_add_u32 v{t + 1}, v{t + 1}, v{vT}
            v_add_u32 v{t + 3}, v{t + 3}, v{vT + 1}
            """)
            for j in range(4):
                a(f"v_cvt_f32_i32 v{t + j}, v{t + j}")
            for j in range(4):
                a(f"v_add_f32 v{vFA + 4 * r + j}, v{vFA + 4 * r + j}, v{t + j}")

    def wpair(sw):
        a(f"""
        s_lshl_b32 s{sP}, s{sw}, 16
        s_and_b32 s{sP + 1}, s{sw}, 0xffff0000
        """)

    def pkmac(first, dst, src):
        base, hi = src & ~1, src & 1
        if first:
            a(f"v_pk_mul_f32 {vr(dst, 2)}, {vr(base, 2)}, {sr(sP, 2)} op_sel:[{hi},0] op_sel_hi:[{hi},1]")
        else:
            a(f"v_pk_fma_f32 {vr(dst, 2)}, {vr(base, 2)}, {sr(sP, 2)}, {vr(dst, 2)} op_sel:[{hi},0,0] op_sel_hi:[{hi},1,1]")

    def epilogue(rs):
        for k in range(4):
            for jp in range(2):
                wpair(sWD + 2 * k + jp)
                for r in rs:
                    pkmac(k == 0, vRB + 4 * r + 2 * jp, vFA + 4 * r + k)
        for r in rs:
            for j in range(4):
                a(f"v_mul_f32 v{vRB + 4 * r + j}, v{vRB + 4 * r + j}, v{vS + 4 * r + j}")
        for k in range(4):
            for jp in range(2):
                wpair(sWU + 2 * k + jp)
                for r in rs:
                    pkmac(k == 0, vFA + 4 * r + 2 * jp, vRB + 4 * r + k)
        for r in rs:
            t, m = vRB + 4 * r, vM + 2 * r
            a(f"""
            v_lshlrev_b32 v{t}, 16, v{m}
            v_and_b32 v{t + 1}, 0xffff0000, v{m}
            v_lshlrev_b32 v{t + 2}, 16, v{m + 1}
            v_and_b32 v{t + 3}, 0xffff0000, v{m + 1}
            """)
            for j in range(4):
                a(f"v_fmac_f32 v{t + j}, v{vFA + 4 * r + j}, v{vRR + 4 * r + j}")
            a(f"""
            v_cvt_pk_bf16_f32 v{t}, v{t}, v{t + 1}
            v_cvt_pk_bf16_f32 v{t + 1}, v{t + 2}, v{t + 3}
            buffer_store_dwordx2 {vr(t, 2)}, v{vE8 + r}, {sr(sOUT, 4)}, 0 offen {OPT['st_out']}
            """)

    a(f"""
    s_cmp_eq_u32 s{sWAVE}, 0
    s_cbranch_scc1 L_k3_epi4
    """)
    for rs, pre in (([0, 1, 2], ""), ([0, 1, 2, 3], "L_k3_epi4:")):
        if pre:
            a(pre)
        fold(rs)
        a(f"""
        s_cmp_lg_u32 s{sLIVE}, 0
        s_cbranch_scc1 L_k3_again
        """)
        epilogue(rs)
        stamp_flush(a, 2, sWS, sWAVE)
        a("s_endpgm")
    a(f"""
    L_k3_again:
    s_barrier
    """)
    zero_acc()
    a(f"""
    s_mov_b32 s{sPASS}, s{sBAS}
    s_waitcnt lgkmcnt(0)
    s_barrier
    s_branch L_k3_basisback
    L_k3_prime:
    """)
    for i in range(D):
        pop(i)
    a("s_branch L_k3_basisback")

    def basis(rs):
        x = lambda n, kp: vRB + 8 * n + 2 * kp
        for n, r in enumerate(rs):
            a(f"v_lshlrev_b32 v{vDI + r}, 16, v{vDI + r}")
        for kp in range(4):
            wpair(sC8 + kp)

            def rnd():
                for n in range(len(rs)):
                    a(f"v_cvt_pk_bf16_f32 v{x(n, kp)}, v{x(n, kp)}, v{x(n, kp) + 1}")
                for n in range(len(rs)):
                    a(f"v_and_b32 v{x(n, kp) + 1}, 0xffff0000, v{x(n, kp)}")
                for n in range(len(rs)):
                    a(f"v_lshlrev_b32 v{x(n, kp)}, 16, v{x(n, kp)}")

            def each(op):
                for n in range(len(rs)):
                    for h in range(2):
                        a(op.format(v=f"v{x(n, kp) + h}"))
            for n, r in enumerate(rs):
                d = vDI + r
                hi = d & 1
                a(f"v_pk_add_f32 {vr(x(n, kp), 2)}, {vr(d & ~1, 2)}, {sr(sP, 2)} op_sel:[{hi},0] op_sel_hi:[{hi},1] neg_lo:[0,1] neg_hi:[0,1]")
            rnd()
            each("v_mul_f32 {v}, {v}, {v}")
            rnd()
            each("v_mul_f32 {v}, 0xc1200000, {v}")
            rnd()
            each("v_mul_f32 {v}, 0x3fb8aa3b, {v}")
            each("v_exp_f32 {v}, {v}")
            a("s_nop 0")
            rnd()
        for dst, ptr in ((vS, 94), (vRR, 92)):
            a(f"""
            s_load_dwordx16 {sr(sWX, 16)}, s[{ptr}:{ptr + 1}], 0
            s_waitcnt lgkmcnt(0)
            """)
            for k in range(8):
                for jp in range(2):
                    wpair(sWX + 2 * k + jp)
                    for n, r in enumerate(rs):
                        pkmac(k == 0, dst + 4 * r + 2 * jp, vRB + 8 * n + k)
        for r in rs:
            for j in range(4):
                a(f"v_mul_f32 v{vS + 4 * r + j}, v{vT + 9}, v{vS + 4 * r + j}")
            for jp in range(2):
                y = vRR + 4 * r + 2 * jp
                a(f"""
                v_cvt_pk_bf16_f32 v{y}, v{y}, v{y + 1}
                v_and_b32 v{y + 1}, 0xffff0000, v{y}
                v_lshlrev_b32 v{y}, 16, v{y}
                """)

    a(f"""
    L_k3_basis:
    s_mov_b64 exec, -1
    s_waitcnt vmcnt({D})
    """)
    stamp(a, 5)
    global_max(a, vS, sUNIT)
    a(f"""
    v_mov_b32 v{vT + 9}, s{sUNIT}
    v_mul_f32 v{vT + 9}, 0x39808081, v{vT + 9}
    """)
    basis([0, 1])
    a(f"""
    s_cmp_eq_u32 s{sWAVE}, 0
    s_cbranch_scc1 L_k3_basis23
    """)
    basis([2])
    stamp(a, 6)
    a("""
    s_branch L_k3_basisback
    L_k3_basis23:
    """)
    basis([2, 3])
    stamp(a, 6)
    a("""
    s_branch L_k3_basisback
    L_k3_end:
    s_endpgm
    """)
    a.flush_tail()
    return name, nv, 96, LDS


HEADER = """; Three launches: partition by idx_in, gather + partition by idx_out, accumulate + epilogue.
"""


def build():
    a = Asm()
    ks = [k1(a), k2(a), k3(a)]
    out = HEADER
    for name, nv, ns, lds in ks:
        out += f"; @launch kernel={name} grid=({NB},1,1) block=(1024,1,1) lds={lds}\n"
    out += '.amdgcn_target "amdgcn-amd-amdhsa--gfx950"\n.text\n'
    out += a.text()
    out += '.section .rodata,"a"\n'
    for name, nv, ns, lds in ks:
        assert nv <= (127 if OPT["prof"] else 128), (name, nv)
        out += kernel_desc(name, 128 if OPT["prof"] else nv, 102 if OPT["prof"] else ns)
    return out


if __name__ == "__main__":
    path = sys.argv[1]
    for kv in sys.argv[2:]:
        k, v = kv.split("=")
        OPT[k] = v.replace("+", " ")
    open(path, "w").write(build())
```

```python
class Asm:
    def __init__(self):
        self.lines = []
        self.tail = []
        self._cur = self.lines
        self._uid = 0

    def __call__(self, s):
        for ln in s.strip("\n").split("\n"):
            ln = ln.strip()
            if not ln:
                continue
            if ln.endswith(":") or ln.startswith("."):
                self._cur.append(ln)
            else:
                self._cur.append("    " + ln)

    def label(self, name):
        self._cur.append(name + ":")

    def uid(self, prefix):
        self._uid += 1
        return f"L_{prefix}_{self._uid}"

    def begin_tail(self):
        self._cur = self.tail

    def end_tail(self):
        self._cur = self.lines

    def flush_tail(self):
        self.lines.extend(self.tail)
        self.tail = []
        self._cur = self.lines

    def text(self):
        return "\n".join(self.lines) + "\n"


def vr(base, n):
    return f"v[{base}:{base + n - 1}]"


def sr(base, n):
    return f"s[{base}:{base + n - 1}]"


def srd(a, dst, src, nbytes):
    a(f"""
    s_mov_b32 s{dst}, s{src}
    s_and_b32 s{dst + 1}, s{src + 1}, 0xffff
    s_mov_b32 s{dst + 2}, {nbytes}
    s_mov_b32 s{dst + 3}, 0x20000
    """)


def wave_scan(a, op, x):
    for ctl in ("row_shr:1 row_mask:0xf", "row_shr:2 row_mask:0xf", "row_shr:4 row_mask:0xf",
                "row_shr:8 row_mask:0xf", "row_bcast:15 row_mask:0xa", "row_bcast:31 row_mask:0xc"):
        a(f"""
        s_nop 1
        {op}_dpp v{x}, v{x}, v{x} {ctl} bank_mask:0xf
        """)


def kernel_header(a, name):
    a(f"""
    .globl {name}
    .p2align 8
    .type {name},@function
    {name}:
    """)


def kernel_desc(name, vgpr, sgpr):
    acc = (vgpr + 3) // 4 * 4
    return f""".p2align 6
.amdhsa_kernel {name}
  .amdhsa_next_free_vgpr {vgpr}
  .amdhsa_next_free_sgpr {sgpr}
  .amdhsa_accum_offset {acc}
  .amdhsa_group_segment_fixed_size 0
  .amdhsa_kernarg_size 112
  .amdhsa_user_sgpr_count 2
  .amdhsa_user_sgpr_kernarg_segment_ptr 1
  .amdhsa_system_sgpr_workgroup_id_x 1
  .amdhsa_float_denorm_mode_32 3
.end_amdhsa_kernel
"""


def code_prefetch(a, first, last, max_bytes, vtmp, stmp, wave=15):
    lab, anchor = a.uid("cpf"), a.uid("cpa")
    n = (max_bytes + 8191) // 8192
    a(f"""
    v_readfirstlane_b32 s{stmp + 2}, v0
    s_lshr_b32 s{stmp + 3}, s2, 3
    s_cmp_lg_u32 s{stmp + 2}, {wave * 64}
    s_cbranch_scc1 {lab}
    s_cmp_ge_u32 s{stmp + 3}, {n}
    s_cbranch_scc1 {lab}
    s_getpc_b64 s[{stmp}:{stmp + 1}]
    {anchor}:
    s_sub_u32 s{stmp}, s{stmp}, {anchor}-{first}
    s_subb_u32 s{stmp + 1}, s{stmp + 1}, 0
    v_and_b32 v{vtmp}, 63, v0
    v_lshlrev_b32 v{vtmp}, 7, v{vtmp}
    s_lshl_b32 s{stmp + 3}, s{stmp + 3}, 13
    v_add_u32 v{vtmp}, s{stmp + 3}, v{vtmp}
    v_min_u32 v{vtmp}, {last}-{first}-4, v{vtmp}
    global_load_dword v{vtmp}, v{vtmp}, s[{stmp}:{stmp + 1}]
    {lab}:
    """)
```

```python
import sys
from asmlib import Asm, vr, sr, srd, wave_scan, kernel_header, kernel_desc, code_prefetch

E = 800000
T = 12800000
NB = 256
SPAN = 3125
CB4 = 4 * 1374390
N1 = 12800
NT1 = T // N1

R1A = 0
R1B = 51200000
ROW1 = 4096 + 128
OFF1 = 76800000
CNT = 77900032
MAXS = CNT + 1024
DIR2 = MAXS + 1024
ROW2 = 65536 + 128
OFF2 = DIR2 + 65536
R2 = 94781440
WS_BYTES = 268435456
assert OFF1 + NB * ROW1 <= CNT and OFF2 + NB * ROW2 <= R2 and R2 % 128 == 0 and OFF2 % 128 == 0
assert R2 + (1 << 27) <= 240000000
PAD2 = 14336
FIX = 5
NS = 15
SEG = 63
MAGIC = 0x4C001000
TOPK = 0x13
QMAX = 4080
MAXFLOOR = 0x0880

OPT = dict(ld_in="nt", st1="sc1", ld1="", st2="sc1", ld2="", ld_m="", st_out="", prof="", d3="8", k1early="1", k2early="1", greedy="1", prio3="1", late3="1", pf1="1", pf2="1", pf3="1")
PROF = 240000000
VPROF = 127


def stamp(a, i, dyn=None):
    if not OPT["prof"]:
        return
    a("""
    s_memrealtime s[98:99]
    s_waitcnt lgkmcnt(0)
    """)
    if dyn is None:
        a(f"v_writelane_b32 v{VPROF}, s98, {i}")
    else:
        a(f"""
        s_lshl_b32 s99, s{dyn}, 2
        s_add_u32 m0, s99, {i}
        s_nop 0
        v_writelane_b32 v{VPROF}, s98, m0
        """)


def stamp_flush(a, kidx, sWS, sWAVE):
    if not OPT["prof"]:
        return
    stamp(a, 2)
    a("s_waitcnt vmcnt(0)")
    stamp(a, 3)
    lab = a.uid("pf")
    a(f"""
    s_mov_b64 exec, -1
    s_and_b32 s98, s{sWAVE}, 7
    s_cmp_lg_u32 s98, 0
    s_cbranch_scc1 {lab}
    s_lshr_b32 s98, s{sWAVE}, 3
    s_lshl_b32 s99, s2, 1
    s_add_u32 s98, s98, s99
    s_lshl_b32 s98, s98, 8
    s_add_u32 s98, s98, {PROF + kidx * 512 * 256}
    v_and_b32 v0, 63, v0
    v_lshlrev_b32 v0, 2, v0
    buffer_store_dword v{VPROF}, v0, s[{sWS}:{sWS + 3}], s98 offen
    {lab}:
    """)


def slice_loads(a, sM, sROW, sT, vX4, vTMP, dst):
    a(f"""
    s_and_b32 s{sT}, s{sROW}, -2
    s_lshl_b32 s{sT}, s{sT}, 3
    v_mov_b32 v{vTMP}, 0x40000000
    v_cmp_gt_u32 vcc, {(SPAN + 1) // 2 - 1024}, v0
    buffer_load_dwordx4 {vr(dst, 4)}, v{vX4}, {sr(sM, 4)}, s{sT} offen {OPT['ld_m']}
    s_add_u32 s{sT}, s{sT}, 16384
    v_cndmask_b32 v{vTMP}, v{vTMP}, v{vX4}, vcc
    buffer_load_dwordx4 {vr(dst + 4, 4)}, v{vTMP}, {sr(sM, 4)}, s{sT} offen {OPT['ld_m']}
    """)


def prefix_core(a, c, z, b, x, vX4, HOFF, POFF):
    a(f"""
    ds_write_b128 v{vX4}, {vr(z, 4)} offset:{HOFF}
    v_add_u32 v{b + 2}, v{c}, v{c + 1}
    v_add_u32 v{b + 3}, v{b + 2}, v{c + 2}
    v_add_u32 v{x + 1}, v{b + 3}, v{c + 3}
    v_mov_b32 v{x}, v{x + 1}
    """)
    wave_scan(a, "v_add_u32", x)
    a(f"""
    v_sub_u32 v{b}, v{x}, v{x + 1}
    v_add_u32 v{b + 1}, v{b}, v{c}
    v_add_u32 v{b + 2}, v{b}, v{b + 2}
    v_add_u32 v{b + 3}, v{b}, v{b + 3}
    ds_write_b128 v{vX4}, {vr(b, 4)} offset:{POFF}
    """)


def global_max(a, v4, sDST):
    a(f"""
    v_max3_u32 v{v4}, v{v4}, v{v4 + 1}, v{v4 + 2}
    v_max_u32 v{v4}, v{v4}, v{v4 + 3}
    """)
    wave_scan(a, "v_max_u32", v4)
    a(f"""
    s_nop 0
    v_readlane_b32 s{sDST}, v{v4}, 63
    s_nop 3
    s_max_u32 s{sDST}, s{sDST}, {MAXFLOOR}
    s_lshl_b32 s{sDST}, s{sDST}, 16
    """)


def k1(a):
    name = "part_in_kernel"
    kernel_header(a, name)
    HOFF, POFF, MISC, BUF = 0, 1024, 2048, 2176
    BUFB = BUF + N1 * 4
    sIN, sOUT, sANG, sWS, sM = 12, 16, 20, 24, 40
    sWAVE, sCB, sT, sA, sB, sU, sPOS = 3, 28, 29, 30, 31, 36, 37
    sTI = [32, 33, 34, 35]
    vX4, vX4b, vX2, vTI, vTA, vFOUR, vF = 1, 2, 3, 4, 5, 6, 7
    sets = []
    base = 8
    for s in range(2):
        sets.append(dict(i=base, o=base + 14, g=base + 28))
        base += 36
    vRANK = base
    vROW = vRANK + 13
    vSTG = vRANK + 14
    vC = vSTG + 20
    nv = vC + 4
    ld = OPT["ld_in"]
    a(f"""
    s_cmp_ge_u32 s2, {NB}
    s_cbranch_scc1 L_k1_end
    """)
    if OPT["pf1"] == "1":
        code_prefetch(a, "part_in_kernel", "L_text_end", 49152, nv, 40)
        nv += 1
    a(f"""
    s_load_dwordx4 s[4:7], s[0:1], 8
    s_load_dwordx2 s[8:9], s[0:1], 32
    s_load_dwordx2 s[10:11], s[0:1], 104
    s_load_dwordx2 s[38:39], s[0:1], 0
    s_load_dwordx2 s[44:45], s[0:1], 48
    v_lshrrev_b32 v{vFOUR}, 6, v0
    v_lshlrev_b32 v{vX4}, 4, v0
    v_readfirstlane_b32 s{sWAVE}, v{vFOUR}
    v_add_u32 v{vX4b}, 0x10000, v{vX4}
    v_lshlrev_b32 v{vX2}, 3, v0
    v_lshlrev_b32 v{vTI}, 2, v0
    v_lshlrev_b32 v{vTA}, 1, v0
    v_mov_b32 v{vFOUR}, 0x40000000
    v_cmp_gt_u32 vcc, 0x200, v0
    v_mov_b32 v{vSTG}, 0
    s_mov_b32 s{sCB}, {CB4}
    v_cndmask_b32 v{vTI}, v{vFOUR}, v{vTI}, vcc
    v_cndmask_b32 v{vTA}, v{vFOUR}, v{vTA}, vcc
    v_mov_b32 v{vFOUR}, 4
    v_mul_u32_u24 v{vROW}, {4 * ROW1}, v0
    s_mov_b32 s{sTI[0]}, s2
    s_add_u32 s{sTI[1]}, s2, 256
    s_add_u32 s{sTI[2]}, s2, 512
    s_add_u32 s{sTI[3]}, s2, 768
    s_and_b32 s{sPOS}, s2, 7
    s_lshl_b32 s{sPOS}, s{sPOS}, 7
    s_lshr_b32 s{sT}, s2, 3
    s_add_u32 s{sPOS}, s{sPOS}, s{sT}
    s_cmp_eq_u32 s{sT}, 31
    s_cselect_b32 s{sT}, 32, 0
    s_add_u32 s{sPOS}, s{sPOS}, s{sT}
    s_lshl_b32 s{sPOS}, s{sPOS}, 2
    s_add_u32 s{sPOS}, s{sPOS}, {OFF1}
    s_waitcnt lgkmcnt(0)
    s_load_dword s46, s[44:45], 0
    """)
    stamp(a, 0)
    srd(a, sIN, 4, T * 4)
    srd(a, sOUT, 6, T * 4)
    srd(a, sANG, 8, T * 2)
    srd(a, sWS, 10, WS_BYTES)
    srd(a, sM, 38, E * 8)

    def load_group(k, g):
        st = sets[k % 2]
        if g == 0:
            a(f"""
            s_mul_i32 s{sA}, s{sTI[k]}, {N1 * 4}
            s_mul_i32 s{sB}, s{sTI[k]}, {N1 * 2}
            """)
        if g < 3:
            a(f"""
            buffer_load_dwordx4 {vr(st['i'] + 4 * g, 4)}, v{vX4}, {sr(sIN, 4)}, s{sA} offen {ld}
            buffer_load_dwordx4 {vr(st['o'] + 4 * g, 4)}, v{vX4}, {sr(sOUT, 4)}, s{sA} offen {ld}
            buffer_load_dwordx2 {vr(st['g'] + 2 * g, 2)}, v{vX2}, {sr(sANG, 4)}, s{sB} offen {ld}
            s_add_u32 s{sA}, s{sA}, 16384
            s_add_u32 s{sB}, s{sB}, 8192
            """)
        else:
            a(f"""
            buffer_load_dword v{st['i'] + 12}, v{vTI}, {sr(sIN, 4)}, s{sA} offen {ld}
            buffer_load_dword v{st['o'] + 12}, v{vTI}, {sr(sOUT, 4)}, s{sA} offen {ld}
            buffer_load_ushort v{st['g'] + 6}, v{vTA}, {sr(sANG, 4)}, s{sB} offen {ld}
            """)

    for g in range(4):
        load_group(0, g)
    a(f"""
    s_cmp_lg_u32 s{sWAVE}, 0
    s_cbranch_scc1 L_k1_noinit
    v_mov_b32 v{vSTG + 1}, 0
    v_mov_b32 v{vSTG + 2}, 0
    v_mov_b32 v{vSTG + 3}, 0
    ds_write_b128 v{vX4}, {vr(vSTG, 4)} offset:{HOFF}
    ds_write_b32 v{vSTG}, v{vSTG} offset:{MISC}
    s_cmp_lg_u32 s2, 0
    s_cbranch_scc1 L_k1_noinit
    s_mov_b32 s{sT}, {CNT}
    buffer_store_dword v{vSTG}, v{vTI}, {sr(sWS, 4)}, s{sT} offen
    L_k1_noinit:
    s_waitcnt lgkmcnt(0)
    s_lshl_b32 s46, s46, 16
    v_mov_b32 v{vF}, s46
    s_barrier
    """)
    early = OPT["k1early"] == "1"
    if not early:
        for g in range(4):
            load_group(1, g)

    def copy_reads():
        lab = a.uid("cr")
        for i in range(4):
            a(f"ds_read_b128 {vr(vSTG + 4 * i, 4)}, v{vX4} offset:{BUF + i * 16384}")
        a(f"""
        s_cmp_ge_u32 s{sWAVE}, 11
        s_cbranch_scc1 {lab}
        ds_read_b128 {vr(vSTG + 16, 4)}, v{vX4b} offset:{BUF}
        {lab}:
        """)

    def copy_store(i, sTile):
        st = OPT["st1"]
        if i < 3:
            a(f"""
            s_mul_i32 s{sT}, s{sTile}, {N1 * 4}
            s_add_u32 s{sT}, s{sT}, {R1A + i * 16384}
            buffer_store_dwordx4 {vr(vSTG + 4 * i, 4)}, v{vX4}, {sr(sWS, 4)}, s{sT} offen {st}
            """)
        elif i == 3:
            a(f"""
            s_mul_i32 s{sT}, s{sTile}, {N1 * 4}
            s_add_u32 s{sT}, s{sT}, {R1A + 49152}
            s_mul_i32 s{sU}, s{sTile}, {N1 * 2}
            s_add_u32 s{sU}, s{sU}, {R1B - 2048}
            s_cmp_lt_u32 s{sWAVE}, 2
            s_cselect_b32 s{sT}, s{sT}, s{sU}
            buffer_store_dwordx4 {vr(vSTG + 12, 4)}, v{vX4}, {sr(sWS, 4)}, s{sT} offen {st}
            """)
        else:
            lab = a.uid("cs")
            a(f"""
            s_cmp_ge_u32 s{sWAVE}, 11
            s_cbranch_scc1 {lab}
            s_mul_i32 s{sT}, s{sTile}, {N1 * 2}
            s_add_u32 s{sT}, s{sT}, {R1B + 14336}
            buffer_store_dwordx4 {vr(vSTG + 16, 4)}, v{vX4}, {sr(sWS, 4)}, s{sT} offen {st}
            {lab}:
            """)

    def hist(st, js):
        for j in js:
            a(f"v_mul_hi_u32_u24 v{vRANK + j}, s{sCB}, v{st['i'] + j}")
        for j in js:
            a(f"v_lshl_or_b32 v{st['o'] + j}, v{st['i'] + j}, 20, v{st['o'] + j}")
        for j in js:
            a(f"v_and_b32 v{st['i'] + j}, 0x3fc, v{vRANK + j}")
        for j in js:
            a(f"ds_add_rtn_u32 v{vRANK + j}, v{st['i'] + j}, v{vFOUR} offset:{HOFF}")

    def cosines(regs):
        ops = ["v_lshlrev_b32 {x}, 16, {g}", "v_and_b32 {y}, 0xffff0000, {g}",
               f"v_mul_f32 {{x}}, v{vF}, {{x}}", f"v_mul_f32 {{y}}, v{vF}, {{y}}",
               "v_cvt_pk_bf16_f32 {g}, {x}, {y}",
               "v_lshlrev_b32 {x}, 16, {g}", "v_and_b32 {y}, 0xffff0000, {g}",
               "v_mul_f32 {x}, 0.15915494, {x}", "v_mul_f32 {y}, 0.15915494, {y}",
               "v_fract_f32 {x}, {x}", "v_fract_f32 {y}, {y}",
               "v_cos_f32 {x}, {x}", "v_cos_f32 {y}, {y}"]
        for op in ops:
            for n, g in enumerate(regs):
                a(op.format(g=f"v{g}", x=f"v{vC + 2 * n}", y=f"v{vC + 2 * n + 1}"))
        a("s_nop 0")
        for n, g in enumerate(regs):
            a(f"v_cvt_pk_f16_f32 v{g}, v{vC + 2 * n}, v{vC + 2 * n + 1}")

    def phase_h(k):
        st = sets[k % 2]
        if k > 0:
            copy_reads()
            a(f"s_waitcnt vmcnt({[0, 12, 12, 2][k]})")
        for g in range(3):
            if k == 0:
                a(f"s_waitcnt vmcnt({10 if early else 24 - 3 * g - 2})")
            hist(st, range(4 * g, 4 * g + 4))
            if k == 0 and early:
                load_group(1, g)
            if k > 0:
                if g == 0:
                    a("s_waitcnt lgkmcnt(4)")
                    copy_store(0, sTI[k - 1])
                    copy_store(1, sTI[k - 1])
                elif g == 1:
                    copy_store(2, sTI[k - 1])
                    copy_store(3, sTI[k - 1])
                else:
                    copy_store(4, sTI[k - 1])
            if k == 0:
                a(f"s_waitcnt vmcnt({12 if early else 24 - 3 * g - 3})")
            cosines([st['g'] + 2 * g, st['g'] + 2 * g + 1])
        lab = a.uid("ht")
        if k == 0:
            if early:
                load_group(1, 3)
            a("s_waitcnt vmcnt(12)")
        a(f"""
        s_cmp_ge_u32 s{sWAVE}, 8
        s_cbranch_scc1 {lab}
        """)
        hist(st, [12])
        cosines([st['g'] + 6])
        a(f"""
        {lab}:
        s_waitcnt lgkmcnt(0)
        s_barrier
        """)

    def phase_p(k):
        lab = a.uid("p")
        c, z, b, x = vSTG, vSTG + 4, vSTG + 8, vSTG + 12
        a(f"""
        s_cmp_lg_u32 s{sWAVE}, 0
        s_cbranch_scc1 {lab}
        ds_read_b128 {vr(c, 4)}, v{vX4} offset:{HOFF}
        v_mov_b32 v{z}, 0
        v_mov_b32 v{z + 1}, 0
        v_mov_b32 v{z + 2}, 0
        v_mov_b32 v{z + 3}, 0
        s_waitcnt lgkmcnt(0)
        """)
        prefix_core(a, c, z, b, x, vX4, HOFF, POFF)
        a(f"""
        s_waitcnt lgkmcnt(0)
        {lab}:
        s_barrier
        """)

    def offsets_store(k):
        lab = a.uid("os")
        c, b = vSTG, vSTG + 8
        a(f"""
        s_cmp_lg_u32 s{sWAVE}, 0
        s_cbranch_scc1 {lab}
        s_add_u32 s{sT}, s{sPOS}, {k * 128}
        """)
        for j in range(4):
            a(f"v_lshl_or_b32 v{c + j}, v{c + j}, 16, v{b + j}")
        for j in range(4):
            a(f"buffer_store_dword v{c + j}, v{vROW}, {sr(sWS, 4)}, s{sT} offen")
            if j < 3:
                a(f"s_add_u32 s{sT}, s{sT}, {ROW1}")
        a(f"{lab}:")

    def scatter(st, js):
        for j in js:
            a(f"v_add_u32 v{vRANK + j}, v{st['i'] + j}, v{vRANK + j}")
        for j in js:
            a(f"ds_write_b32 v{vRANK + j}, v{st['o'] + j} offset:{BUF}")
        for j in js:
            a(f"v_lshrrev_b32 v{st['i'] + j}, 1, v{vRANK + j}")
        for j in js:
            op = "ds_write_b16" if j % 2 == 0 else "ds_write_b16_d16_hi"
            a(f"{op} v{st['i'] + j}, v{st['g'] + j // 2} offset:{BUFB}")

    vM8 = sets[0]['i']

    def phase_s(k):
        st = sets[k % 2]
        for j in range(13):
            a(f"ds_read_b32 v{st['i'] + j}, v{st['i'] + j} offset:{POFF}")
        offsets_store(k)
        a("s_waitcnt lgkmcnt(0)")
        for g in range(3):
            scatter(st, range(4 * g, 4 * g + 4))
            if k + 2 < 4:
                load_group(k + 2, g)
        lab = a.uid("st")
        a(f"""
        s_cmp_ge_u32 s{sWAVE}, 8
        s_cbranch_scc1 {lab}
        """)
        scatter(st, [12])
        a(f"{lab}:")
        if k + 2 < 4:
            load_group(k + 2, 3)
        if k == 2:
            a(f"s_mul_i32 s{sU}, s2, {SPAN}")
            slice_loads(a, sM, sU, sT, vX4, vC, vM8)
        a("""
        s_waitcnt lgkmcnt(0)
        s_barrier
        """)

    for k in range(4):
        if k == 3:
            a(f"""
            s_cmp_lt_u32 s{sTI[3]}, {NT1}
            s_cbranch_scc1 L_k1_t3
            s_mov_b32 s{sTI[3]}, s{sTI[2]}
            s_branch L_k1_final
            L_k1_t3:
            """)
        stamp(a, 4 + 4 * k)
        phase_h(k)
        stamp(a, 5 + 4 * k)
        phase_p(k)
        stamp(a, 6 + 4 * k)
        phase_s(k)
    a("L_k1_final:")
    stamp(a, 1)
    copy_reads()
    a("s_waitcnt lgkmcnt(0)")
    for i in range(5):
        copy_store(i, sTI[3])
    a("s_waitcnt vmcnt(4)")
    for i in range(8):
        a(f"v_and_b32 v{vM8 + i}, 0x7fff7fff, v{vM8 + i}")
    for d, x, y in ((0, 0, 1), (2, 2, 3), (4, 4, 5), (6, 6, 7), (0, 0, 2), (4, 4, 6), (0, 0, 4)):
        a(f"v_pk_max_u16 v{vM8 + d}, v{vM8 + x}, v{vM8 + y}")
    a(f"""
    v_lshrrev_b32 v{vC}, 16, v{vM8}
    v_and_b32 v{vM8}, 0xffff, v{vM8}
    v_max_u32 v{vC}, v{vC}, v{vM8}
    v_mov_b32 v{vC + 1}, 0
    """)
    wave_scan(a, "v_max_u32", vC)
    a(f"""
    s_lshl_b64 exec, 1, 63
    ds_max_u32 v{vC + 1}, v{vC} offset:{MISC}
    s_waitcnt lgkmcnt(0)
    s_barrier
    s_cmp_lg_u32 s{sWAVE}, 0
    s_cbranch_scc1 L_k1_nomax
    ds_read_b32 v{vC}, v{vC + 1} offset:{MISC}
    s_lshl_b32 s{sT}, s2, 2
    s_add_u32 s{sT}, s{sT}, {MAXS}
    s_waitcnt lgkmcnt(0)
    buffer_store_dword v{vC}, v{vC + 1}, {sr(sWS, 4)}, s{sT} offen
    L_k1_nomax:
    """)
    stamp_flush(a, 0, sWS, sWAVE)
    a("""
    L_k1_end:
    s_endpgm
    """)
    return name, nv, 48, BUFB + N1 * 2


def refill_code(a, vIDX, vLEN, vW, vT, sMASK, pend=None):
    a(f"""
    s_mov_b64 exec, -1
    v_add_u32 v{vIDX}, {SEG}, v{vIDX}
    v_subrev_u32 v{vLEN}, {SEG}, v{vLEN}
    v_max_i32 v{vLEN}, 0, v{vLEN}
    """)
    if pend is not None:
        cur, pen = pend
        a(f"""
        v_cmp_eq_u32 vcc, 0, v{vLEN}
        s_nop 1
        """)
        for c, p in zip(cur, pen):
            a(f"v_cndmask_b32 v{c}, v{c}, v{p}, vcc")
        a(f"v_cndmask_b32 v{pen[1]}, v{pen[1]}, 0, vcc")
    a(f"""
    v_min_u32 v{vT}, {SEG}, v{vLEN}
    v_cmp_lt_u32 {sr(sMASK, 2)}, 0, v{vLEN}
    v_lshl_or_b32 v{vW}, v{vIDX}, 6, v{vT}
    s_nop 3
    """)


def k2(a):
    name = "gather_part_kernel"
    kernel_header(a, name)
    HOFF, POFF, MISC, SLICE, SORT = 0, 1024, 2048, 4096, 36864
    LDS = SORT + NS * 1024 * 8
    sWAVE, sB = 3, 4
    sWS, sM = 8, 12
    sK, sCB, sDONE, sNOLD = 16, 17, 18, 19
    sMASK, sQUOTA, sNT, sKT, sT, sU, sL = 20, 22, 23, 24, 25, 26, 27
    sBASE, sNPREV, sR1B, sBPREV, sQ = 28, 29, 31, 64, 65
    sW = [32, 48]
    sCM = [66, 68, 70]
    vLANE, vX4, vXA, vXB, vT2, vEIGHT, vIDX, vLEN, vW, vZERO, vROW = 1, 2, 3, 4, 5, 6, 7, 8, 9, 10, 11
    vT = 12
    vSTG = 16
    vR = [28, 28 + 2 * NS]
    vZ = 28 + 4 * NS
    nv = vZ + 2 * NS
    A = lambda st, s: vR[st] + 2 * s
    G = lambda st, s: vR[st] + 2 * s + 1
    Z = lambda s: vZ + 2 * s
    ld1 = OPT["ld1"]

    a(f"""
    s_cmp_ge_u32 s2, {NB}
    s_cbranch_scc1 L_k2_end
    """)
    if OPT["pf2"] == "1":
        code_prefetch(a, "gather_part_kernel", "L_k2_last", 24576, nv, 72)
        nv += 1
    a(f"""
    s_load_dwordx2 s[6:7], s[0:1], 104
    s_load_dwordx2 s[32:33], s[0:1], 0
    v_lshrrev_b32 v{vEIGHT}, 6, v0
    v_and_b32 v{vLANE}, 63, v0
    v_readfirstlane_b32 s{sWAVE}, v{vEIGHT}
    s_and_b32 s{sB}, s2, 7
    s_lshl_b32 s{sB}, s{sB}, 5
    s_lshr_b32 s{sT}, s2, 3
    s_add_u32 s{sB}, s{sB}, s{sT}
    v_lshlrev_b32 v{vX4}, 4, v0
    v_lshlrev_b32 v{vT2}, 1, v0
    v_lshlrev_b32 v{vT + 2}, 2, v0
    v_lshlrev_b32 v{vT + 3}, 4, v{vLANE}
    v_mov_b32 v{vZERO}, 0
    v_mov_b32 v{vEIGHT}, 8
    s_mul_i32 s{sT}, s{sB}, {ROW1}
    s_add_u32 s{sT}, s{sT}, {OFF1}
    s_mov_b32 s{sU}, {MAXS}
    s_waitcnt lgkmcnt(0)
    """)
    stamp(a, 0)
    srd(a, sWS, 6, WS_BYTES)
    a(f"""
    buffer_load_dword v{vLEN}, v{vT + 2}, {sr(sWS, 4)}, s{sT} offen
    buffer_load_dwordx4 {vr(vZ, 4)}, v{vT + 3}, {sr(sWS, 4)}, s{sU} offen
    """)
    srd(a, sM, 32, E * 8)
    a(f"s_mul_i32 s{sU}, s{sB}, {SPAN}")
    slice_loads(a, sM, sU, sT, vX4, vT + 1, vSTG)
    a(f"""
    ds_write_b32 v{vT + 2}, v{vZERO}
    s_and_b32 s{sU}, s{sU}, -2
    v_add_u32 v{vXA}, {SORT}, v{vX4}
    v_add_u32 v{vXB}, {SORT + 65536}, v{vX4}
    v_mul_u32_u24 v{vROW}, {4 * ROW2}, v{vLANE}
    s_mov_b32 s{sK}, {MAGIC}
    s_mov_b32 s{sCB}, {CB4}
    s_mov_b32 s{sR1B}, {R1B}
    s_mov_b32 s{sDONE}, 0
    s_mov_b32 s{sNOLD}, 0
    v_add_u32 v{vSTG + 8}, s{sU}, v{vT2}
    v_and_b32 v{vSTG + 8}, 0xfff, v{vSTG + 8}
    v_lshlrev_b32 v{vSTG + 8}, 3, v{vSTG + 8}
    v_xor_b32 v{vSTG + 9}, 0x4000, v{vSTG + 8}
    v_and_b32 v{vT}, 31, v0
    v_bfe_u32 v{vT + 1}, v0, 5, 2
    v_cmp_eq_u32 vcc, 31, v{vT}
    v_lshrrev_b32 v{vT + 2}, 7, v0
    v_lshl_add_u32 v{vT}, v{vT}, 3, v{vT + 2}
    v_subb_co_u32 v{vT + 1}, vcc, v{vT + 1}, 0, vcc
    v_lshl_add_u32 v{vIDX}, v{vT + 1}, 8, v{vT}
    v_cmp_gt_u32 vcc, {NT1}, v{vIDX}
    v_mul_u32_u24 v{vIDX}, {N1}, v{vIDX}
    """)
    for st in range(2):
        for s in range(NS):
            a(f"v_mov_b32 v{A(st, s)}, 0")
            a(f"v_mov_b32 v{G(st, s)}, 0")
    a(f"""
    s_waitcnt vmcnt(3)
    v_cndmask_b32 v{vLEN}, 0, v{vLEN}, vcc
    v_bfe_u32 v{vT}, v{vLEN}, 2, 14
    v_lshrrev_b32 v{vLEN}, 18, v{vLEN}
    v_add_u32 v{vIDX}, v{vIDX}, v{vT}
    v_add_u32 v{vT + 1}, {SEG - 1}, v{vLEN}
    v_mul_u32_u24 v{vT + 1}, 16645, v{vT + 1}
    v_lshrrev_b32 v{vT + 1}, 20, v{vT + 1}
    v_min_u32 v{vT + 2}, {SEG}, v{vLEN}
    v_cmp_lt_u32 {sr(sMASK, 2)}, 0, v{vLEN}
    v_lshl_or_b32 v{vW}, v{vIDX}, 6, v{vT + 2}
    """)
    wave_scan(a, "v_add_u32", vT + 1)
    a(f"""
    s_nop 0
    v_readlane_b32 s{sT}, v{vT + 1}, 63
    s_nop 3
    s_add_u32 s{sQUOTA}, s{sT}, {FIX - 1}
    s_mul_i32 s{sQUOTA}, s{sQUOTA}, 52429
    s_lshr_b32 s{sQUOTA}, s{sQUOTA}, 18
    s_add_u32 s{sNT}, s{sT}, {NS - 1}
    s_mul_i32 s{sNT}, s{sNT}, 34953
    s_lshr_b32 s{sNT}, s{sNT}, 19
    """)

    def pop(st, s):
        back, stub, empty, issue = a.uid("pb"), a.uid("pr"), a.uid("pe"), a.uid("pi")
        w = sW[st] + s
        if s >= 12 and OPT["greedy"] != "1":
            a(f"""
            s_cmp_le_u32 s{sQUOTA}, {s}
            s_cbranch_scc1 {empty}
            """)
        a(f"""
        s_cmp_eq_u64 {sr(sMASK, 2)}, 0
        s_cbranch_scc1 {stub}
        {back}:
        s_ff1_i32_b64 s{sL}, {sr(sMASK, 2)}
        s_bitset0_b64 {sr(sMASK, 2)}, s{sL}
        v_readlane_b32 s{w}, v{vW}, s{sL}
        s_lshr_b32 s{sT}, s{w}, 6
        s_bfm_b64 exec, s{w}, 0
        v_add_lshl_u32 v{A(st, s)}, s{sT}, v{vLANE}, 2
        v_lshrrev_b32 v{G(st, s)}, 1, v{A(st, s)}
        {issue}:
        buffer_load_dword v{A(st, s)}, v{A(st, s)}, {sr(sWS, 4)}, 0 offen {ld1}
        buffer_load_ushort v{G(st, s)}, v{G(st, s)}, {sr(sWS, 4)}, s{sR1B} offen {ld1}
        """)
        a.begin_tail()
        a(f"""
        {stub}:
        s_cmp_lg_u32 s{sDONE}, 0
        s_cbranch_scc1 {empty}
        """)
        refill_code(a, vIDX, vLEN, vW, vT + 3, sMASK)
        a(f"""
        s_cmp_eq_u64 {sr(sMASK, 2)}, 0
        s_cbranch_scc0 {back}
        s_mov_b32 s{sDONE}, 1
        {empty}:
        s_mov_b32 s{w}, 0
        s_mov_b64 exec, 0
        s_branch {issue}
        """)
        a.end_tail()

    stamp(a, 60)
    for s in range(NS):
        pop(0, s)
    a("s_mov_b64 exec, -1")
    wave_scan(a, "v_add_u32", vT)
    a(f"""
    v_mov_b32 v{vT + 1}, s{sNT}
    s_waitcnt lgkmcnt(0)
    s_barrier
    s_lshl_b64 exec, 1, 63
    ds_max_u32 v{vZERO}, v{vT + 1} offset:{MISC}
    ds_add_u32 v{vZERO}, v{vT} offset:{MISC + 4}
    """)
    for s in range(NS):
        pop(1, s)
    a(f"""
    s_mov_b64 exec, -1
    s_waitcnt vmcnt({4 * NS})
    """)
    stamp(a, 61)
    global_max(a, vZ, sT)
    a(f"""
    v_rcp_f32 v{vT}, s{sT}
    s_nop 0
    v_mul_f32 v{vT}, {float(QMAX * 4)}, v{vT}
    """.replace(str(float(QMAX * 4)), "0x467f0000"))
    for i in range(8):
        a(f"""
        v_lshlrev_b32 v{vT + 2}, 16, v{vSTG + i}
        v_and_b32 v{vT + 3}, 0xffff0000, v{vSTG + i}
        v_mul_f32 v{vT + 2}, v{vT}, v{vT + 2}
        v_mul_f32 v{vT + 3}, v{vT}, v{vT + 3}
        v_cvt_pk_f16_f32 v{vSTG + i}, v{vT + 2}, v{vT + 3}
        """)
    a(f"""
    ds_write_b128 v{vSTG + 8}, {vr(vSTG, 4)} offset:{SLICE}
    ds_write_b128 v{vSTG + 9}, {vr(vSTG + 4, 4)} offset:{SLICE}
    s_waitcnt lgkmcnt(0)
    s_barrier
    ds_read_b64 {vr(vT, 2)}, v{vZERO} offset:{MISC}
    s_waitcnt lgkmcnt(0)
    v_readfirstlane_b32 s{sNT}, v{vT}
    v_readfirstlane_b32 s{sBASE}, v{vT + 1}
    s_nop 3
    s_max_u32 s{sNT}, s{sNT}, {FIX}
    s_mul_i32 s{sT}, s{sB}, {PAD2}
    s_add_u32 s{sBASE}, s{sBASE}, s{sT}
    s_add_u32 s{sBASE}, s{sBASE}, 15
    s_and_b32 s{sBASE}, s{sBASE}, -16
    s_mov_b32 s{sKT}, 0
    s_mov_b32 s{sNPREV}, 0
    s_mov_b32 s{sBPREV}, {R2}
    """)

    def copy_reads(chunks, regs, masks):
        a("s_mov_b64 exec, -1")
        for i, m in zip(chunks, masks):
            a(f"""
            s_sub_i32 s{sT}, s{sNPREV}, {i * 2048}
            v_cmp_gt_i32 {sr(m, 2)}, s{sT}, v{vT2}
            """)
        for i, r, m in zip(chunks, regs, masks):
            addr = vXA if i < 4 else vXB
            a(f"""
            s_mov_b64 exec, {sr(m, 2)}
            ds_read_b128 {vr(r, 4)}, v{addr} offset:{(i % 4) * 16384}
            """)

    def copy_stores(chunks, regs, masks):
        for i, r, m in zip(chunks, regs, masks):
            lab = a.uid("cs")
            a(f"""
            s_mov_b64 exec, {sr(m, 2)}
            s_cbranch_execz {lab}
            s_add_u32 s{sT}, s{sBPREV}, {i * 16384}
            buffer_store_dwordx4 {vr(r, 4)}, v{vX4}, {sr(sWS, 4)}, s{sT} offen {OPT['st2']}
            {lab}:
            """)

    def gathers(st, bt):
        for s in bt:
            a(f"""
            s_bfm_b64 exec, s{sW[st] + s}, 0
            v_lshrrev_b32 v{Z(s)}, 17, v{A(st, s)}
            v_and_b32 v{Z(s)}, 0x7ff8, v{Z(s)}
            ds_read_b64 {vr(Z(s), 2)}, v{Z(s)} offset:{SLICE}
            """)

    def encode(st, bt):
        for s in bt:
            z, aa, g = Z(s), A(st, s), G(st, s)
            a(f"""
            s_bfm_b64 exec, s{sW[st] + s}, 0
            v_fma_mix_f32 v{vT}, v{z}, v{g}, s{sK} op_sel_hi:[1,1,0]
            v_fma_mix_f32 v{vT + 1}, v{z}, v{g}, s{sK} op_sel:[1,0,0] op_sel_hi:[1,1,0]
            v_fma_mix_f32 v{vT + 2}, v{z + 1}, v{g}, s{sK} op_sel_hi:[1,1,0]
            v_fma_mix_f32 v{vT + 3}, v{z + 1}, v{g}, s{sK} op_sel:[1,0,0] op_sel_hi:[1,1,0]
            v_and_b32 v{g}, 0xfffff, v{aa}
            v_lshl_add_u32 v{z}, v{vT + 1}, 13, v{vT}
            v_mul_hi_u32_u24 v{g}, s{sCB}, v{g}
            v_lshl_add_u32 v{z + 1}, v{vT + 3}, 13, v{vT + 2}
            v_lshrrev_b32 v{vT}, 6, v{aa}
            v_lshl_add_u32 v{z}, v{aa}, 26, v{z}
            v_and_b32 v{aa}, 0x3fc, v{g}
            v_lshl_add_u32 v{z + 1}, v{vT}, 26, v{z + 1}
            ds_add_rtn_u32 v{g}, v{aa}, v{vEIGHT} offset:{HOFF}
            """)

    def phase_h(st):
        greedy = OPT["greedy"] == "1"
        if greedy:
            b0, b1, b2, b3 = range(0, 5), range(5, 10), range(10, 15), None
        else:
            b0, b1, b2, b3 = range(0, 5), range(5, 9), range(9, 13), range(13, 15)
        regs = [vSTG, vSTG + 4, vSTG + 8]
        lab, w0, w1, short = a.uid("h3"), a.uid("hw0"), a.uid("hw1"), a.uid("hs")
        copy_reads([0, 1, 2], regs, sCM)
        a(f"""
        s_cmp_lg_u32 s{sNOLD}, 0
        s_cbranch_scc1 {w0}
        s_waitcnt vmcnt({2 * NS})
        {w1}:
        """)
        a.begin_tail()
        a(f"""
        {w0}:
        s_waitcnt vmcnt(0)
        s_branch {w1}
        """)
        a.end_tail()
        gathers(st, b0)
        a(f"""
        s_cmp_eq_u32 s{sW[st] + 5}, 0
        s_cbranch_scc1 {short}
        """)
        gathers(st, b1)
        a(f"s_waitcnt lgkmcnt({len(b1)})")
        copy_stores([0, 1, 2], regs, sCM)
        copy_reads([3, 4, 5], regs, sCM)
        encode(st, b0)
        gathers(st, b2)
        a(f"s_waitcnt lgkmcnt({len(b0) + len(b2)})")
        copy_stores([3, 4, 5], regs, sCM)
        copy_reads([6, 7], regs, sCM)
        encode(st, b1)
        a(f"s_waitcnt lgkmcnt({len(b1)})")
        copy_stores([6, 7], regs, sCM)
        encode(st, b2)
        if b3:
            a(f"""
            s_cmp_eq_u32 s{sW[st] + 13}, 0
            s_cbranch_scc1 {lab}
            """)
            gathers(st, b3)
            a("s_waitcnt lgkmcnt(0)")
            encode(st, b3)
        a(f"""
        {lab}:
        s_mov_b64 exec, -1
        s_waitcnt lgkmcnt(0)
        s_barrier
        """)
        a.begin_tail()
        a(f"""
        {short}:
        s_waitcnt lgkmcnt(0)
        """)
        copy_stores([0, 1, 2], regs, sCM)
        copy_reads([3, 4, 5], regs, sCM)
        a("s_waitcnt lgkmcnt(0)")
        copy_stores([3, 4, 5], regs, sCM)
        copy_reads([6, 7], regs, sCM)
        encode(st, b0)
        a(f"s_waitcnt lgkmcnt({len(b0)})")
        copy_stores([6, 7], regs, sCM)
        a(f"s_branch {lab}")
        a.end_tail()

    c, z4, b4, x = vSTG, vSTG + 4, vSTG + 8, vT

    def phase_p():
        lab = a.uid("p")
        a(f"""
        s_cmp_lg_u32 s{sWAVE}, 0
        s_cbranch_scc1 {lab}
        ds_read_b128 {vr(c, 4)}, v{vX4} offset:{HOFF}
        v_mov_b32 v{z4}, 0
        v_mov_b32 v{z4 + 1}, 0
        v_mov_b32 v{z4 + 2}, 0
        v_mov_b32 v{z4 + 3}, 0
        s_waitcnt lgkmcnt(0)
        """)
        prefix_core(a, c, z4, b4, x, vX4, HOFF, POFF)
        a(f"""
        s_lshl_b64 exec, 1, 63
        ds_write_b32 v{vZERO}, v{x} offset:{MISC + 16}
        s_mov_b64 exec, -1
        s_waitcnt lgkmcnt(0)
        {lab}:
        s_barrier
        """)

    def offsets_store():
        lab, ovf, back = a.uid("os"), a.uid("ovf"), a.uid("ovfback")
        a(f"""
        s_cmp_lg_u32 s{sWAVE}, 0
        s_cbranch_scc1 {lab}
        s_mov_b64 exec, -1
        s_lshl_b32 s{sQ}, s{sKT}, 8
        s_add_u32 s{sQ}, s{sQ}, s{sB}
        s_cmp_ge_u32 s{sKT}, {FIX}
        s_cbranch_scc1 {ovf}
        {back}:
        s_lshl_b32 s{sQ}, s{sQ}, 2
        s_add_u32 s{sT}, s{sQ}, {OFF2}
        """)
        for j in range(4):
            a(f"v_lshrrev_b32 v{b4 + j}, 3, v{b4 + j}")
        for j in range(4):
            a(f"v_lshl_or_b32 v{c + j}, v{c + j}, 13, v{b4 + j}")
        for j in range(4):
            a(f"buffer_store_dword v{c + j}, v{vROW}, {sr(sWS, 4)}, s{sT} offen")
            if j < 3:
                a(f"s_add_u32 s{sT}, s{sT}, {ROW2}")
        a(f"""
        v_mov_b32 v{z4}, s{sBASE}
        s_add_u32 s{sT}, s{sQ}, {DIR2}
        s_mov_b64 exec, 1
        buffer_store_dword v{z4}, v{vZERO}, {sr(sWS, 4)}, s{sT} offen
        {lab}:
        """)
        a.begin_tail()
        a(f"""
        {ovf}:
        s_mov_b64 exec, 1
        v_mov_b32 v{z4}, 1
        s_mov_b32 s{sT}, {CNT}
        buffer_atomic_add v{z4}, v{vZERO}, {sr(sWS, 4)}, s{sT} offen sc0
        s_waitcnt vmcnt(0)
        v_readfirstlane_b32 s{sQ}, v{z4}
        s_mov_b64 exec, -1
        s_nop 3
        s_add_u32 s{sQ}, s{sQ}, {FIX * NB}
        s_branch {back}
        """)
        a.end_tail()

    def phase_s(st):
        l1, nop, fin = a.uid("sa"), a.uid("sn"), a.uid("sf")
        a(f"ds_read_b32 v{vT}, v{vZERO} offset:{MISC + 16}")
        for s in range(NS):
            if s in (5, 13):
                a(f"""
                s_cmp_eq_u32 s{sW[st] + s}, 0
                s_cbranch_scc1 {l1}
                """)
            a(f"""
            s_bfm_b64 exec, s{sW[st] + s}, 0
            ds_read_b32 v{A(st, s)}, v{A(st, s)} offset:{POFF}
            """)
        a(f"{l1}:")
        offsets_store()
        a(f"""
        s_mov_b64 exec, -1
        s_mov_b32 s{sNOLD}, s{sDONE}
        s_lshl_b32 s{sBPREV}, s{sBASE}, 3
        s_add_u32 s{sBPREV}, s{sBPREV}, {R2}
        s_cmp_lg_u32 s{sDONE}, 0
        s_waitcnt lgkmcnt(0)
        v_readfirstlane_b32 s{sNPREV}, v{vT}
        s_cbranch_scc1 {nop}
        """)

        def put(s):
            a(f"""
            s_bfm_b64 exec, s{sW[st] + s}, 0
            v_add_u32 v{A(st, s)}, v{A(st, s)}, v{G(st, s)}
            ds_write_b64 v{A(st, s)}, {vr(Z(s), 2)} offset:{SORT}
            """)
        for s in range(NS):
            put(s)
            pop(st, s)
        a(f"""
        {fin}:
        s_lshr_b32 s{sNPREV}, s{sNPREV}, 3
        s_add_u32 s{sNPREV}, s{sNPREV}, 15
        s_and_b32 s{sNPREV}, s{sNPREV}, -16
        s_add_u32 s{sBASE}, s{sBASE}, s{sNPREV}
        s_waitcnt lgkmcnt(0)
        s_barrier
        """)
        a.begin_tail()
        a(f"{nop}:")
        for s in range(NS):
            if s in (5, 10):
                a(f"""
                s_cmp_eq_u32 s{sW[st] + s}, 0
                s_cbranch_scc1 {fin}
                """)
            put(s)
            a(f"s_mov_b32 s{sW[st] + s}, 0")
        a(f"s_branch {fin}")
        a.end_tail()

    a("L_k2_loop:")
    for st in range(2):
        stamp(a, 4, sKT)
        phase_h(st)
        stamp(a, 5, sKT)
        phase_p()
        stamp(a, 6, sKT)
        phase_s(st)
        a(f"""
        s_add_u32 s{sKT}, s{sKT}, 1
        s_cmp_ge_u32 s{sKT}, s{sNT}
        """)
        a("s_cbranch_scc1 L_k2_final" if st == 0 else "s_cbranch_scc0 L_k2_loop")
    a("L_k2_final:")
    stamp(a, 1)
    regs = [vSTG, vSTG + 4, vSTG + 8] + [vZ + 4 * i for i in range(5)]
    masks = [32 + 2 * i for i in range(8)]
    copy_reads(list(range(8)), regs, masks)
    a("s_waitcnt lgkmcnt(0)")
    copy_stores(list(range(8)), regs, masks)
    stamp_flush(a, 1, sWS, sWAVE)
    a("""
    L_k2_end:
    s_endpgm
    """)
    a.flush_tail()
    a("L_k2_last:")
    return name, nv, 80, LDS


def k3(a):
    name = "accum_out_kernel"
    kernel_header(a, name)
    D = int(OPT["d3"])
    ACC, MISC = 0, 1024
    LDS = 131072
    sWAVE, sB = 3, 4
    sWS, sM, sDI, sOUT = 8, 12, 16, 20
    sMASK, sT, sU, sL, sLIVE, sR2 = 24, 26, 27, 28, 29, 30
    sNE, sQB, sPASS, sBAS, sUNIT, sDONE = 31, 32, 33, 34, 35, 5
    sC, sP, sSEL = 36, 38, 6
    sW = 40
    sWD, sWU, sC8, sWX = 56, 64, 72, 76
    vLANE, vZERO, vIDX, vLEN, vIDX2, vLEN2, vW, vQ2 = 1, 2, 3, 4, 5, 6, 7, 8
    vT = 10
    vZ = 20
    vM = vZ + 2 * D
    vS = vM + 8
    vRR = vS + 16
    vFA = vRR + 16
    vDI = vFA + 16
    vE8 = vDI + 4
    vRB = vE8 + 4
    nrb = 2
    nv = vRB + 8 * nrb
    Z = lambda i: vZ + 2 * i
    EPOCH = 512 // D

    a(f"""
    s_cmp_ge_u32 s2, {NB}
    s_cbranch_scc1 L_k3_end
    """)
    if OPT["pf3"] == "1":
        code_prefetch(a, "accum_out_kernel", "L_text_end", 16384, nv, 76)
        nv += 1
    a(f"""
    s_load_dwordx2 s[6:7], s[0:1], 104
    s_load_dwordx2 s[36:37], s[0:1], 0
    s_load_dwordx2 s[38:39], s[0:1], 24
    s_load_dwordx2 s[40:41], s[0:1], 88
    s_load_dwordx2 s[42:43], s[0:1], 40
    s_load_dwordx8 s[44:51], s[0:1], 56
    v_lshrrev_b32 v{vT}, 6, v0
    v_and_b32 v{vLANE}, 63, v0
    v_readfirstlane_b32 s{sWAVE}, v{vT}
    s_and_b32 s{sB}, s2, 7
    s_lshl_b32 s{sB}, s{sB}, 5
    s_lshr_b32 s{sT}, s2, 3
    s_add_u32 s{sB}, s{sB}, s{sT}
    v_mov_b32 v{vZERO}, 0
    v_and_b32 v{vQ2}, 15, v0
    v_lshl_add_u32 v{vQ2}, v{vT}, 4, v{vQ2}
    v_bfe_u32 v{vT + 1}, v0, 4, 2
    v_lshl_add_u32 v{vQ2}, v{vT + 1}, 8, v{vQ2}
    v_add_u32 v{vQ2}, 0x400, v{vQ2}
    s_mov_b32 s{sR2}, {R2}
    s_mov_b32 s{sQB}, 0
    s_waitcnt lgkmcnt(0)
    """)
    stamp(a, 0)
    srd(a, sWS, 6, WS_BYTES)

    def desc_loads():
        a(f"""
        v_add_lshl_u32 v{vT}, s{sQB}, v0, 2
        v_add_lshl_u32 v{vT + 1}, s{sQB}, v{vQ2}, 2
        s_mul_i32 s{sT}, s{sB}, {ROW2}
        s_add_u32 s{sT}, s{sT}, {OFF2}
        s_mov_b32 s{sU}, {DIR2}
        buffer_load_dword v{vLEN}, v{vT}, {sr(sWS, 4)}, s{sT} offen
        buffer_load_dword v{vIDX}, v{vT}, {sr(sWS, 4)}, s{sU} offen
        buffer_load_dword v{vLEN2}, v{vT + 1}, {sr(sWS, 4)}, s{sT} offen
        buffer_load_dword v{vIDX2}, v{vT + 1}, {sr(sWS, 4)}, s{sU} offen
        """)

    def desc_build():
        a(f"""
        v_add_u32 v{vT}, s{sQB}, v0
        v_add_u32 v{vT + 1}, s{sQB}, v{vQ2}
        v_cmp_gt_u32 vcc, s{sNE}, v{vT}
        v_cmp_gt_u32 {sr(sMASK, 2)}, s{sNE}, v{vT + 1}
        s_mov_b32 s{sDONE}, 0
        s_nop 0
        v_cndmask_b32 v{vLEN}, 0, v{vLEN}, vcc
        v_cndmask_b32 v{vLEN2}, 0, v{vLEN2}, {sr(sMASK, 2)}
        v_and_b32 v{vT}, 0xffff, v{vLEN}
        v_and_b32 v{vT + 1}, 0xffff, v{vLEN2}
        v_lshrrev_b32 v{vLEN}, 16, v{vLEN}
        v_lshrrev_b32 v{vLEN2}, 16, v{vLEN2}
        v_add_u32 v{vIDX}, v{vIDX}, v{vT}
        v_add_u32 v{vIDX2}, v{vIDX2}, v{vT + 1}
        v_min_u32 v{vT}, {SEG}, v{vLEN}
        v_cmp_lt_u32 {sr(sMASK, 2)}, 0, v{vLEN}
        v_lshl_or_b32 v{vW}, v{vIDX}, 6, v{vT}
        s_nop 3
        """)

    def pop(i):
        back, stub, empty, issue = a.uid("pb"), a.uid("pr"), a.uid("pe"), a.uid("pi")
        a(f"""
        s_cmp_eq_u64 {sr(sMASK, 2)}, 0
        s_cbranch_scc1 {stub}
        {back}:
        s_ff1_i32_b64 s{sL}, {sr(sMASK, 2)}
        s_bitset0_b64 {sr(sMASK, 2)}, s{sL}
        v_readlane_b32 s{sW + i}, v{vW}, s{sL}
        s_lshr_b32 s{sT}, s{sW + i}, 6
        s_bfm_b64 exec, s{sW + i}, 0
        v_add_lshl_u32 v{Z(i)}, s{sT}, v{vLANE}, 3
        {issue}:
        buffer_load_dwordx2 {vr(Z(i), 2)}, v{Z(i)}, {sr(sWS, 4)}, s{sR2} offen {OPT['ld2']}
        """)
        a.begin_tail()
        a(f"""
        {stub}:
        s_cmp_lg_u32 s{sDONE}, 0
        s_cbranch_scc1 {empty}
        """)
        refill_code(a, vIDX, vLEN, vW, vT + 8, sMASK, pend=((vIDX, vLEN), (vIDX2, vLEN2)))
        a(f"""
        s_cmp_eq_u64 {sr(sMASK, 2)}, 0
        s_cbranch_scc0 {back}
        s_mov_b32 s{sDONE}, 1
        {empty}:
        s_mov_b32 s{sW + i}, 0
        s_mov_b64 exec, 0
        s_branch {issue}
        """)
        a.end_tail()

    def process(i):
        z, t = Z(i), vT
        a(f"""
        s_bfm_b64 exec, s{sW + i}, 0
        v_perm_b32 v{t + 4}, v{z + 1}, v{z}, s{sSEL}
        v_and_b32 v{t}, 0x1fff, v{z}
        v_bfe_u32 v{t + 1}, v{z}, 13, 13
        v_and_b32 v{t + 4}, 0xfcfc, v{t + 4}
        v_and_b32 v{t + 2}, 0x1fff, v{z + 1}
        v_bfe_u32 v{t + 3}, v{z + 1}, 13, 13
        v_add_u32 v{t + 4}, v{t + 4}, v{t + 4}
        v_lshl_add_u64 {vr(t, 2)}, {vr(t, 2)}, 0, {sr(sC, 2)}
        v_lshl_add_u64 {vr(t + 2, 2)}, {vr(t + 2, 2)}, 0, {sr(sC, 2)}
        ds_add_u64 v{t + 4}, {vr(t, 2)} offset:{ACC}
        ds_add_u64 v{t + 4}, {vr(t + 2, 2)} offset:{ACC + 512}
        """)

    def zero_acc():
        a(f"""
        v_mov_b32 v{vT}, 0
        v_mov_b32 v{vT + 1}, 0
        v_mov_b32 v{vT + 2}, 0
        v_mov_b32 v{vT + 3}, 0
        v_lshlrev_b32 v{vT + 4}, 4, v{vLANE}
        s_lshl_b32 s{sT}, s{sWAVE}, 11
        v_add_u32 v{vT + 4}, s{sT}, v{vT + 4}
        v_add_u32 v{vT + 5}, 0x10000, v{vT + 4}
        ds_write_b128 v{vT + 4}, {vr(vT, 4)} offset:{ACC}
        ds_write_b128 v{vT + 4}, {vr(vT, 4)} offset:{ACC + 32768}
        ds_write_b128 v{vT + 5}, {vr(vT, 4)} offset:{ACC}
        ds_write_b128 v{vT + 5}, {vr(vT, 4)} offset:{ACC + 32768}
        ds_write_b32 v{vZERO}, v{vZERO} offset:{MISC}
        """)

    desc_loads()
    srd(a, sM, 36, E * 8)
    srd(a, sDI, 38, E * 2)
    srd(a, sOUT, 40, E * 8)
    a(f"""
    s_add_u32 s6, s6, {CNT}
    s_addc_u32 s7, s7, 0
    s_load_dword s{sNE}, s[6:7], 0
    s_load_dwordx8 {sr(sWD, 8)}, s[48:49], 0
    s_load_dwordx8 {sr(sWU, 8)}, s[50:51], 0
    s_load_dwordx4 {sr(sC8, 4)}, s[42:43], 0
    s_mov_b64 s[92:93], s[44:45]
    s_mov_b64 s[94:95], s[46:47]
    """)
    for i in range(D):
        a(f"v_mov_b32 v{Z(i)}, 0")
    for i in range(16):
        a(f"v_mov_b32 v{vFA + i}, 0")
    zero_acc()
    a(f"""
    s_mul_i32 s{sT}, s{sB}, {SPAN}
    v_mov_b32 v{vT + 8}, 0x8000000
    v_add_u32 v{vE8}, s{sT}, v0
    v_add_u32 v{vE8 + 1}, 0x400, v{vE8}
    v_add_u32 v{vE8 + 2}, 0x800, v{vE8}
    v_add_u32 v{vE8 + 3}, 0xc00, v{vE8}
    v_cmp_gt_u32 vcc, {SPAN - 3072}, v0
    s_mov_b32 s{sC}, 0xfffff000
    s_mov_b32 s{sC + 1}, 0xffffefff
    v_cndmask_b32 v{vE8 + 3}, v{vT + 8}, v{vE8 + 3}, vcc
    s_lshr_b32 s{sBAS}, s{sWAVE}, 2
    s_lshl_b32 s{sBAS}, s{sBAS}, 1
    s_add_u32 s{sBAS}, s{sBAS}, 1
    s_mov_b32 s{sPASS}, 0
    s_waitcnt lgkmcnt(0)
    s_mov_b32 s{sSEL}, 0x0c0c0703
    s_add_u32 s{sNE}, s{sNE}, {FIX * NB}
    s_waitcnt vmcnt(0)
    """)
    stamp(a, 4)
    desc_build()
    for i in range(D):
        pop(i)
    def side_loads():
        a(f"""
        s_mov_b64 exec, -1
        v_lshlrev_b32 v{vT + 8}, 4, v{vLANE}
        s_mov_b32 s{sT}, {MAXS}
        buffer_load_dwordx4 {vr(vS, 4)}, v{vT + 8}, {sr(sWS, 4)}, s{sT} offen
        """)
        for r in range(4):
            a(f"v_lshlrev_b32 v{vDI + r}, 1, v{vE8 + r}")
        for r in range(4):
            a(f"buffer_load_ushort v{vDI + r}, v{vDI + r}, {sr(sDI, 4)}, 0 offen")
        for r in range(4):
            a(f"v_lshlrev_b32 v{vE8 + r}, 3, v{vE8 + r}")
        for r in range(4):
            a(f"buffer_load_dwordx2 {vr(vM + 2 * r, 2)}, v{vE8 + r}, {sr(sM, 4)}, 0 offen {OPT['ld_m']}")

    late = OPT["late3"] == "1"
    if OPT["prio3"] == "1":
        a("s_setprio 3")
    if late:
        a("s_barrier")
        side_loads()
    else:
        side_loads()
        a("s_barrier")
    stamp(a, 7)
    for i in range(D):
        a(f"s_waitcnt vmcnt({D - 1 + 9})")
        process(i)
        pop(i)
    a(f"""
    L_k3_loop:
    s_add_u32 s{sPASS}, s{sPASS}, 1
    s_cmp_eq_u32 s{sPASS}, s{sBAS}
    s_cbranch_scc1 L_k3_basis
    L_k3_basisback:
    """)
    if OPT["prio3"] == "1":
        n = 80 // D
        for p, at in ((2, n * 3 // 10), (1, n * 6 // 10), (0, n * 8 // 10)):
            lab = a.uid("prio")
            a(f"""
            s_cmp_lg_u32 s{sPASS}, {at}
            s_cbranch_scc1 {lab}
            s_setprio {p}
            {lab}:
            """)
    a(f"""
    s_cmp_eq_u32 s{sW}, 0
    s_cbranch_scc1 L_k3_drained
    s_cmp_ge_u32 s{sPASS}, {EPOCH}
    s_cbranch_scc1 L_k3_full
    L_k3_pass:
    """)
    for i in range(D):
        a(f"s_waitcnt vmcnt({D - 1})")
        process(i)
        pop(i)
    a(f"""
    s_branch L_k3_loop
    L_k3_drained:
    s_mov_b64 exec, -1
    s_add_u32 s{sQB}, s{sQB}, 2048
    s_cmp_lt_u32 s{sQB}, s{sNE}
    s_cbranch_scc1 L_k3_next
    s_sub_u32 s{sQB}, s{sQB}, 2048
    s_cmp_lt_u32 s{sPASS}, s{sBAS}
    s_cbranch_scc0 L_k3_join
    s_mov_b32 s{sBAS}, s{sPASS}
    s_branch L_k3_basis
    L_k3_join:
    """)
    stamp(a, 8)
    a(f"""
    s_waitcnt lgkmcnt(0)
    s_barrier
    """)
    stamp(a, 9)

    a.begin_tail()
    a("L_k3_next:")
    desc_loads()
    a("s_waitcnt vmcnt(0)")
    desc_build()
    a(f"""
    s_branch L_k3_prime
    L_k3_full:
    s_mov_b64 exec, -1
    v_mov_b32 v{vT}, 1
    ds_write_b32 v{vZERO}, v{vT} offset:{MISC}
    s_branch L_k3_join
    """)
    a.end_tail()

    def fold(rs):
        for r in rs:
            t = vRB + 4 * r
            a(f"""
            v_lshrrev_b32 v{vT}, 3, v{vE8 + r}
            v_add_u32 v{vT + 1}, {TOPK}, v{vT}
            v_add_u32 v{vT}, {TOPK << 6}, v{vT}
            v_and_b32 v{vT + 1}, 63, v{vT + 1}
            v_and_b32 v{vT}, 0xfc0, v{vT}
            v_lshl_or_b32 v{vT}, v{vT}, 2, v{vT + 1}
            v_lshlrev_b32 v{vT}, 3, v{vT}
            ds_read_b64 {vr(t, 2)}, v{vT} offset:{ACC}
            ds_read_b64 {vr(t + 2, 2)}, v{vT} offset:{ACC + 512}
            """)
        a(f"""
        ds_read_b32 v{vT + 4}, v{vZERO} offset:{MISC}
        s_waitcnt lgkmcnt(0)
        v_readfirstlane_b32 s{sLIVE}, v{vT + 4}
        """)
        for r in rs:
            t = vRB + 4 * r
            a(f"""
            v_lshrrev_b32 v{vT}, 31, v{t}
            v_lshrrev_b32 v{vT + 1}, 31, v{t + 2}
            v_add_u32 v{t + 1}, v{t + 1}, v{vT}
            v_add_u32 v{t + 3}, v{t + 3}, v{vT + 1}
            """)
            for j in range(4):
                a(f"v_cvt_f32_i32 v{t + j}, v{t + j}")
            for j in range(4):
                a(f"v_add_f32 v{vFA + 4 * r + j}, v{vFA + 4 * r + j}, v{t + j}")

    def wpair(sw):
        a(f"""
        s_lshl_b32 s{sP}, s{sw}, 16
        s_and_b32 s{sP + 1}, s{sw}, 0xffff0000
        """)

    def pkmac(first, dst, src):
        base, hi = src & ~1, src & 1
        if first:
            a(f"v_pk_mul_f32 {vr(dst, 2)}, {vr(base, 2)}, {sr(sP, 2)} op_sel:[{hi},0] op_sel_hi:[{hi},1]")
        else:
            a(f"v_pk_fma_f32 {vr(dst, 2)}, {vr(base, 2)}, {sr(sP, 2)}, {vr(dst, 2)} op_sel:[{hi},0,0] op_sel_hi:[{hi},1,1]")

    def epilogue(rs):
        for k in range(4):
            for jp in range(2):
                wpair(sWD + 2 * k + jp)
                for r in rs:
                    pkmac(k == 0, vRB + 4 * r + 2 * jp, vFA + 4 * r + k)
        for r in rs:
            for j in range(4):
                a(f"v_mul_f32 v{vRB + 4 * r + j}, v{vRB + 4 * r + j}, v{vS + 4 * r + j}")
        for k in range(4):
            for jp in range(2):
                wpair(sWU + 2 * k + jp)
                for r in rs:
                    pkmac(k == 0, vFA + 4 * r + 2 * jp, vRB + 4 * r + k)
        for r in rs:
            t, m = vRB + 4 * r, vM + 2 * r
            a(f"""
            v_lshlrev_b32 v{t}, 16, v{m}
            v_and_b32 v{t + 1}, 0xffff0000, v{m}
            v_lshlrev_b32 v{t + 2}, 16, v{m + 1}
            v_and_b32 v{t + 3}, 0xffff0000, v{m + 1}
            """)
            for j in range(4):
                a(f"v_fmac_f32 v{t + j}, v{vFA + 4 * r + j}, v{vRR + 4 * r + j}")
            a(f"""
            v_cvt_pk_bf16_f32 v{t}, v{t}, v{t + 1}
            v_cvt_pk_bf16_f32 v{t + 1}, v{t + 2}, v{t + 3}
            buffer_store_dwordx2 {vr(t, 2)}, v{vE8 + r}, {sr(sOUT, 4)}, 0 offen {OPT['st_out']}
            """)

    a(f"""
    s_cmp_eq_u32 s{sWAVE}, 0
    s_cbranch_scc1 L_k3_epi4
    """)
    for rs, pre in (([0, 1, 2], ""), ([0, 1, 2, 3], "L_k3_epi4:")):
        if pre:
            a(pre)
        fold(rs)
        a(f"""
        s_cmp_lg_u32 s{sLIVE}, 0
        s_cbranch_scc1 L_k3_again
        """)
        epilogue(rs)
        stamp_flush(a, 2, sWS, sWAVE)
        a("s_endpgm")
    a(f"""
    L_k3_again:
    s_barrier
    """)
    zero_acc()
    a(f"""
    s_mov_b32 s{sPASS}, s{sBAS}
    s_waitcnt lgkmcnt(0)
    s_barrier
    s_branch L_k3_basisback
    L_k3_prime:
    """)
    for i in range(D):
        pop(i)
    a("s_branch L_k3_basisback")

    def basis(rs):
        x = lambda n, kp: vRB + 8 * n + 2 * kp
        for n, r in enumerate(rs):
            a(f"v_lshlrev_b32 v{vDI + r}, 16, v{vDI + r}")
        for kp in range(4):
            wpair(sC8 + kp)

            def rnd():
                for n in range(len(rs)):
                    a(f"v_cvt_pk_bf16_f32 v{x(n, kp)}, v{x(n, kp)}, v{x(n, kp) + 1}")
                for n in range(len(rs)):
                    a(f"v_and_b32 v{x(n, kp) + 1}, 0xffff0000, v{x(n, kp)}")
                for n in range(len(rs)):
                    a(f"v_lshlrev_b32 v{x(n, kp)}, 16, v{x(n, kp)}")

            def each(op):
                for n in range(len(rs)):
                    for h in range(2):
                        a(op.format(v=f"v{x(n, kp) + h}"))
            for n, r in enumerate(rs):
                d = vDI + r
                hi = d & 1
                a(f"v_pk_add_f32 {vr(x(n, kp), 2)}, {vr(d & ~1, 2)}, {sr(sP, 2)} op_sel:[{hi},0] op_sel_hi:[{hi},1] neg_lo:[0,1] neg_hi:[0,1]")
            rnd()
            each("v_mul_f32 {v}, {v}, {v}")
            rnd()
            each("v_mul_f32 {v}, 0xc1200000, {v}")
            rnd()
            each("v_mul_f32 {v}, 0x3fb8aa3b, {v}")
            each("v_exp_f32 {v}, {v}")
            a("s_nop 0")
            rnd()
        for dst, ptr in ((vS, 94), (vRR, 92)):
            a(f"""
            s_load_dwordx16 {sr(sWX, 16)}, s[{ptr}:{ptr + 1}], 0
            s_waitcnt lgkmcnt(0)
            """)
            for k in range(8):
                for jp in range(2):
                    wpair(sWX + 2 * k + jp)
                    for n, r in enumerate(rs):
                        pkmac(k == 0, dst + 4 * r + 2 * jp, vRB + 8 * n + k)
        for r in rs:
            for j in range(4):
                a(f"v_mul_f32 v{vS + 4 * r + j}, v{vT + 9}, v{vS + 4 * r + j}")
            for jp in range(2):
                y = vRR + 4 * r + 2 * jp
                a(f"""
                v_cvt_pk_bf16_f32 v{y}, v{y}, v{y + 1}
                v_and_b32 v{y + 1}, 0xffff0000, v{y}
                v_lshlrev_b32 v{y}, 16, v{y}
                """)

    a(f"""
    L_k3_basis:
    s_mov_b64 exec, -1
    s_waitcnt vmcnt({D})
    """)
    stamp(a, 5)
    global_max(a, vS, sUNIT)
    a(f"""
    v_mov_b32 v{vT + 9}, s{sUNIT}
    v_mul_f32 v{vT + 9}, 0x39808081, v{vT + 9}
    """)
    basis([0, 1])
    a(f"""
    s_cmp_eq_u32 s{sWAVE}, 0
    s_cbranch_scc1 L_k3_basis23
    """)
    basis([2])
    stamp(a, 6)
    a("""
    s_branch L_k3_basisback
    L_k3_basis23:
    """)
    basis([2, 3])
    stamp(a, 6)
    a("""
    s_branch L_k3_basisback
    L_k3_end:
    s_endpgm
    """)
    a.flush_tail()
    a("L_text_end:")
    return name, nv, 96, LDS


HEADER = """; Three launches: partition by idx_in, gather + partition by idx_out, accumulate + epilogue.
"""


def build():
    a = Asm()
    ks = [k1(a), k2(a), k3(a)]
    out = HEADER
    for name, nv, ns, lds in ks:
        out += f"; @launch kernel={name} grid=({NB},1,1) block=(1024,1,1) lds={lds}\n"
    out += '.amdgcn_target "amdgcn-amd-amdhsa--gfx950"\n.text\n'
    out += a.text()
    out += '.section .rodata,"a"\n'
    for name, nv, ns, lds in ks:
        assert nv <= (127 if OPT["prof"] else 128), (name, nv)
        out += kernel_desc(name, 128 if OPT["prof"] else nv, 102 if OPT["prof"] else ns)
    return out


if __name__ == "__main__":
    path = sys.argv[1]
    for kv in sys.argv[2:]:
        k, v = kv.split("=")
        OPT[k] = v.replace("+", " ")
    open(path, "w").write(build())
```

```python
import sys
from asmlib import Asm, vr, sr, srd, wave_scan, kernel_header, kernel_desc, code_prefetch

E = 800000
T = 12800000
NB = 256
SPAN = 3125
CB4 = 4 * 1374390
N1 = 12800
NT1 = T // N1

R1A = 0
R1B = 51200000
ROW1 = 4096 + 128
OFF1 = 76800000
CNT = 77900032
MAXS = CNT + 1024
DIR2 = MAXS + 1024
ROW2 = 65536 + 128
OFF2 = DIR2 + 65536
R2 = 94781440
WS_BYTES = 268435456
assert OFF1 + NB * ROW1 <= CNT and OFF2 + NB * ROW2 <= R2 and R2 % 128 == 0 and OFF2 % 128 == 0
assert R2 + (1 << 27) <= 240000000
PAD2 = 14336
FIX = 5
NS = 15
SEG = 63
MAGIC = 0x4C001000
TOPK = 0x13
QMAX = 4080
MAXFLOOR = 0x0880

OPT = dict(ld_in="nt", st1="sc1", ld1="", st2="sc1", ld2="", ld_m="", st_out="", prof="", d3="8", k1early="1", k2early="1", greedy="1", prio3="1", late3="1", pf1="1", pf2="1", pf3="1", tlb="0")
PROF = 240000000
VPROF = 127


def stamp(a, i, dyn=None):
    if not OPT["prof"]:
        return
    a("""
    s_memrealtime s[98:99]
    s_waitcnt lgkmcnt(0)
    """)
    if dyn is None:
        a(f"v_writelane_b32 v{VPROF}, s98, {i}")
    else:
        a(f"""
        s_lshl_b32 s99, s{dyn}, 2
        s_add_u32 m0, s99, {i}
        s_nop 0
        v_writelane_b32 v{VPROF}, s98, m0
        """)


def stamp_flush(a, kidx, sWS, sWAVE):
    if not OPT["prof"]:
        return
    stamp(a, 2)
    a("s_waitcnt vmcnt(0)")
    stamp(a, 3)
    lab = a.uid("pf")
    a(f"""
    s_mov_b64 exec, -1
    s_and_b32 s98, s{sWAVE}, 7
    s_cmp_lg_u32 s98, 0
    s_cbranch_scc1 {lab}
    s_lshr_b32 s98, s{sWAVE}, 3
    s_lshl_b32 s99, s2, 1
    s_add_u32 s98, s98, s99
    s_lshl_b32 s98, s98, 8
    s_add_u32 s98, s98, {PROF + kidx * 512 * 256}
    v_and_b32 v0, 63, v0
    v_lshlrev_b32 v0, 2, v0
    buffer_store_dword v{VPROF}, v0, s[{sWS}:{sWS + 3}], s98 offen
    {lab}:
    """)


def slice_loads(a, sM, sROW, sT, vX4, vTMP, dst):
    a(f"""
    s_and_b32 s{sT}, s{sROW}, -2
    s_lshl_b32 s{sT}, s{sT}, 3
    v_mov_b32 v{vTMP}, 0x40000000
    v_cmp_gt_u32 vcc, {(SPAN + 1) // 2 - 1024}, v0
    buffer_load_dwordx4 {vr(dst, 4)}, v{vX4}, {sr(sM, 4)}, s{sT} offen {OPT['ld_m']}
    s_add_u32 s{sT}, s{sT}, 16384
    v_cndmask_b32 v{vTMP}, v{vTMP}, v{vX4}, vcc
    buffer_load_dwordx4 {vr(dst + 4, 4)}, v{vTMP}, {sr(sM, 4)}, s{sT} offen {OPT['ld_m']}
    """)


def prefix_core(a, c, z, b, x, vX4, HOFF, POFF):
    a(f"""
    ds_write_b128 v{vX4}, {vr(z, 4)} offset:{HOFF}
    v_add_u32 v{b + 2}, v{c}, v{c + 1}
    v_add_u32 v{b + 3}, v{b + 2}, v{c + 2}
    v_add_u32 v{x + 1}, v{b + 3}, v{c + 3}
    v_mov_b32 v{x}, v{x + 1}
    """)
    wave_scan(a, "v_add_u32", x)
    a(f"""
    v_sub_u32 v{b}, v{x}, v{x + 1}
    v_add_u32 v{b + 1}, v{b}, v{c}
    v_add_u32 v{b + 2}, v{b}, v{b + 2}
    v_add_u32 v{b + 3}, v{b}, v{b + 3}
    ds_write_b128 v{vX4}, {vr(b, 4)} offset:{POFF}
    """)


def global_max(a, v4, sDST):
    a(f"""
    v_max3_u32 v{v4}, v{v4}, v{v4 + 1}, v{v4 + 2}
    v_max_u32 v{v4}, v{v4}, v{v4 + 3}
    """)
    wave_scan(a, "v_max_u32", v4)
    a(f"""
    s_nop 0
    v_readlane_b32 s{sDST}, v{v4}, 63
    s_nop 3
    s_max_u32 s{sDST}, s{sDST}, {MAXFLOOR}
    s_lshl_b32 s{sDST}, s{sDST}, 16
    """)


def k1(a):
    name = "part_in_kernel"
    kernel_header(a, name)
    HOFF, POFF, MISC, BUF = 0, 1024, 2048, 2176
    BUFB = BUF + N1 * 4
    sIN, sOUT, sANG, sWS, sM = 12, 16, 20, 24, 40
    sWAVE, sCB, sT, sA, sB, sU, sPOS = 3, 28, 29, 30, 31, 36, 37
    sTI = [32, 33, 34, 35]
    vX4, vX4b, vX2, vTI, vTA, vFOUR, vF = 1, 2, 3, 4, 5, 6, 7
    sets = []
    base = 8
    for s in range(2):
        sets.append(dict(i=base, o=base + 14, g=base + 28))
        base += 36
    vRANK = base
    vROW = vRANK + 13
    vSTG = vRANK + 14
    vC = vSTG + 20
    nv = vC + 4
    ld = OPT["ld_in"]
    a(f"""
    s_cmp_ge_u32 s2, {NB}
    s_cbranch_scc1 L_k1_end
    """)
    if OPT["pf1"] == "1":
        code_prefetch(a, "part_in_kernel", "L_text_end", 49152, nv, 40)
        nv += 1
    a(f"""
    s_load_dwordx4 s[4:7], s[0:1], 8
    s_load_dwordx2 s[8:9], s[0:1], 32
    s_load_dwordx2 s[10:11], s[0:1], 104
    s_load_dwordx2 s[38:39], s[0:1], 0
    s_load_dwordx2 s[44:45], s[0:1], 48
    v_lshrrev_b32 v{vFOUR}, 6, v0
    v_lshlrev_b32 v{vX4}, 4, v0
    v_readfirstlane_b32 s{sWAVE}, v{vFOUR}
    v_add_u32 v{vX4b}, 0x10000, v{vX4}
    v_lshlrev_b32 v{vX2}, 3, v0
    v_lshlrev_b32 v{vTI}, 2, v0
    v_lshlrev_b32 v{vTA}, 1, v0
    v_mov_b32 v{vFOUR}, 0x40000000
    v_cmp_gt_u32 vcc, 0x200, v0
    v_mov_b32 v{vSTG}, 0
    s_mov_b32 s{sCB}, {CB4}
    v_cndmask_b32 v{vTI}, v{vFOUR}, v{vTI}, vcc
    v_cndmask_b32 v{vTA}, v{vFOUR}, v{vTA}, vcc
    v_mov_b32 v{vFOUR}, 4
    v_mul_u32_u24 v{vROW}, {4 * ROW1}, v0
    s_mov_b32 s{sTI[0]}, s2
    s_add_u32 s{sTI[1]}, s2, 256
    s_add_u32 s{sTI[2]}, s2, 512
    s_add_u32 s{sTI[3]}, s2, 768
    s_and_b32 s{sPOS}, s2, 7
    s_lshl_b32 s{sPOS}, s{sPOS}, 7
    s_lshr_b32 s{sT}, s2, 3
    s_add_u32 s{sPOS}, s{sPOS}, s{sT}
    s_cmp_eq_u32 s{sT}, 31
    s_cselect_b32 s{sT}, 32, 0
    s_add_u32 s{sPOS}, s{sPOS}, s{sT}
    s_lshl_b32 s{sPOS}, s{sPOS}, 2
    s_add_u32 s{sPOS}, s{sPOS}, {OFF1}
    s_waitcnt lgkmcnt(0)
    s_load_dword s46, s[44:45], 0
    """)
    stamp(a, 0)
    srd(a, sIN, 4, T * 4)
    srd(a, sOUT, 6, T * 4)
    srd(a, sANG, 8, T * 2)
    srd(a, sWS, 10, WS_BYTES)
    srd(a, sM, 38, E * 8)

    if OPT["tlb"] != "0":
        sh = int(OPT["tlb"])
        a(f"""
        s_cmp_lg_u32 s{sWAVE}, 14
        s_cbranch_scc1 L_k1_notlb
        s_lshr_b32 s{sT}, s2, 3
        v_and_b32 v{vC}, 63, v0
        v_lshl_add_u32 v{vC}, s{sT}, 6, v{vC}
        v_lshlrev_b32 v{vC}, {sh}, v{vC}
        s_cmp_ge_u32 s{sT}, {(230000000 >> sh) // 64 + 1}
        s_cbranch_scc1 L_k1_notlb
        buffer_load_dword v{vC + 1}, v{vC}, {sr(sWS, 4)}, 0 offen nt
        buffer_load_dword v{vC + 1}, v{vC}, {sr(sIN, 4)}, 0 offen nt
        buffer_load_dword v{vC + 1}, v{vC}, {sr(sOUT, 4)}, 0 offen nt
        buffer_load_dword v{vC + 1}, v{vC}, {sr(sANG, 4)}, 0 offen nt
        buffer_load_dword v{vC + 1}, v{vC}, {sr(sM, 4)}, 0 offen nt
        L_k1_notlb:
        """)

    def load_group(k, g):
        st = sets[k % 2]
        if g == 0:
            a(f"""
            s_mul_i32 s{sA}, s{sTI[k]}, {N1 * 4}
            s_mul_i32 s{sB}, s{sTI[k]}, {N1 * 2}
            """)
        if g < 3:
            a(f"""
            buffer_load_dwordx4 {vr(st['i'] + 4 * g, 4)}, v{vX4}, {sr(sIN, 4)}, s{sA} offen {ld}
            buffer_load_dwordx4 {vr(st['o'] + 4 * g, 4)}, v{vX4}, {sr(sOUT, 4)}, s{sA} offen {ld}
            buffer_load_dwordx2 {vr(st['g'] + 2 * g, 2)}, v{vX2}, {sr(sANG, 4)}, s{sB} offen {ld}
            s_add_u32 s{sA}, s{sA}, 16384
            s_add_u32 s{sB}, s{sB}, 8192
            """)
        else:
            a(f"""
            buffer_load_dword v{st['i'] + 12}, v{vTI}, {sr(sIN, 4)}, s{sA} offen {ld}
            buffer_load_dword v{st['o'] + 12}, v{vTI}, {sr(sOUT, 4)}, s{sA} offen {ld}
            buffer_load_ushort v{st['g'] + 6}, v{vTA}, {sr(sANG, 4)}, s{sB} offen {ld}
            """)

    for g in range(4):
        load_group(0, g)
    a(f"""
    s_cmp_lg_u32 s{sWAVE}, 0
    s_cbranch_scc1 L_k1_noinit
    v_mov_b32 v{vSTG + 1}, 0
    v_mov_b32 v{vSTG + 2}, 0
    v_mov_b32 v{vSTG + 3}, 0
    ds_write_b128 v{vX4}, {vr(vSTG, 4)} offset:{HOFF}
    ds_write_b32 v{vSTG}, v{vSTG} offset:{MISC}
    s_cmp_lg_u32 s2, 0
    s_cbranch_scc1 L_k1_noinit
    s_mov_b32 s{sT}, {CNT}
    buffer_store_dword v{vSTG}, v{vTI}, {sr(sWS, 4)}, s{sT} offen
    L_k1_noinit:
    s_waitcnt lgkmcnt(0)
    s_lshl_b32 s46, s46, 16
    v_mov_b32 v{vF}, s46
    s_barrier
    """)
    early = OPT["k1early"] == "1"
    if not early:
        for g in range(4):
            load_group(1, g)

    def copy_reads():
        lab = a.uid("cr")
        for i in range(4):
            a(f"ds_read_b128 {vr(vSTG + 4 * i, 4)}, v{vX4} offset:{BUF + i * 16384}")
        a(f"""
        s_cmp_ge_u32 s{sWAVE}, 11
        s_cbranch_scc1 {lab}
        ds_read_b128 {vr(vSTG + 16, 4)}, v{vX4b} offset:{BUF}
        {lab}:
        """)

    def copy_store(i, sTile):
        st = OPT["st1"]
        if i < 3:
            a(f"""
            s_mul_i32 s{sT}, s{sTile}, {N1 * 4}
            s_add_u32 s{sT}, s{sT}, {R1A + i * 16384}
            buffer_store_dwordx4 {vr(vSTG + 4 * i, 4)}, v{vX4}, {sr(sWS, 4)}, s{sT} offen {st}
            """)
        elif i == 3:
            a(f"""
            s_mul_i32 s{sT}, s{sTile}, {N1 * 4}
            s_add_u32 s{sT}, s{sT}, {R1A + 49152}
            s_mul_i32 s{sU}, s{sTile}, {N1 * 2}
            s_add_u32 s{sU}, s{sU}, {R1B - 2048}
            s_cmp_lt_u32 s{sWAVE}, 2
            s_cselect_b32 s{sT}, s{sT}, s{sU}
            buffer_store_dwordx4 {vr(vSTG + 12, 4)}, v{vX4}, {sr(sWS, 4)}, s{sT} offen {st}
            """)
        else:
            lab = a.uid("cs")
            a(f"""
            s_cmp_ge_u32 s{sWAVE}, 11
            s_cbranch_scc1 {lab}
            s_mul_i32 s{sT}, s{sTile}, {N1 * 2}
            s_add_u32 s{sT}, s{sT}, {R1B + 14336}
            buffer_store_dwordx4 {vr(vSTG + 16, 4)}, v{vX4}, {sr(sWS, 4)}, s{sT} offen {st}
            {lab}:
            """)

    def hist(st, js):
        for j in js:
            a(f"v_mul_hi_u32_u24 v{vRANK + j}, s{sCB}, v{st['i'] + j}")
        for j in js:
            a(f"v_lshl_or_b32 v{st['o'] + j}, v{st['i'] + j}, 20, v{st['o'] + j}")
        for j in js:
            a(f"v_and_b32 v{st['i'] + j}, 0x3fc, v{vRANK + j}")
        for j in js:
            a(f"ds_add_rtn_u32 v{vRANK + j}, v{st['i'] + j}, v{vFOUR} offset:{HOFF}")

    def cosines(regs):
        ops = ["v_lshlrev_b32 {x}, 16, {g}", "v_and_b32 {y}, 0xffff0000, {g}",
               f"v_mul_f32 {{x}}, v{vF}, {{x}}", f"v_mul_f32 {{y}}, v{vF}, {{y}}",
               "v_cvt_pk_bf16_f32 {g}, {x}, {y}",
               "v_lshlrev_b32 {x}, 16, {g}", "v_and_b32 {y}, 0xffff0000, {g}",
               "v_mul_f32 {x}, 0.15915494, {x}", "v_mul_f32 {y}, 0.15915494, {y}",
               "v_fract_f32 {x}, {x}", "v_fract_f32 {y}, {y}",
               "v_cos_f32 {x}, {x}", "v_cos_f32 {y}, {y}"]
        for op in ops:
            for n, g in enumerate(regs):
                a(op.format(g=f"v{g}", x=f"v{vC + 2 * n}", y=f"v{vC + 2 * n + 1}"))
        a("s_nop 0")
        for n, g in enumerate(regs):
            a(f"v_cvt_pk_f16_f32 v{g}, v{vC + 2 * n}, v{vC + 2 * n + 1}")

    def phase_h(k):
        st = sets[k % 2]
        if k > 0:
            copy_reads()
            a(f"s_waitcnt vmcnt({[0, 12, 12, 2][k]})")
        for g in range(3):
            if k == 0:
                a(f"s_waitcnt vmcnt({10 if early else 24 - 3 * g - 2})")
            hist(st, range(4 * g, 4 * g + 4))
            if k == 0 and early:
                load_group(1, g)
            if k > 0:
                if g == 0:
                    a("s_waitcnt lgkmcnt(4)")
                    copy_store(0, sTI[k - 1])
                    copy_store(1, sTI[k - 1])
                elif g == 1:
                    copy_store(2, sTI[k - 1])
                    copy_store(3, sTI[k - 1])
                else:
                    copy_store(4, sTI[k - 1])
            if k == 0:
                a(f"s_waitcnt vmcnt({12 if early else 24 - 3 * g - 3})")
            cosines([st['g'] + 2 * g, st['g'] + 2 * g + 1])
        lab = a.uid("ht")
        if k == 0:
            if early:
                load_group(1, 3)
            a("s_waitcnt vmcnt(12)")
        a(f"""
        s_cmp_ge_u32 s{sWAVE}, 8
        s_cbranch_scc1 {lab}
        """)
        hist(st, [12])
        cosines([st['g'] + 6])
        a(f"""
        {lab}:
        s_waitcnt lgkmcnt(0)
        s_barrier
        """)

    def phase_p(k):
        lab = a.uid("p")
        c, z, b, x = vSTG, vSTG + 4, vSTG + 8, vSTG + 12
        a(f"""
        s_cmp_lg_u32 s{sWAVE}, 0
        s_cbranch_scc1 {lab}
        ds_read_b128 {vr(c, 4)}, v{vX4} offset:{HOFF}
        v_mov_b32 v{z}, 0
        v_mov_b32 v{z + 1}, 0
        v_mov_b32 v{z + 2}, 0
        v_mov_b32 v{z + 3}, 0
        s_waitcnt lgkmcnt(0)
        """)
        prefix_core(a, c, z, b, x, vX4, HOFF, POFF)
        a(f"""
        s_waitcnt lgkmcnt(0)
        {lab}:
        s_barrier
        """)

    def offsets_store(k):
        lab = a.uid("os")
        c, b = vSTG, vSTG + 8
        a(f"""
        s_cmp_lg_u32 s{sWAVE}, 0
        s_cbranch_scc1 {lab}
        s_add_u32 s{sT}, s{sPOS}, {k * 128}
        """)
        for j in range(4):
            a(f"v_lshl_or_b32 v{c + j}, v{c + j}, 16, v{b + j}")
        for j in range(4):
            a(f"buffer_store_dword v{c + j}, v{vROW}, {sr(sWS, 4)}, s{sT} offen")
            if j < 3:
                a(f"s_add_u32 s{sT}, s{sT}, {ROW1}")
        a(f"{lab}:")

    def scatter(st, js):
        for j in js:
            a(f"v_add_u32 v{vRANK + j}, v{st['i'] + j}, v{vRANK + j}")
        for j in js:
            a(f"ds_write_b32 v{vRANK + j}, v{st['o'] + j} offset:{BUF}")
        for j in js:
            a(f"v_lshrrev_b32 v{st['i'] + j}, 1, v{vRANK + j}")
        for j in js:
            op = "ds_write_b16" if j % 2 == 0 else "ds_write_b16_d16_hi"
            a(f"{op} v{st['i'] + j}, v{st['g'] + j // 2} offset:{BUFB}")

    vM8 = sets[0]['i']

    def phase_s(k):
        st = sets[k % 2]
        for j in range(13):
            a(f"ds_read_b32 v{st['i'] + j}, v{st['i'] + j} offset:{POFF}")
        offsets_store(k)
        a("s_waitcnt lgkmcnt(0)")
        for g in range(3):
            scatter(st, range(4 * g, 4 * g + 4))
            if k + 2 < 4:
                load_group(k + 2, g)
        lab = a.uid("st")
        a(f"""
        s_cmp_ge_u32 s{sWAVE}, 8
        s_cbranch_scc1 {lab}
        """)
        scatter(st, [12])
        a(f"{lab}:")
        if k + 2 < 4:
            load_group(k + 2, 3)
        if k == 2:
            a(f"s_mul_i32 s{sU}, s2, {SPAN}")
            slice_loads(a, sM, sU, sT, vX4, vC, vM8)
        a("""
        s_waitcnt lgkmcnt(0)
        s_barrier
        """)

    for k in range(4):
        if k == 3:
            a(f"""
            s_cmp_lt_u32 s{sTI[3]}, {NT1}
            s_cbranch_scc1 L_k1_t3
            s_mov_b32 s{sTI[3]}, s{sTI[2]}
            s_branch L_k1_final
            L_k1_t3:
            """)
        stamp(a, 4 + 4 * k)
        phase_h(k)
        stamp(a, 5 + 4 * k)
        phase_p(k)
        stamp(a, 6 + 4 * k)
        phase_s(k)
    a("L_k1_final:")
    stamp(a, 1)
    copy_reads()
    a("s_waitcnt lgkmcnt(0)")
    for i in range(5):
        copy_store(i, sTI[3])
    a("s_waitcnt vmcnt(4)")
    for i in range(8):
        a(f"v_and_b32 v{vM8 + i}, 0x7fff7fff, v{vM8 + i}")
    for d, x, y in ((0, 0, 1), (2, 2, 3), (4, 4, 5), (6, 6, 7), (0, 0, 2), (4, 4, 6), (0, 0, 4)):
        a(f"v_pk_max_u16 v{vM8 + d}, v{vM8 + x}, v{vM8 + y}")
    a(f"""
    v_lshrrev_b32 v{vC}, 16, v{vM8}
    v_and_b32 v{vM8}, 0xffff, v{vM8}
    v_max_u32 v{vC}, v{vC}, v{vM8}
    v_mov_b32 v{vC + 1}, 0
    """)
    wave_scan(a, "v_max_u32", vC)
    a(f"""
    s_lshl_b64 exec, 1, 63
    ds_max_u32 v{vC + 1}, v{vC} offset:{MISC}
    s_waitcnt lgkmcnt(0)
    s_barrier
    s_cmp_lg_u32 s{sWAVE}, 0
    s_cbranch_scc1 L_k1_nomax
    ds_read_b32 v{vC}, v{vC + 1} offset:{MISC}
    s_lshl_b32 s{sT}, s2, 2
    s_add_u32 s{sT}, s{sT}, {MAXS}
    s_waitcnt lgkmcnt(0)
    buffer_store_dword v{vC}, v{vC + 1}, {sr(sWS, 4)}, s{sT} offen
    L_k1_nomax:
    """)
    stamp_flush(a, 0, sWS, sWAVE)
    a("""
    L_k1_end:
    s_endpgm
    """)
    return name, nv, 48, BUFB + N1 * 2


def refill_code(a, vIDX, vLEN, vW, vT, sMASK, pend=None):
    a(f"""
    s_mov_b64 exec, -1
    v_add_u32 v{vIDX}, {SEG}, v{vIDX}
    v_subrev_u32 v{vLEN}, {SEG}, v{vLEN}
    v_max_i32 v{vLEN}, 0, v{vLEN}
    """)
    if pend is not None:
        cur, pen = pend
        a(f"""
        v_cmp_eq_u32 vcc, 0, v{vLEN}
        s_nop 1
        """)
        for c, p in zip(cur, pen):
            a(f"v_cndmask_b32 v{c}, v{c}, v{p}, vcc")
        a(f"v_cndmask_b32 v{pen[1]}, v{pen[1]}, 0, vcc")
    a(f"""
    v_min_u32 v{vT}, {SEG}, v{vLEN}
    v_cmp_lt_u32 {sr(sMASK, 2)}, 0, v{vLEN}
    v_lshl_or_b32 v{vW}, v{vIDX}, 6, v{vT}
    s_nop 3
    """)


def k2(a):
    name = "gather_part_kernel"
    kernel_header(a, name)
    HOFF, POFF, MISC, SLICE, SORT = 0, 1024, 2048, 4096, 36864
    LDS = SORT + NS * 1024 * 8
    sWAVE, sB = 3, 4
    sWS, sM = 8, 12
    sK, sCB, sDONE, sNOLD = 16, 17, 18, 19
    sMASK, sQUOTA, sNT, sKT, sT, sU, sL = 20, 22, 23, 24, 25, 26, 27
    sBASE, sNPREV, sR1B, sBPREV, sQ = 28, 29, 31, 64, 65
    sW = [32, 48]
    sCM = [66, 68, 70]
    vLANE, vX4, vXA, vXB, vT2, vEIGHT, vIDX, vLEN, vW, vZERO, vROW = 1, 2, 3, 4, 5, 6, 7, 8, 9, 10, 11
    vT = 12
    vSTG = 16
    vR = [28, 28 + 2 * NS]
    vZ = 28 + 4 * NS
    nv = vZ + 2 * NS
    A = lambda st, s: vR[st] + 2 * s
    G = lambda st, s: vR[st] + 2 * s + 1
    Z = lambda s: vZ + 2 * s
    ld1 = OPT["ld1"]

    a(f"""
    s_cmp_ge_u32 s2, {NB}
    s_cbranch_scc1 L_k2_end
    """)
    if OPT["pf2"] == "1":
        code_prefetch(a, "gather_part_kernel", "L_k2_last", 24576, nv, 72)
        nv += 1
    a(f"""
    s_load_dwordx2 s[6:7], s[0:1], 104
    s_load_dwordx2 s[32:33], s[0:1], 0
    v_lshrrev_b32 v{vEIGHT}, 6, v0
    v_and_b32 v{vLANE}, 63, v0
    v_readfirstlane_b32 s{sWAVE}, v{vEIGHT}
    s_and_b32 s{sB}, s2, 7
    s_lshl_b32 s{sB}, s{sB}, 5
    s_lshr_b32 s{sT}, s2, 3
    s_add_u32 s{sB}, s{sB}, s{sT}
    v_lshlrev_b32 v{vX4}, 4, v0
    v_lshlrev_b32 v{vT2}, 1, v0
    v_lshlrev_b32 v{vT + 2}, 2, v0
    v_lshlrev_b32 v{vT + 3}, 4, v{vLANE}
    v_mov_b32 v{vZERO}, 0
    v_mov_b32 v{vEIGHT}, 8
    s_mul_i32 s{sT}, s{sB}, {ROW1}
    s_add_u32 s{sT}, s{sT}, {OFF1}
    s_mov_b32 s{sU}, {MAXS}
    s_waitcnt lgkmcnt(0)
    """)
    stamp(a, 0)
    srd(a, sWS, 6, WS_BYTES)
    a(f"""
    buffer_load_dword v{vLEN}, v{vT + 2}, {sr(sWS, 4)}, s{sT} offen
    buffer_load_dwordx4 {vr(vZ, 4)}, v{vT + 3}, {sr(sWS, 4)}, s{sU} offen
    """)
    srd(a, sM, 32, E * 8)
    a(f"s_mul_i32 s{sU}, s{sB}, {SPAN}")
    slice_loads(a, sM, sU, sT, vX4, vT + 1, vSTG)
    a(f"""
    ds_write_b32 v{vT + 2}, v{vZERO}
    s_and_b32 s{sU}, s{sU}, -2
    v_add_u32 v{vXA}, {SORT}, v{vX4}
    v_add_u32 v{vXB}, {SORT + 65536}, v{vX4}
    v_mul_u32_u24 v{vROW}, {4 * ROW2}, v{vLANE}
    s_mov_b32 s{sK}, {MAGIC}
    s_mov_b32 s{sCB}, {CB4}
    s_mov_b32 s{sR1B}, {R1B}
    s_mov_b32 s{sDONE}, 0
    s_mov_b32 s{sNOLD}, 0
    v_add_u32 v{vSTG + 8}, s{sU}, v{vT2}
    v_and_b32 v{vSTG + 8}, 0xfff, v{vSTG + 8}
    v_lshlrev_b32 v{vSTG + 8}, 3, v{vSTG + 8}
    v_xor_b32 v{vSTG + 9}, 0x4000, v{vSTG + 8}
    v_and_b32 v{vT}, 31, v0
    v_bfe_u32 v{vT + 1}, v0, 5, 2
    v_cmp_eq_u32 vcc, 31, v{vT}
    v_lshrrev_b32 v{vT + 2}, 7, v0
    v_lshl_add_u32 v{vT}, v{vT}, 3, v{vT + 2}
    v_subb_co_u32 v{vT + 1}, vcc, v{vT + 1}, 0, vcc
    v_lshl_add_u32 v{vIDX}, v{vT + 1}, 8, v{vT}
    v_cmp_gt_u32 vcc, {NT1}, v{vIDX}
    v_mul_u32_u24 v{vIDX}, {N1}, v{vIDX}
    """)
    for st in range(2):
        for s in range(NS):
            a(f"v_mov_b32 v{A(st, s)}, 0")
            a(f"v_mov_b32 v{G(st, s)}, 0")
    a(f"""
    s_waitcnt vmcnt(3)
    v_cndmask_b32 v{vLEN}, 0, v{vLEN}, vcc
    v_bfe_u32 v{vT}, v{vLEN}, 2, 14
    v_lshrrev_b32 v{vLEN}, 18, v{vLEN}
    v_add_u32 v{vIDX}, v{vIDX}, v{vT}
    v_add_u32 v{vT + 1}, {SEG - 1}, v{vLEN}
    v_mul_u32_u24 v{vT + 1}, 16645, v{vT + 1}
    v_lshrrev_b32 v{vT + 1}, 20, v{vT + 1}
    v_min_u32 v{vT + 2}, {SEG}, v{vLEN}
    v_cmp_lt_u32 {sr(sMASK, 2)}, 0, v{vLEN}
    v_lshl_or_b32 v{vW}, v{vIDX}, 6, v{vT + 2}
    """)
    wave_scan(a, "v_add_u32", vT + 1)
    a(f"""
    s_nop 0
    v_readlane_b32 s{sT}, v{vT + 1}, 63
    s_nop 3
    s_add_u32 s{sQUOTA}, s{sT}, {FIX - 1}
    s_mul_i32 s{sQUOTA}, s{sQUOTA}, 52429
    s_lshr_b32 s{sQUOTA}, s{sQUOTA}, 18
    s_add_u32 s{sNT}, s{sT}, {NS - 1}
    s_mul_i32 s{sNT}, s{sNT}, 34953
    s_lshr_b32 s{sNT}, s{sNT}, 19
    """)

    def pop(st, s):
        back, stub, empty, issue = a.uid("pb"), a.uid("pr"), a.uid("pe"), a.uid("pi")
        w = sW[st] + s
        if s >= 12 and OPT["greedy"] != "1":
            a(f"""
            s_cmp_le_u32 s{sQUOTA}, {s}
            s_cbranch_scc1 {empty}
            """)
        a(f"""
        s_cmp_eq_u64 {sr(sMASK, 2)}, 0
        s_cbranch_scc1 {stub}
        {back}:
        s_ff1_i32_b64 s{sL}, {sr(sMASK, 2)}
        s_bitset0_b64 {sr(sMASK, 2)}, s{sL}
        v_readlane_b32 s{w}, v{vW}, s{sL}
        s_lshr_b32 s{sT}, s{w}, 6
        s_bfm_b64 exec, s{w}, 0
        v_add_lshl_u32 v{A(st, s)}, s{sT}, v{vLANE}, 2
        v_lshrrev_b32 v{G(st, s)}, 1, v{A(st, s)}
        {issue}:
        buffer_load_dword v{A(st, s)}, v{A(st, s)}, {sr(sWS, 4)}, 0 offen {ld1}
        buffer_load_ushort v{G(st, s)}, v{G(st, s)}, {sr(sWS, 4)}, s{sR1B} offen {ld1}
        """)
        a.begin_tail()
        a(f"""
        {stub}:
        s_cmp_lg_u32 s{sDONE}, 0
        s_cbranch_scc1 {empty}
        """)
        refill_code(a, vIDX, vLEN, vW, vT + 3, sMASK)
        a(f"""
        s_cmp_eq_u64 {sr(sMASK, 2)}, 0
        s_cbranch_scc0 {back}
        s_mov_b32 s{sDONE}, 1
        {empty}:
        s_mov_b32 s{w}, 0
        s_mov_b64 exec, 0
        s_branch {issue}
        """)
        a.end_tail()

    stamp(a, 60)
    for s in range(NS):
        pop(0, s)
    a("s_mov_b64 exec, -1")
    wave_scan(a, "v_add_u32", vT)
    a(f"""
    v_mov_b32 v{vT + 1}, s{sNT}
    s_waitcnt lgkmcnt(0)
    s_barrier
    s_lshl_b64 exec, 1, 63
    ds_max_u32 v{vZERO}, v{vT + 1} offset:{MISC}
    ds_add_u32 v{vZERO}, v{vT} offset:{MISC + 4}
    """)
    for s in range(NS):
        pop(1, s)
    a(f"""
    s_mov_b64 exec, -1
    s_waitcnt vmcnt({4 * NS})
    """)
    stamp(a, 61)
    global_max(a, vZ, sT)
    a(f"""
    v_rcp_f32 v{vT}, s{sT}
    s_nop 0
    v_mul_f32 v{vT}, {float(QMAX * 4)}, v{vT}
    """.replace(str(float(QMAX * 4)), "0x467f0000"))
    for i in range(8):
        a(f"""
        v_lshlrev_b32 v{vT + 2}, 16, v{vSTG + i}
        v_and_b32 v{vT + 3}, 0xffff0000, v{vSTG + i}
        v_mul_f32 v{vT + 2}, v{vT}, v{vT + 2}
        v_mul_f32 v{vT + 3}, v{vT}, v{vT + 3}
        v_cvt_pk_f16_f32 v{vSTG + i}, v{vT + 2}, v{vT + 3}
        """)
    a(f"""
    ds_write_b128 v{vSTG + 8}, {vr(vSTG, 4)} offset:{SLICE}
    ds_write_b128 v{vSTG + 9}, {vr(vSTG + 4, 4)} offset:{SLICE}
    s_waitcnt lgkmcnt(0)
    s_barrier
    ds_read_b64 {vr(vT, 2)}, v{vZERO} offset:{MISC}
    s_waitcnt lgkmcnt(0)
    v_readfirstlane_b32 s{sNT}, v{vT}
    v_readfirstlane_b32 s{sBASE}, v{vT + 1}
    s_nop 3
    s_max_u32 s{sNT}, s{sNT}, {FIX}
    s_mul_i32 s{sT}, s{sB}, {PAD2}
    s_add_u32 s{sBASE}, s{sBASE}, s{sT}
    s_add_u32 s{sBASE}, s{sBASE}, 15
    s_and_b32 s{sBASE}, s{sBASE}, -16
    s_mov_b32 s{sKT}, 0
    s_mov_b32 s{sNPREV}, 0
    s_mov_b32 s{sBPREV}, {R2}
    """)

    def copy_reads(chunks, regs, masks):
        a("s_mov_b64 exec, -1")
        for i, m in zip(chunks, masks):
            a(f"""
            s_sub_i32 s{sT}, s{sNPREV}, {i * 2048}
            v_cmp_gt_i32 {sr(m, 2)}, s{sT}, v{vT2}
            """)
        for i, r, m in zip(chunks, regs, masks):
            addr = vXA if i < 4 else vXB
            a(f"""
            s_mov_b64 exec, {sr(m, 2)}
            ds_read_b128 {vr(r, 4)}, v{addr} offset:{(i % 4) * 16384}
            """)

    def copy_stores(chunks, regs, masks):
        for i, r, m in zip(chunks, regs, masks):
            lab = a.uid("cs")
            a(f"""
            s_mov_b64 exec, {sr(m, 2)}
            s_cbranch_execz {lab}
            s_add_u32 s{sT}, s{sBPREV}, {i * 16384}
            buffer_store_dwordx4 {vr(r, 4)}, v{vX4}, {sr(sWS, 4)}, s{sT} offen {OPT['st2']}
            {lab}:
            """)

    def gathers(st, bt):
        for s in bt:
            a(f"""
            s_bfm_b64 exec, s{sW[st] + s}, 0
            v_lshrrev_b32 v{Z(s)}, 17, v{A(st, s)}
            v_and_b32 v{Z(s)}, 0x7ff8, v{Z(s)}
            ds_read_b64 {vr(Z(s), 2)}, v{Z(s)} offset:{SLICE}
            """)

    def encode(st, bt):
        for s in bt:
            z, aa, g = Z(s), A(st, s), G(st, s)
            a(f"""
            s_bfm_b64 exec, s{sW[st] + s}, 0
            v_fma_mix_f32 v{vT}, v{z}, v{g}, s{sK} op_sel_hi:[1,1,0]
            v_fma_mix_f32 v{vT + 1}, v{z}, v{g}, s{sK} op_sel:[1,0,0] op_sel_hi:[1,1,0]
            v_fma_mix_f32 v{vT + 2}, v{z + 1}, v{g}, s{sK} op_sel_hi:[1,1,0]
            v_fma_mix_f32 v{vT + 3}, v{z + 1}, v{g}, s{sK} op_sel:[1,0,0] op_sel_hi:[1,1,0]
            v_and_b32 v{g}, 0xfffff, v{aa}
            v_lshl_add_u32 v{z}, v{vT + 1}, 13, v{vT}
            v_mul_hi_u32_u24 v{g}, s{sCB}, v{g}
            v_lshl_add_u32 v{z + 1}, v{vT + 3}, 13, v{vT + 2}
            v_lshrrev_b32 v{vT}, 6, v{aa}
            v_lshl_add_u32 v{z}, v{aa}, 26, v{z}
            v_and_b32 v{aa}, 0x3fc, v{g}
            v_lshl_add_u32 v{z + 1}, v{vT}, 26, v{z + 1}
            ds_add_rtn_u32 v{g}, v{aa}, v{vEIGHT} offset:{HOFF}
            """)

    def phase_h(st):
        greedy = OPT["greedy"] == "1"
        if greedy:
            b0, b1, b2, b3 = range(0, 5), range(5, 10), range(10, 15), None
        else:
            b0, b1, b2, b3 = range(0, 5), range(5, 9), range(9, 13), range(13, 15)
        regs = [vSTG, vSTG + 4, vSTG + 8]
        lab, w0, w1, short = a.uid("h3"), a.uid("hw0"), a.uid("hw1"), a.uid("hs")
        copy_reads([0, 1, 2], regs, sCM)
        a(f"""
        s_cmp_lg_u32 s{sNOLD}, 0
        s_cbranch_scc1 {w0}
        s_waitcnt vmcnt({2 * NS})
        {w1}:
        """)
        a.begin_tail()
        a(f"""
        {w0}:
        s_waitcnt vmcnt(0)
        s_branch {w1}
        """)
        a.end_tail()
        gathers(st, b0)
        a(f"""
        s_cmp_eq_u32 s{sW[st] + 5}, 0
        s_cbranch_scc1 {short}
        """)
        gathers(st, b1)
        a(f"s_waitcnt lgkmcnt({len(b1)})")
        copy_stores([0, 1, 2], regs, sCM)
        copy_reads([3, 4, 5], regs, sCM)
        encode(st, b0)
        gathers(st, b2)
        a(f"s_waitcnt lgkmcnt({len(b0) + len(b2)})")
        copy_stores([3, 4, 5], regs, sCM)
        copy_reads([6, 7], regs, sCM)
        encode(st, b1)
        a(f"s_waitcnt lgkmcnt({len(b1)})")
        copy_stores([6, 7], regs, sCM)
        encode(st, b2)
        if b3:
            a(f"""
            s_cmp_eq_u32 s{sW[st] + 13}, 0
            s_cbranch_scc1 {lab}
            """)
            gathers(st, b3)
            a("s_waitcnt lgkmcnt(0)")
            encode(st, b3)
        a(f"""
        {lab}:
        s_mov_b64 exec, -1
        s_waitcnt lgkmcnt(0)
        s_barrier
        """)
        a.begin_tail()
        a(f"""
        {short}:
        s_waitcnt lgkmcnt(0)
        """)
        copy_stores([0, 1, 2], regs, sCM)
        copy_reads([3, 4, 5], regs, sCM)
        a("s_waitcnt lgkmcnt(0)")
        copy_stores([3, 4, 5], regs, sCM)
        copy_reads([6, 7], regs, sCM)
        encode(st, b0)
        a(f"s_waitcnt lgkmcnt({len(b0)})")
        copy_stores([6, 7], regs, sCM)
        a(f"s_branch {lab}")
        a.end_tail()

    c, z4, b4, x = vSTG, vSTG + 4, vSTG + 8, vT

    def phase_p():
        lab = a.uid("p")
        a(f"""
        s_cmp_lg_u32 s{sWAVE}, 0
        s_cbranch_scc1 {lab}
        ds_read_b128 {vr(c, 4)}, v{vX4} offset:{HOFF}
        v_mov_b32 v{z4}, 0
        v_mov_b32 v{z4 + 1}, 0
        v_mov_b32 v{z4 + 2}, 0
        v_mov_b32 v{z4 + 3}, 0
        s_waitcnt lgkmcnt(0)
        """)
        prefix_core(a, c, z4, b4, x, vX4, HOFF, POFF)
        a(f"""
        s_lshl_b64 exec, 1, 63
        ds_write_b32 v{vZERO}, v{x} offset:{MISC + 16}
        s_mov_b64 exec, -1
        s_waitcnt lgkmcnt(0)
        {lab}:
        s_barrier
        """)

    def offsets_store():
        lab, ovf, back = a.uid("os"), a.uid("ovf"), a.uid("ovfback")
        a(f"""
        s_cmp_lg_u32 s{sWAVE}, 0
        s_cbranch_scc1 {lab}
        s_mov_b64 exec, -1
        s_lshl_b32 s{sQ}, s{sKT}, 8
        s_add_u32 s{sQ}, s{sQ}, s{sB}
        s_cmp_ge_u32 s{sKT}, {FIX}
        s_cbranch_scc1 {ovf}
        {back}:
        s_lshl_b32 s{sQ}, s{sQ}, 2
        s_add_u32 s{sT}, s{sQ}, {OFF2}
        """)
        for j in range(4):
            a(f"v_lshrrev_b32 v{b4 + j}, 3, v{b4 + j}")
        for j in range(4):
            a(f"v_lshl_or_b32 v{c + j}, v{c + j}, 13, v{b4 + j}")
        for j in range(4):
            a(f"buffer_store_dword v{c + j}, v{vROW}, {sr(sWS, 4)}, s{sT} offen")
            if j < 3:
                a(f"s_add_u32 s{sT}, s{sT}, {ROW2}")
        a(f"""
        v_mov_b32 v{z4}, s{sBASE}
        s_add_u32 s{sT}, s{sQ}, {DIR2}
        s_mov_b64 exec, 1
        buffer_store_dword v{z4}, v{vZERO}, {sr(sWS, 4)}, s{sT} offen
        {lab}:
        """)
        a.begin_tail()
        a(f"""
        {ovf}:
        s_mov_b64 exec, 1
        v_mov_b32 v{z4}, 1
        s_mov_b32 s{sT}, {CNT}
        buffer_atomic_add v{z4}, v{vZERO}, {sr(sWS, 4)}, s{sT} offen sc0
        s_waitcnt vmcnt(0)
        v_readfirstlane_b32 s{sQ}, v{z4}
        s_mov_b64 exec, -1
        s_nop 3
        s_add_u32 s{sQ}, s{sQ}, {FIX * NB}
        s_branch {back}
        """)
        a.end_tail()

    def phase_s(st):
        l1, nop, fin = a.uid("sa"), a.uid("sn"), a.uid("sf")
        a(f"ds_read_b32 v{vT}, v{vZERO} offset:{MISC + 16}")
        for s in range(NS):
            if s in (5, 13):
                a(f"""
                s_cmp_eq_u32 s{sW[st] + s}, 0
                s_cbranch_scc1 {l1}
                """)
            a(f"""
            s_bfm_b64 exec, s{sW[st] + s}, 0
            ds_read_b32 v{A(st, s)}, v{A(st, s)} offset:{POFF}
            """)
        a(f"{l1}:")
        offsets_store()
        a(f"""
        s_mov_b64 exec, -1
        s_mov_b32 s{sNOLD}, s{sDONE}
        s_lshl_b32 s{sBPREV}, s{sBASE}, 3
        s_add_u32 s{sBPREV}, s{sBPREV}, {R2}
        s_cmp_lg_u32 s{sDONE}, 0
        s_waitcnt lgkmcnt(0)
        v_readfirstlane_b32 s{sNPREV}, v{vT}
        s_cbranch_scc1 {nop}
        """)

        def put(s):
            a(f"""
            s_bfm_b64 exec, s{sW[st] + s}, 0
            v_add_u32 v{A(st, s)}, v{A(st, s)}, v{G(st, s)}
            ds_write_b64 v{A(st, s)}, {vr(Z(s), 2)} offset:{SORT}
            """)
        for s in range(NS):
            put(s)
            pop(st, s)
        a(f"""
        {fin}:
        s_lshr_b32 s{sNPREV}, s{sNPREV}, 3
        s_add_u32 s{sNPREV}, s{sNPREV}, 15
        s_and_b32 s{sNPREV}, s{sNPREV}, -16
        s_add_u32 s{sBASE}, s{sBASE}, s{sNPREV}
        s_waitcnt lgkmcnt(0)
        s_barrier
        """)
        a.begin_tail()
        a(f"{nop}:")
        for s in range(NS):
            if s in (5, 10):
                a(f"""
                s_cmp_eq_u32 s{sW[st] + s}, 0
                s_cbranch_scc1 {fin}
                """)
            put(s)
            a(f"s_mov_b32 s{sW[st] + s}, 0")
        a(f"s_branch {fin}")
        a.end_tail()

    a("L_k2_loop:")
    for st in range(2):
        stamp(a, 4, sKT)
        phase_h(st)
        stamp(a, 5, sKT)
        phase_p()
        stamp(a, 6, sKT)
        phase_s(st)
        a(f"""
        s_add_u32 s{sKT}, s{sKT}, 1
        s_cmp_ge_u32 s{sKT}, s{sNT}
        """)
        a("s_cbranch_scc1 L_k2_final" if st == 0 else "s_cbranch_scc0 L_k2_loop")
    a("L_k2_final:")
    stamp(a, 1)
    regs = [vSTG, vSTG + 4, vSTG + 8] + [vZ + 4 * i for i in range(5)]
    masks = [32 + 2 * i for i in range(8)]
    copy_reads(list(range(8)), regs, masks)
    a("s_waitcnt lgkmcnt(0)")
    copy_stores(list(range(8)), regs, masks)
    stamp_flush(a, 1, sWS, sWAVE)
    a("""
    L_k2_end:
    s_endpgm
    """)
    a.flush_tail()
    a("L_k2_last:")
    return name, nv, 80, LDS


def k3(a):
    name = "accum_out_kernel"
    kernel_header(a, name)
    D = int(OPT["d3"])
    ACC, MISC = 0, 1024
    LDS = 131072
    sWAVE, sB = 3, 4
    sWS, sM, sDI, sOUT = 8, 12, 16, 20
    sMASK, sT, sU, sL, sLIVE, sR2 = 24, 26, 27, 28, 29, 30
    sNE, sQB, sPASS, sBAS, sUNIT, sDONE = 31, 32, 33, 34, 35, 5
    sC, sP, sSEL = 36, 38, 6
    sW = 40
    sWD, sWU, sC8, sWX = 56, 64, 72, 76
    vLANE, vZERO, vIDX, vLEN, vIDX2, vLEN2, vW, vQ2 = 1, 2, 3, 4, 5, 6, 7, 8
    vT = 10
    vZ = 20
    vM = vZ + 2 * D
    vS = vM + 8
    vRR = vS + 16
    vFA = vRR + 16
    vDI = vFA + 16
    vE8 = vDI + 4
    vRB = vE8 + 4
    nrb = 2
    nv = vRB + 8 * nrb
    Z = lambda i: vZ + 2 * i
    EPOCH = 512 // D

    a(f"""
    s_cmp_ge_u32 s2, {NB}
    s_cbranch_scc1 L_k3_end
    """)
    if OPT["pf3"] == "1":
        code_prefetch(a, "accum_out_kernel", "L_text_end", 16384, nv, 76)
        nv += 1
    a(f"""
    s_load_dwordx2 s[6:7], s[0:1], 104
    s_load_dwordx2 s[36:37], s[0:1], 0
    s_load_dwordx2 s[38:39], s[0:1], 24
    s_load_dwordx2 s[40:41], s[0:1], 88
    s_load_dwordx2 s[42:43], s[0:1], 40
    s_load_dwordx8 s[44:51], s[0:1], 56
    v_lshrrev_b32 v{vT}, 6, v0
    v_and_b32 v{vLANE}, 63, v0
    v_readfirstlane_b32 s{sWAVE}, v{vT}
    s_and_b32 s{sB}, s2, 7
    s_lshl_b32 s{sB}, s{sB}, 5
    s_lshr_b32 s{sT}, s2, 3
    s_add_u32 s{sB}, s{sB}, s{sT}
    v_mov_b32 v{vZERO}, 0
    v_and_b32 v{vQ2}, 15, v0
    v_lshl_add_u32 v{vQ2}, v{vT}, 4, v{vQ2}
    v_bfe_u32 v{vT + 1}, v0, 4, 2
    v_lshl_add_u32 v{vQ2}, v{vT + 1}, 8, v{vQ2}
    v_add_u32 v{vQ2}, 0x400, v{vQ2}
    s_mov_b32 s{sR2}, {R2}
    s_mov_b32 s{sQB}, 0
    s_waitcnt lgkmcnt(0)
    """)
    stamp(a, 0)
    srd(a, sWS, 6, WS_BYTES)

    def desc_loads():
        a(f"""
        v_add_lshl_u32 v{vT}, s{sQB}, v0, 2
        v_add_lshl_u32 v{vT + 1}, s{sQB}, v{vQ2}, 2
        s_mul_i32 s{sT}, s{sB}, {ROW2}
        s_add_u32 s{sT}, s{sT}, {OFF2}
        s_mov_b32 s{sU}, {DIR2}
        buffer_load_dword v{vLEN}, v{vT}, {sr(sWS, 4)}, s{sT} offen
        buffer_load_dword v{vIDX}, v{vT}, {sr(sWS, 4)}, s{sU} offen
        buffer_load_dword v{vLEN2}, v{vT + 1}, {sr(sWS, 4)}, s{sT} offen
        buffer_load_dword v{vIDX2}, v{vT + 1}, {sr(sWS, 4)}, s{sU} offen
        """)

    def desc_build():
        a(f"""
        v_add_u32 v{vT}, s{sQB}, v0
        v_add_u32 v{vT + 1}, s{sQB}, v{vQ2}
        v_cmp_gt_u32 vcc, s{sNE}, v{vT}
        v_cmp_gt_u32 {sr(sMASK, 2)}, s{sNE}, v{vT + 1}
        s_mov_b32 s{sDONE}, 0
        s_nop 0
        v_cndmask_b32 v{vLEN}, 0, v{vLEN}, vcc
        v_cndmask_b32 v{vLEN2}, 0, v{vLEN2}, {sr(sMASK, 2)}
        v_and_b32 v{vT}, 0xffff, v{vLEN}
        v_and_b32 v{vT + 1}, 0xffff, v{vLEN2}
        v_lshrrev_b32 v{vLEN}, 16, v{vLEN}
        v_lshrrev_b32 v{vLEN2}, 16, v{vLEN2}
        v_add_u32 v{vIDX}, v{vIDX}, v{vT}
        v_add_u32 v{vIDX2}, v{vIDX2}, v{vT + 1}
        v_min_u32 v{vT}, {SEG}, v{vLEN}
        v_cmp_lt_u32 {sr(sMASK, 2)}, 0, v{vLEN}
        v_lshl_or_b32 v{vW}, v{vIDX}, 6, v{vT}
        s_nop 3
        """)

    def pop(i):
        back, stub, empty, issue = a.uid("pb"), a.uid("pr"), a.uid("pe"), a.uid("pi")
        a(f"""
        s_cmp_eq_u64 {sr(sMASK, 2)}, 0
        s_cbranch_scc1 {stub}
        {back}:
        s_ff1_i32_b64 s{sL}, {sr(sMASK, 2)}
        s_bitset0_b64 {sr(sMASK, 2)}, s{sL}
        v_readlane_b32 s{sW + i}, v{vW}, s{sL}
        s_lshr_b32 s{sT}, s{sW + i}, 6
        s_bfm_b64 exec, s{sW + i}, 0
        v_add_lshl_u32 v{Z(i)}, s{sT}, v{vLANE}, 3
        {issue}:
        buffer_load_dwordx2 {vr(Z(i), 2)}, v{Z(i)}, {sr(sWS, 4)}, s{sR2} offen {OPT['ld2']}
        """)
        a.begin_tail()
        a(f"""
        {stub}:
        s_cmp_lg_u32 s{sDONE}, 0
        s_cbranch_scc1 {empty}
        """)
        refill_code(a, vIDX, vLEN, vW, vT + 8, sMASK, pend=((vIDX, vLEN), (vIDX2, vLEN2)))
        a(f"""
        s_cmp_eq_u64 {sr(sMASK, 2)}, 0
        s_cbranch_scc0 {back}
        s_mov_b32 s{sDONE}, 1
        {empty}:
        s_mov_b32 s{sW + i}, 0
        s_mov_b64 exec, 0
        s_branch {issue}
        """)
        a.end_tail()

    def process(i):
        z, t = Z(i), vT
        a(f"""
        s_bfm_b64 exec, s{sW + i}, 0
        v_perm_b32 v{t + 4}, v{z + 1}, v{z}, s{sSEL}
        v_and_b32 v{t}, 0x1fff, v{z}
        v_bfe_u32 v{t + 1}, v{z}, 13, 13
        v_and_b32 v{t + 4}, 0xfcfc, v{t + 4}
        v_and_b32 v{t + 2}, 0x1fff, v{z + 1}
        v_bfe_u32 v{t + 3}, v{z + 1}, 13, 13
        v_add_u32 v{t + 4}, v{t + 4}, v{t + 4}
        v_lshl_add_u64 {vr(t, 2)}, {vr(t, 2)}, 0, {sr(sC, 2)}
        v_lshl_add_u64 {vr(t + 2, 2)}, {vr(t + 2, 2)}, 0, {sr(sC, 2)}
        ds_add_u64 v{t + 4}, {vr(t, 2)} offset:{ACC}
        ds_add_u64 v{t + 4}, {vr(t + 2, 2)} offset:{ACC + 512}
        """)

    def zero_acc():
        a(f"""
        v_mov_b32 v{vT}, 0
        v_mov_b32 v{vT + 1}, 0
        v_mov_b32 v{vT + 2}, 0
        v_mov_b32 v{vT + 3}, 0
        v_lshlrev_b32 v{vT + 4}, 4, v{vLANE}
        s_lshl_b32 s{sT}, s{sWAVE}, 11
        v_add_u32 v{vT + 4}, s{sT}, v{vT + 4}
        v_add_u32 v{vT + 5}, 0x10000, v{vT + 4}
        ds_write_b128 v{vT + 4}, {vr(vT, 4)} offset:{ACC}
        ds_write_b128 v{vT + 4}, {vr(vT, 4)} offset:{ACC + 32768}
        ds_write_b128 v{vT + 5}, {vr(vT, 4)} offset:{ACC}
        ds_write_b128 v{vT + 5}, {vr(vT, 4)} offset:{ACC + 32768}
        ds_write_b32 v{vZERO}, v{vZERO} offset:{MISC}
        """)

    desc_loads()
    srd(a, sM, 36, E * 8)
    srd(a, sDI, 38, E * 2)
    srd(a, sOUT, 40, E * 8)
    a(f"""
    s_add_u32 s6, s6, {CNT}
    s_addc_u32 s7, s7, 0
    s_load_dword s{sNE}, s[6:7], 0
    s_load_dwordx8 {sr(sWD, 8)}, s[48:49], 0
    s_load_dwordx8 {sr(sWU, 8)}, s[50:51], 0
    s_load_dwordx4 {sr(sC8, 4)}, s[42:43], 0
    s_mov_b64 s[92:93], s[44:45]
    s_mov_b64 s[94:95], s[46:47]
    """)
    for i in range(D):
        a(f"v_mov_b32 v{Z(i)}, 0")
    for i in range(16):
        a(f"v_mov_b32 v{vFA + i}, 0")
    zero_acc()
    a(f"""
    s_mul_i32 s{sT}, s{sB}, {SPAN}
    v_mov_b32 v{vT + 8}, 0x8000000
    v_add_u32 v{vE8}, s{sT}, v0
    v_add_u32 v{vE8 + 1}, 0x400, v{vE8}
    v_add_u32 v{vE8 + 2}, 0x800, v{vE8}
    v_add_u32 v{vE8 + 3}, 0xc00, v{vE8}
    v_cmp_gt_u32 vcc, {SPAN - 3072}, v0
    s_mov_b32 s{sC}, 0xfffff000
    s_mov_b32 s{sC + 1}, 0xffffefff
    v_cndmask_b32 v{vE8 + 3}, v{vT + 8}, v{vE8 + 3}, vcc
    s_lshr_b32 s{sBAS}, s{sWAVE}, 2
    s_lshl_b32 s{sBAS}, s{sBAS}, 1
    s_add_u32 s{sBAS}, s{sBAS}, 1
    s_mov_b32 s{sPASS}, 0
    s_waitcnt lgkmcnt(0)
    s_mov_b32 s{sSEL}, 0x0c0c0703
    s_add_u32 s{sNE}, s{sNE}, {FIX * NB}
    s_waitcnt vmcnt(0)
    """)
    stamp(a, 4)
    desc_build()
    for i in range(D):
        pop(i)
    def side_loads():
        a(f"""
        s_mov_b64 exec, -1
        v_lshlrev_b32 v{vT + 8}, 4, v{vLANE}
        s_mov_b32 s{sT}, {MAXS}
        buffer_load_dwordx4 {vr(vS, 4)}, v{vT + 8}, {sr(sWS, 4)}, s{sT} offen
        """)
        for r in range(4):
            a(f"v_lshlrev_b32 v{vDI + r}, 1, v{vE8 + r}")
        for r in range(4):
            a(f"buffer_load_ushort v{vDI + r}, v{vDI + r}, {sr(sDI, 4)}, 0 offen")
        for r in range(4):
            a(f"v_lshlrev_b32 v{vE8 + r}, 3, v{vE8 + r}")
        for r in range(4):
            a(f"buffer_load_dwordx2 {vr(vM + 2 * r, 2)}, v{vE8 + r}, {sr(sM, 4)}, 0 offen {OPT['ld_m']}")

    late = OPT["late3"] == "1"
    if OPT["prio3"] == "1":
        a("s_setprio 3")
    if late:
        a("s_barrier")
        side_loads()
    else:
        side_loads()
        a("s_barrier")
    stamp(a, 7)
    for i in range(D):
        a(f"s_waitcnt vmcnt({D - 1 + 9})")
        process(i)
        pop(i)
    a(f"""
    L_k3_loop:
    s_add_u32 s{sPASS}, s{sPASS}, 1
    s_cmp_eq_u32 s{sPASS}, s{sBAS}
    s_cbranch_scc1 L_k3_basis
    L_k3_basisback:
    """)
    if OPT["prio3"] == "1":
        n = 80 // D
        for p, at in ((2, n * 3 // 10), (1, n * 6 // 10), (0, n * 8 // 10)):
            lab = a.uid("prio")
            a(f"""
            s_cmp_lg_u32 s{sPASS}, {at}
            s_cbranch_scc1 {lab}
            s_setprio {p}
            {lab}:
            """)
    a(f"""
    s_cmp_eq_u32 s{sW}, 0
    s_cbranch_scc1 L_k3_drained
    s_cmp_ge_u32 s{sPASS}, {EPOCH}
    s_cbranch_scc1 L_k3_full
    L_k3_pass:
    """)
    for i in range(D):
        a(f"s_waitcnt vmcnt({D - 1})")
        process(i)
        pop(i)
    a(f"""
    s_branch L_k3_loop
    L_k3_drained:
    s_mov_b64 exec, -1
    s_add_u32 s{sQB}, s{sQB}, 2048
    s_cmp_lt_u32 s{sQB}, s{sNE}
    s_cbranch_scc1 L_k3_next
    s_sub_u32 s{sQB}, s{sQB}, 2048
    s_cmp_lt_u32 s{sPASS}, s{sBAS}
    s_cbranch_scc0 L_k3_join
    s_mov_b32 s{sBAS}, s{sPASS}
    s_branch L_k3_basis
    L_k3_join:
    """)
    stamp(a, 8)
    a(f"""
    s_waitcnt lgkmcnt(0)
    s_barrier
    """)
    stamp(a, 9)

    a.begin_tail()
    a("L_k3_next:")
    desc_loads()
    a("s_waitcnt vmcnt(0)")
    desc_build()
    a(f"""
    s_branch L_k3_prime
    L_k3_full:
    s_mov_b64 exec, -1
    v_mov_b32 v{vT}, 1
    ds_write_b32 v{vZERO}, v{vT} offset:{MISC}
    s_branch L_k3_join
    """)
    a.end_tail()

    def fold(rs):
        for r in rs:
            t = vRB + 4 * r
            a(f"""
            v_lshrrev_b32 v{vT}, 3, v{vE8 + r}
            v_add_u32 v{vT + 1}, {TOPK}, v{vT}
            v_add_u32 v{vT}, {TOPK << 6}, v{vT}
            v_and_b32 v{vT + 1}, 63, v{vT + 1}
            v_and_b32 v{vT}, 0xfc0, v{vT}
            v_lshl_or_b32 v{vT}, v{vT}, 2, v{vT + 1}
            v_lshlrev_b32 v{vT}, 3, v{vT}
            ds_read_b64 {vr(t, 2)}, v{vT} offset:{ACC}
            ds_read_b64 {vr(t + 2, 2)}, v{vT} offset:{ACC + 512}
            """)
        a(f"""
        ds_read_b32 v{vT + 4}, v{vZERO} offset:{MISC}
        s_waitcnt lgkmcnt(0)
        v_readfirstlane_b32 s{sLIVE}, v{vT + 4}
        """)
        for r in rs:
            t = vRB + 4 * r
            a(f"""
            v_lshrrev_b32 v{vT}, 31, v{t}
            v_lshrrev_b32 v{vT + 1}, 31, v{t + 2}
            v_add_u32 v{t + 1}, v{t + 1}, v{vT}
            v_add_u32 v{t + 3}, v{t + 3}, v{vT + 1}
            """)
            for j in range(4):
                a(f"v_cvt_f32_i32 v{t + j}, v{t + j}")
            for j in range(4):
                a(f"v_add_f32 v{vFA + 4 * r + j}, v{vFA + 4 * r + j}, v{t + j}")

    def wpair(sw):
        a(f"""
        s_lshl_b32 s{sP}, s{sw}, 16
        s_and_b32 s{sP + 1}, s{sw}, 0xffff0000
        """)

    def pkmac(first, dst, src):
        base, hi = src & ~1, src & 1
        if first:
            a(f"v_pk_mul_f32 {vr(dst, 2)}, {vr(base, 2)}, {sr(sP, 2)} op_sel:[{hi},0] op_sel_hi:[{hi},1]")
        else:
            a(f"v_pk_fma_f32 {vr(dst, 2)}, {vr(base, 2)}, {sr(sP, 2)}, {vr(dst, 2)} op_sel:[{hi},0,0] op_sel_hi:[{hi},1,1]")

    def epilogue(rs):
        for k in range(4):
            for jp in range(2):
                wpair(sWD + 2 * k + jp)
                for r in rs:
                    pkmac(k == 0, vRB + 4 * r + 2 * jp, vFA + 4 * r + k)
        for r in rs:
            for j in range(4):
                a(f"v_mul_f32 v{vRB + 4 * r + j}, v{vRB + 4 * r + j}, v{vS + 4 * r + j}")
        for k in range(4):
            for jp in range(2):
                wpair(sWU + 2 * k + jp)
                for r in rs:
                    pkmac(k == 0, vFA + 4 * r + 2 * jp, vRB + 4 * r + k)
        for r in rs:
            t, m = vRB + 4 * r, vM + 2 * r
            a(f"""
            v_lshlrev_b32 v{t}, 16, v{m}
            v_and_b32 v{t + 1}, 0xffff0000, v{m}
            v_lshlrev_b32 v{t + 2}, 16, v{m + 1}
            v_and_b32 v{t + 3}, 0xffff0000, v{m + 1}
            """)
            for j in range(4):
                a(f"v_fmac_f32 v{t + j}, v{vFA + 4 * r + j}, v{vRR + 4 * r + j}")
            a(f"""
            v_cvt_pk_bf16_f32 v{t}, v{t}, v{t + 1}
            v_cvt_pk_bf16_f32 v{t + 1}, v{t + 2}, v{t + 3}
            buffer_store_dwordx2 {vr(t, 2)}, v{vE8 + r}, {sr(sOUT, 4)}, 0 offen {OPT['st_out']}
            """)

    a(f"""
    s_cmp_eq_u32 s{sWAVE}, 0
    s_cbranch_scc1 L_k3_epi4
    """)
    for rs, pre in (([0, 1, 2], ""), ([0, 1, 2, 3], "L_k3_epi4:")):
        if pre:
            a(pre)
        fold(rs)
        a(f"""
        s_cmp_lg_u32 s{sLIVE}, 0
        s_cbranch_scc1 L_k3_again
        """)
        epilogue(rs)
        stamp_flush(a, 2, sWS, sWAVE)
        a("s_endpgm")
    a(f"""
    L_k3_again:
    s_barrier
    """)
    zero_acc()
    a(f"""
    s_mov_b32 s{sPASS}, s{sBAS}
    s_waitcnt lgkmcnt(0)
    s_barrier
    s_branch L_k3_basisback
    L_k3_prime:
    """)
    for i in range(D):
        pop(i)
    a("s_branch L_k3_basisback")

    def basis(rs):
        x = lambda n, kp: vRB + 8 * n + 2 * kp
        for n, r in enumerate(rs):
            a(f"v_lshlrev_b32 v{vDI + r}, 16, v{vDI + r}")
        for kp in range(4):
            wpair(sC8 + kp)

            def rnd():
                for n in range(len(rs)):
                    a(f"v_cvt_pk_bf16_f32 v{x(n, kp)}, v{x(n, kp)}, v{x(n, kp) + 1}")
                for n in range(len(rs)):
                    a(f"v_and_b32 v{x(n, kp) + 1}, 0xffff0000, v{x(n, kp)}")
                for n in range(len(rs)):
                    a(f"v_lshlrev_b32 v{x(n, kp)}, 16, v{x(n, kp)}")

            def each(op):
                for n in range(len(rs)):
                    for h in range(2):
                        a(op.format(v=f"v{x(n, kp) + h}"))
            for n, r in enumerate(rs):
                d = vDI + r
                hi = d & 1
                a(f"v_pk_add_f32 {vr(x(n, kp), 2)}, {vr(d & ~1, 2)}, {sr(sP, 2)} op_sel:[{hi},0] op_sel_hi:[{hi},1] neg_lo:[0,1] neg_hi:[0,1]")
            rnd()
            each("v_mul_f32 {v}, {v}, {v}")
            rnd()
            each("v_mul_f32 {v}, 0xc1200000, {v}")
            rnd()
            each("v_mul_f32 {v}, 0x3fb8aa3b, {v}")
            each("v_exp_f32 {v}, {v}")
            a("s_nop 0")
            rnd()
        for dst, ptr in ((vS, 94), (vRR, 92)):
            a(f"""
            s_load_dwordx16 {sr(sWX, 16)}, s[{ptr}:{ptr + 1}], 0
            s_waitcnt lgkmcnt(0)
            """)
            for k in range(8):
                for jp in range(2):
                    wpair(sWX + 2 * k + jp)
                    for n, r in enumerate(rs):
                        pkmac(k == 0, dst + 4 * r + 2 * jp, vRB + 8 * n + k)
        for r in rs:
            for j in range(4):
                a(f"v_mul_f32 v{vS + 4 * r + j}, v{vT + 9}, v{vS + 4 * r + j}")
            for jp in range(2):
                y = vRR + 4 * r + 2 * jp
                a(f"""
                v_cvt_pk_bf16_f32 v{y}, v{y}, v{y + 1}
                v_and_b32 v{y + 1}, 0xffff0000, v{y}
                v_lshlrev_b32 v{y}, 16, v{y}
                """)

    a(f"""
    L_k3_basis:
    s_mov_b64 exec, -1
    s_waitcnt vmcnt({D})
    """)
    stamp(a, 5)
    global_max(a, vS, sUNIT)
    a(f"""
    v_mov_b32 v{vT + 9}, s{sUNIT}
    v_mul_f32 v{vT + 9}, 0x39808081, v{vT + 9}
    """)
    basis([0, 1])
    a(f"""
    s_cmp_eq_u32 s{sWAVE}, 0
    s_cbranch_scc1 L_k3_basis23
    """)
    basis([2])
    stamp(a, 6)
    a("""
    s_branch L_k3_basisback
    L_k3_basis23:
    """)
    basis([2, 3])
    stamp(a, 6)
    a("""
    s_branch L_k3_basisback
    L_k3_end:
    s_endpgm
    """)
    a.flush_tail()
    a("L_text_end:")
    return name, nv, 96, LDS


HEADER = """; Three launches: partition by idx_in, gather + partition by idx_out, accumulate + epilogue.
"""


def build():
    a = Asm()
    ks = [k1(a), k2(a), k3(a)]
    out = HEADER
    for name, nv, ns, lds in ks:
        out += f"; @launch kernel={name} grid=({NB},1,1) block=(1024,1,1) lds={lds}\n"
    out += '.amdgcn_target "amdgcn-amd-amdhsa--gfx950"\n.text\n'
    out += a.text()
    out += '.section .rodata,"a"\n'
    for name, nv, ns, lds in ks:
        assert nv <= (127 if OPT["prof"] else 128), (name, nv)
        out += kernel_desc(name, 128 if OPT["prof"] else nv, 102 if OPT["prof"] else ns)
    return out


if __name__ == "__main__":
    path = sys.argv[1]
    for kv in sys.argv[2:]:
        k, v = kv.split("=")
        OPT[k] = v.replace("+", " ")
    open(path, "w").write(build())
```

```python
import sys
from asmlib import Asm, vr, sr, srd, wave_scan, kernel_header, kernel_desc, code_prefetch

E = 800000
T = 12800000
NB = 256
SPAN = 3125
CB4 = 4 * 1374390
N1 = 12800
NT1 = T // N1

R1A = 0
R1B = 51200000
ROW1 = 4096 + 128
OFF1 = 76800000
CNT = 77900032
MAXS = CNT + 1024
DIR2 = MAXS + 1024
ROW2 = 65536 + 128
OFF2 = DIR2 + 65536
R2 = 94781440
WS_BYTES = 268435456
assert OFF1 + NB * ROW1 <= CNT and OFF2 + NB * ROW2 <= R2 and R2 % 128 == 0 and OFF2 % 128 == 0
assert R2 + (1 << 27) <= 240000000
PAD2 = 14336
FIX = 5
NS = 15
SEG = 63
MAGIC = 0x4C001000
TOPK = 0x13
QMAX = 4080
MAXFLOOR = 0x0880

OPT = dict(ld_in="nt", st1="sc0 sc1", ld1="", st2="sc0 sc1", ld2="", ld_m="", st_out="", prof="", d3="5", k1early="0",
           k2early="1", greedy="0", prio3="1", late3="1", pf1="1", pf2="0", pf3="0", tlb="0", k1thr="", prio2="1", prio1="0")
PROF = 240000000
VPROF = 127


def stamp(a, i, dyn=None):
    if not OPT["prof"]:
        return
    a("""
    s_memrealtime s[98:99]
    s_waitcnt lgkmcnt(0)
    """)
    if dyn is None:
        a(f"v_writelane_b32 v{VPROF}, s98, {i}")
    else:
        a(f"""
        s_lshl_b32 s99, s{dyn}, 2
        s_add_u32 m0, s99, {i}
        s_nop 0
        v_writelane_b32 v{VPROF}, s98, m0
        """)


def stamp_flush(a, kidx, sWS, sWAVE):
    if not OPT["prof"]:
        return
    stamp(a, 2)
    a("s_waitcnt vmcnt(0)")
    stamp(a, 3)
    lab = a.uid("pf")
    a(f"""
    s_mov_b64 exec, -1
    s_and_b32 s98, s{sWAVE}, 7
    s_cmp_lg_u32 s98, 0
    s_cbranch_scc1 {lab}
    s_lshr_b32 s98, s{sWAVE}, 3
    s_lshl_b32 s99, s2, 1
    s_add_u32 s98, s98, s99
    s_lshl_b32 s98, s98, 8
    s_add_u32 s98, s98, {PROF + kidx * 512 * 256}
    v_and_b32 v0, 63, v0
    v_lshlrev_b32 v0, 2, v0
    buffer_store_dword v{VPROF}, v0, s[{sWS}:{sWS + 3}], s98 offen
    {lab}:
    """)


def slice_loads(a, sM, sROW, sT, vX4, vTMP, dst):
    a(f"""
    s_and_b32 s{sT}, s{sROW}, -2
    s_lshl_b32 s{sT}, s{sT}, 3
    v_mov_b32 v{vTMP}, 0x40000000
    v_cmp_gt_u32 vcc, {(SPAN + 1) // 2 - 1024}, v0
    buffer_load_dwordx4 {vr(dst, 4)}, v{vX4}, {sr(sM, 4)}, s{sT} offen {OPT['ld_m']}
    s_add_u32 s{sT}, s{sT}, 16384
    v_cndmask_b32 v{vTMP}, v{vTMP}, v{vX4}, vcc
    buffer_load_dwordx4 {vr(dst + 4, 4)}, v{vTMP}, {sr(sM, 4)}, s{sT} offen {OPT['ld_m']}
    """)


def prefix_core(a, c, z, b, x, vX4, HOFF, POFF):
    a(f"""
    ds_write_b128 v{vX4}, {vr(z, 4)} offset:{HOFF}
    v_add_u32 v{b + 2}, v{c}, v{c + 1}
    v_add_u32 v{b + 3}, v{b + 2}, v{c + 2}
    v_add_u32 v{x + 1}, v{b + 3}, v{c + 3}
    v_mov_b32 v{x}, v{x + 1}
    """)
    wave_scan(a, "v_add_u32", x)
    a(f"""
    v_sub_u32 v{b}, v{x}, v{x + 1}
    v_add_u32 v{b + 1}, v{b}, v{c}
    v_add_u32 v{b + 2}, v{b}, v{b + 2}
    v_add_u32 v{b + 3}, v{b}, v{b + 3}
    ds_write_b128 v{vX4}, {vr(b, 4)} offset:{POFF}
    """)


def global_max(a, v4, sDST):
    a(f"""
    v_max3_u32 v{v4}, v{v4}, v{v4 + 1}, v{v4 + 2}
    v_max_u32 v{v4}, v{v4}, v{v4 + 3}
    """)
    wave_scan(a, "v_max_u32", v4)
    a(f"""
    s_nop 0
    v_readlane_b32 s{sDST}, v{v4}, 63
    s_nop 3
    s_max_u32 s{sDST}, s{sDST}, {MAXFLOOR}
    s_lshl_b32 s{sDST}, s{sDST}, 16
    """)


def k1(a):
    name = "part_in_kernel"
    kernel_header(a, name)
    HOFF, POFF, MISC, BUF = 0, 1024, 2048, 2176
    BUFB = BUF + N1 * 4
    sIN, sOUT, sANG, sWS, sM = 12, 16, 20, 24, 40
    sWAVE, sCB, sT, sA, sB, sU, sPOS = 3, 28, 29, 30, 31, 36, 37
    sTI = [32, 33, 34, 35]
    vX4, vX4b, vX2, vTI, vTA, vFOUR, vF = 1, 2, 3, 4, 5, 6, 7
    sets = []
    base = 8
    for s in range(2):
        sets.append(dict(i=base, o=base + 14, g=base + 28))
        base += 36
    vRANK = base
    vROW = vRANK + 13
    vSTG = vRANK + 14
    vC = vSTG + 20
    nv = vC + 4
    ld = OPT["ld_in"]
    a(f"""
    s_cmp_ge_u32 s2, {NB}
    s_cbranch_scc1 L_k1_end
    """)
    if OPT["pf1"] == "1":
        code_prefetch(a, "part_in_kernel", "L_text_end", 49152, nv, 40)
        nv += 1
    a(f"""
    s_load_dwordx4 s[4:7], s[0:1], 8
    s_load_dwordx2 s[8:9], s[0:1], 32
    s_load_dwordx2 s[10:11], s[0:1], 104
    s_load_dwordx2 s[38:39], s[0:1], 0
    s_load_dwordx2 s[44:45], s[0:1], 48
    v_lshrrev_b32 v{vFOUR}, 6, v0
    v_lshlrev_b32 v{vX4}, 4, v0
    v_readfirstlane_b32 s{sWAVE}, v{vFOUR}
    v_add_u32 v{vX4b}, 0x10000, v{vX4}
    v_lshlrev_b32 v{vX2}, 3, v0
    v_lshlrev_b32 v{vTI}, 2, v0
    v_lshlrev_b32 v{vTA}, 1, v0
    v_mov_b32 v{vFOUR}, 0x40000000
    v_cmp_gt_u32 vcc, 0x200, v0
    v_mov_b32 v{vSTG}, 0
    s_mov_b32 s{sCB}, {CB4}
    v_cndmask_b32 v{vTI}, v{vFOUR}, v{vTI}, vcc
    v_cndmask_b32 v{vTA}, v{vFOUR}, v{vTA}, vcc
    v_mov_b32 v{vFOUR}, 4
    v_mul_u32_u24 v{vROW}, {4 * ROW1}, v0
    s_mov_b32 s{sTI[0]}, s2
    s_add_u32 s{sTI[1]}, s2, 256
    s_add_u32 s{sTI[2]}, s2, 512
    s_add_u32 s{sTI[3]}, s2, 768
    s_and_b32 s{sPOS}, s2, 7
    s_lshl_b32 s{sPOS}, s{sPOS}, 7
    s_lshr_b32 s{sT}, s2, 3
    s_add_u32 s{sPOS}, s{sPOS}, s{sT}
    s_cmp_eq_u32 s{sT}, 31
    s_cselect_b32 s{sT}, 32, 0
    s_add_u32 s{sPOS}, s{sPOS}, s{sT}
    s_lshl_b32 s{sPOS}, s{sPOS}, 2
    s_add_u32 s{sPOS}, s{sPOS}, {OFF1}
    s_waitcnt lgkmcnt(0)
    s_load_dword s46, s[44:45], 0
    """)
    stamp(a, 0)
    srd(a, sIN, 4, T * 4)
    srd(a, sOUT, 6, T * 4)
    srd(a, sANG, 8, T * 2)
    srd(a, sWS, 10, WS_BYTES)
    srd(a, sM, 38, E * 8)

    if OPT["tlb"] != "0":
        sh = int(OPT["tlb"])
        a(f"""
        s_cmp_lg_u32 s{sWAVE}, 14
        s_cbranch_scc1 L_k1_notlb
        s_lshr_b32 s{sT}, s2, 3
        v_and_b32 v{vC}, 63, v0
        v_lshl_add_u32 v{vC}, s{sT}, 6, v{vC}
        v_lshlrev_b32 v{vC}, {sh}, v{vC}
        s_cmp_ge_u32 s{sT}, {(230000000 >> sh) // 64 + 1}
        s_cbranch_scc1 L_k1_notlb
        buffer_load_dword v{vC + 1}, v{vC}, {sr(sWS, 4)}, 0 offen nt
        buffer_load_dword v{vC + 1}, v{vC}, {sr(sIN, 4)}, 0 offen nt
        buffer_load_dword v{vC + 1}, v{vC}, {sr(sOUT, 4)}, 0 offen nt
        buffer_load_dword v{vC + 1}, v{vC}, {sr(sANG, 4)}, 0 offen nt
        buffer_load_dword v{vC + 1}, v{vC}, {sr(sM, 4)}, 0 offen nt
        L_k1_notlb:
        """)

    def load_group(k, g):
        st = sets[k % 2]
        if OPT["k1thr"] and (k, g) != (0, 0):
            a(f"s_waitcnt vmcnt({OPT['k1thr']})")
        if g == 0:
            a(f"""
            s_mul_i32 s{sA}, s{sTI[k]}, {N1 * 4}
            s_mul_i32 s{sB}, s{sTI[k]}, {N1 * 2}
            """)
        if g < 3:
            a(f"""
            buffer_load_dwordx4 {vr(st['i'] + 4 * g, 4)}, v{vX4}, {sr(sIN, 4)}, s{sA} offen {ld}
            buffer_load_dwordx4 {vr(st['o'] + 4 * g, 4)}, v{vX4}, {sr(sOUT, 4)}, s{sA} offen {ld}
            buffer_load_dwordx2 {vr(st['g'] + 2 * g, 2)}, v{vX2}, {sr(sANG, 4)}, s{sB} offen {ld}
            s_add_u32 s{sA}, s{sA}, 16384
            s_add_u32 s{sB}, s{sB}, 8192
            """)
        else:
            a(f"""
            buffer_load_dword v{st['i'] + 12}, v{vTI}, {sr(sIN, 4)}, s{sA} offen {ld}
            buffer_load_dword v{st['o'] + 12}, v{vTI}, {sr(sOUT, 4)}, s{sA} offen {ld}
            buffer_load_ushort v{st['g'] + 6}, v{vTA}, {sr(sANG, 4)}, s{sB} offen {ld}
            """)

    for g in range(4):
        load_group(0, g)
    a(f"""
    s_cmp_lg_u32 s{sWAVE}, 0
    s_cbranch_scc1 L_k1_noinit
    v_mov_b32 v{vSTG + 1}, 0
    v_mov_b32 v{vSTG + 2}, 0
    v_mov_b32 v{vSTG + 3}, 0
    ds_write_b128 v{vX4}, {vr(vSTG, 4)} offset:{HOFF}
    ds_write_b32 v{vSTG}, v{vSTG} offset:{MISC}
    s_cmp_lg_u32 s2, 0
    s_cbranch_scc1 L_k1_noinit
    s_mov_b32 s{sT}, {CNT}
    buffer_store_dword v{vSTG}, v{vTI}, {sr(sWS, 4)}, s{sT} offen
    L_k1_noinit:
    s_waitcnt lgkmcnt(0)
    s_lshl_b32 s46, s46, 16
    v_mov_b32 v{vF}, s46
    s_barrier
    """)
    early = OPT["k1early"] == "1"
    if not early:
        for g in range(4):
            load_group(1, g)

    def copy_reads():
        lab = a.uid("cr")
        for i in range(4):
            a(f"ds_read_b128 {vr(vSTG + 4 * i, 4)}, v{vX4} offset:{BUF + i * 16384}")
        a(f"""
        s_cmp_ge_u32 s{sWAVE}, 11
        s_cbranch_scc1 {lab}
        ds_read_b128 {vr(vSTG + 16, 4)}, v{vX4b} offset:{BUF}
        {lab}:
        """)

    def copy_store(i, sTile):
        st = OPT["st1"]
        if i < 3:
            a(f"""
            s_mul_i32 s{sT}, s{sTile}, {N1 * 4}
            s_add_u32 s{sT}, s{sT}, {R1A + i * 16384}
            buffer_store_dwordx4 {vr(vSTG + 4 * i, 4)}, v{vX4}, {sr(sWS, 4)}, s{sT} offen {st}
            """)
        elif i == 3:
            a(f"""
            s_mul_i32 s{sT}, s{sTile}, {N1 * 4}
            s_add_u32 s{sT}, s{sT}, {R1A + 49152}
            s_mul_i32 s{sU}, s{sTile}, {N1 * 2}
            s_add_u32 s{sU}, s{sU}, {R1B - 2048}
            s_cmp_lt_u32 s{sWAVE}, 2
            s_cselect_b32 s{sT}, s{sT}, s{sU}
            buffer_store_dwordx4 {vr(vSTG + 12, 4)}, v{vX4}, {sr(sWS, 4)}, s{sT} offen {st}
            """)
        else:
            lab = a.uid("cs")
            a(f"""
            s_cmp_ge_u32 s{sWAVE}, 11
            s_cbranch_scc1 {lab}
            s_mul_i32 s{sT}, s{sTile}, {N1 * 2}
            s_add_u32 s{sT}, s{sT}, {R1B + 14336}
            buffer_store_dwordx4 {vr(vSTG + 16, 4)}, v{vX4}, {sr(sWS, 4)}, s{sT} offen {st}
            {lab}:
            """)

    def hist(st, js):
        for j in js:
            a(f"v_mul_hi_u32_u24 v{vRANK + j}, s{sCB}, v{st['i'] + j}")
        for j in js:
            a(f"v_lshl_or_b32 v{st['o'] + j}, v{st['i'] + j}, 20, v{st['o'] + j}")
        for j in js:
            a(f"v_and_b32 v{st['i'] + j}, 0x3fc, v{vRANK + j}")
        for j in js:
            a(f"ds_add_rtn_u32 v{vRANK + j}, v{st['i'] + j}, v{vFOUR} offset:{HOFF}")

    def cosines(regs):
        ops = ["v_lshlrev_b32 {x}, 16, {g}", "v_and_b32 {y}, 0xffff0000, {g}",
               f"v_mul_f32 {{x}}, v{vF}, {{x}}", f"v_mul_f32 {{y}}, v{vF}, {{y}}",
               "v_cvt_pk_bf16_f32 {g}, {x}, {y}",
               "v_lshlrev_b32 {x}, 16, {g}", "v_and_b32 {y}, 0xffff0000, {g}",
               "v_mul_f32 {x}, 0.15915494, {x}", "v_mul_f32 {y}, 0.15915494, {y}",
               "v_fract_f32 {x}, {x}", "v_fract_f32 {y}, {y}",
               "v_cos_f32 {x}, {x}", "v_cos_f32 {y}, {y}"]
        for op in ops:
            for n, g in enumerate(regs):
                a(op.format(g=f"v{g}", x=f"v{vC + 2 * n}", y=f"v{vC + 2 * n + 1}"))
        a("s_nop 0")
        for n, g in enumerate(regs):
            a(f"v_cvt_pk_f16_f32 v{g}, v{vC + 2 * n}, v{vC + 2 * n + 1}")

    def phase_h(k):
        st = sets[k % 2]
        if k > 0:
            copy_reads()
            a(f"s_waitcnt vmcnt({[0, 12, 12, 2][k]})")
        for g in range(3):
            if k == 0:
                a(f"s_waitcnt vmcnt({10 if early else 24 - 3 * g - 2})")
            hist(st, range(4 * g, 4 * g + 4))
            if k == 0 and early:
                load_group(1, g)
            if k > 0:
                if g == 0:
                    a("s_waitcnt lgkmcnt(4)")
                    copy_store(0, sTI[k - 1])
                    copy_store(1, sTI[k - 1])
                elif g == 1:
                    copy_store(2, sTI[k - 1])
                    copy_store(3, sTI[k - 1])
                else:
                    copy_store(4, sTI[k - 1])
            if k == 0:
                a(f"s_waitcnt vmcnt({12 if early else 24 - 3 * g - 3})")
            cosines([st['g'] + 2 * g, st['g'] + 2 * g + 1])
        lab = a.uid("ht")
        if k == 0:
            if early:
                load_group(1, 3)
            a("s_waitcnt vmcnt(12)")
        a(f"""
        s_cmp_ge_u32 s{sWAVE}, 8
        s_cbranch_scc1 {lab}
        """)
        hist(st, [12])
        cosines([st['g'] + 6])
        a(f"""
        {lab}:
        s_waitcnt lgkmcnt(0)
        s_barrier
        """)

    def phase_p(k):
        lab = a.uid("p")
        c, z, b, x = vSTG, vSTG + 4, vSTG + 8, vSTG + 12
        a(f"""
        s_cmp_lg_u32 s{sWAVE}, 0
        s_cbranch_scc1 {lab}
        ds_read_b128 {vr(c, 4)}, v{vX4} offset:{HOFF}
        v_mov_b32 v{z}, 0
        v_mov_b32 v{z + 1}, 0
        v_mov_b32 v{z + 2}, 0
        v_mov_b32 v{z + 3}, 0
        s_waitcnt lgkmcnt(0)
        """)
        prefix_core(a, c, z, b, x, vX4, HOFF, POFF)
        a(f"""
        s_waitcnt lgkmcnt(0)
        {lab}:
        s_barrier
        """)

    def offsets_store(k):
        lab = a.uid("os")
        c, b = vSTG, vSTG + 8
        a(f"""
        s_cmp_lg_u32 s{sWAVE}, 0
        s_cbranch_scc1 {lab}
        s_add_u32 s{sT}, s{sPOS}, {k * 128}
        """)
        for j in range(4):
            a(f"v_lshl_or_b32 v{c + j}, v{c + j}, 16, v{b + j}")
        for j in range(4):
            a(f"buffer_store_dword v{c + j}, v{vROW}, {sr(sWS, 4)}, s{sT} offen")
            if j < 3:
                a(f"s_add_u32 s{sT}, s{sT}, {ROW1}")
        a(f"{lab}:")

    def scatter(st, js):
        for j in js:
            a(f"v_add_u32 v{vRANK + j}, v{st['i'] + j}, v{vRANK + j}")
        for j in js:
            a(f"ds_write_b32 v{vRANK + j}, v{st['o'] + j} offset:{BUF}")
        for j in js:
            a(f"v_lshrrev_b32 v{st['i'] + j}, 1, v{vRANK + j}")
        for j in js:
            op = "ds_write_b16" if j % 2 == 0 else "ds_write_b16_d16_hi"
            a(f"{op} v{st['i'] + j}, v{st['g'] + j // 2} offset:{BUFB}")

    vM8 = sets[0]['i']

    def phase_s(k):
        st = sets[k % 2]
        for j in range(13):
            a(f"ds_read_b32 v{st['i'] + j}, v{st['i'] + j} offset:{POFF}")
        offsets_store(k)
        a("s_waitcnt lgkmcnt(0)")
        for g in range(3):
            scatter(st, range(4 * g, 4 * g + 4))
            if k + 2 < 4:
                load_group(k + 2, g)
        lab = a.uid("st")
        a(f"""
        s_cmp_ge_u32 s{sWAVE}, 8
        s_cbranch_scc1 {lab}
        """)
        scatter(st, [12])
        a(f"{lab}:")
        if k + 2 < 4:
            load_group(k + 2, 3)
        if k == 2:
            a(f"s_mul_i32 s{sU}, s2, {SPAN}")
            slice_loads(a, sM, sU, sT, vX4, vC, vM8)
        a("""
        s_waitcnt lgkmcnt(0)
        s_barrier
        """)

    for k in range(4):
        if k == 3:
            a(f"""
            s_cmp_lt_u32 s{sTI[3]}, {NT1}
            s_cbranch_scc1 L_k1_t3
            s_mov_b32 s{sTI[3]}, s{sTI[2]}
            s_branch L_k1_final
            L_k1_t3:
            """)
        stamp(a, 4 + 4 * k)
        phase_h(k)
        stamp(a, 5 + 4 * k)
        phase_p(k)
        stamp(a, 6 + 4 * k)
        phase_s(k)
    a("L_k1_final:")
    stamp(a, 1)
    copy_reads()
    a("s_waitcnt lgkmcnt(0)")
    for i in range(5):
        copy_store(i, sTI[3])
    a("s_waitcnt vmcnt(4)")
    for i in range(8):
        a(f"v_and_b32 v{vM8 + i}, 0x7fff7fff, v{vM8 + i}")
    for d, x, y in ((0, 0, 1), (2, 2, 3), (4, 4, 5), (6, 6, 7), (0, 0, 2), (4, 4, 6), (0, 0, 4)):
        a(f"v_pk_max_u16 v{vM8 + d}, v{vM8 + x}, v{vM8 + y}")
    a(f"""
    v_lshrrev_b32 v{vC}, 16, v{vM8}
    v_and_b32 v{vM8}, 0xffff, v{vM8}
    v_max_u32 v{vC}, v{vC}, v{vM8}
    v_mov_b32 v{vC + 1}, 0
    """)
    wave_scan(a, "v_max_u32", vC)
    a(f"""
    s_lshl_b64 exec, 1, 63
    ds_max_u32 v{vC + 1}, v{vC} offset:{MISC}
    s_waitcnt lgkmcnt(0)
    s_barrier
    s_cmp_lg_u32 s{sWAVE}, 0
    s_cbranch_scc1 L_k1_nomax
    ds_read_b32 v{vC}, v{vC + 1} offset:{MISC}
    s_lshl_b32 s{sT}, s2, 2
    s_add_u32 s{sT}, s{sT}, {MAXS}
    s_waitcnt lgkmcnt(0)
    buffer_store_dword v{vC}, v{vC + 1}, {sr(sWS, 4)}, s{sT} offen
    L_k1_nomax:
    """)
    stamp_flush(a, 0, sWS, sWAVE)
    a("""
    L_k1_end:
    s_endpgm
    """)
    return name, nv, 48, BUFB + N1 * 2


def refill_code(a, vIDX, vLEN, vW, vT, sMASK, pend=None):
    a(f"""
    s_mov_b64 exec, -1
    v_add_u32 v{vIDX}, {SEG}, v{vIDX}
    v_subrev_u32 v{vLEN}, {SEG}, v{vLEN}
    v_max_i32 v{vLEN}, 0, v{vLEN}
    """)
    if pend is not None:
        cur, pen = pend
        a(f"""
        v_cmp_eq_u32 vcc, 0, v{vLEN}
        s_nop 1
        """)
        for c, p in zip(cur, pen):
            a(f"v_cndmask_b32 v{c}, v{c}, v{p}, vcc")
        a(f"v_cndmask_b32 v{pen[1]}, v{pen[1]}, 0, vcc")
    a(f"""
    v_min_u32 v{vT}, {SEG}, v{vLEN}
    v_cmp_lt_u32 {sr(sMASK, 2)}, 0, v{vLEN}
    v_lshl_or_b32 v{vW}, v{vIDX}, 6, v{vT}
    s_nop 3
    """)


def k2(a):
    name = "gather_part_kernel"
    kernel_header(a, name)
    HOFF, POFF, MISC, SLICE, SORT = 0, 1024, 2048, 4096, 36864
    LDS = SORT + NS * 1024 * 8
    sWAVE, sB = 3, 4
    sWS, sM = 8, 12
    sK, sCB, sDONE, sNOLD = 16, 17, 18, 19
    sMASK, sQUOTA, sNT, sKT, sT, sU, sL = 20, 22, 23, 24, 25, 26, 27
    sBASE, sNPREV, sR1B, sBPREV, sQ = 28, 29, 31, 64, 65
    sW = [32, 48]
    sCM = [66, 68, 70]
    vLANE, vX4, vXA, vXB, vT2, vEIGHT, vIDX, vLEN, vW, vZERO, vROW = 1, 2, 3, 4, 5, 6, 7, 8, 9, 10, 11
    vT = 12
    vSTG = 16
    vR = [28, 28 + 2 * NS]
    vZ = 28 + 4 * NS
    nv = vZ + 2 * NS
    A = lambda st, s: vR[st] + 2 * s
    G = lambda st, s: vR[st] + 2 * s + 1
    Z = lambda s: vZ + 2 * s
    ld1 = OPT["ld1"]

    a(f"""
    s_cmp_ge_u32 s2, {NB}
    s_cbranch_scc1 L_k2_end
    """)
    if OPT["pf2"] == "1":
        code_prefetch(a, "gather_part_kernel", "L_k2_last", 24576, nv, 72)
        nv += 1
    a(f"""
    s_load_dwordx2 s[6:7], s[0:1], 104
    s_load_dwordx2 s[32:33], s[0:1], 0
    v_lshrrev_b32 v{vEIGHT}, 6, v0
    v_and_b32 v{vLANE}, 63, v0
    v_readfirstlane_b32 s{sWAVE}, v{vEIGHT}
    s_and_b32 s{sB}, s2, 7
    s_lshl_b32 s{sB}, s{sB}, 5
    s_lshr_b32 s{sT}, s2, 3
    s_add_u32 s{sB}, s{sB}, s{sT}
    v_lshlrev_b32 v{vX4}, 4, v0
    v_lshlrev_b32 v{vT2}, 1, v0
    v_lshlrev_b32 v{vT + 2}, 2, v0
    v_lshlrev_b32 v{vT + 3}, 4, v{vLANE}
    v_mov_b32 v{vZERO}, 0
    v_mov_b32 v{vEIGHT}, 8
    s_mul_i32 s{sT}, s{sB}, {ROW1}
    s_add_u32 s{sT}, s{sT}, {OFF1}
    s_mov_b32 s{sU}, {MAXS}
    s_waitcnt lgkmcnt(0)
    """)
    stamp(a, 0)
    srd(a, sWS, 6, WS_BYTES)
    a(f"""
    buffer_load_dword v{vLEN}, v{vT + 2}, {sr(sWS, 4)}, s{sT} offen
    buffer_load_dwordx4 {vr(vZ, 4)}, v{vT + 3}, {sr(sWS, 4)}, s{sU} offen
    """)
    srd(a, sM, 32, E * 8)
    a(f"s_mul_i32 s{sU}, s{sB}, {SPAN}")
    slice_loads(a, sM, sU, sT, vX4, vT + 1, vSTG)
    a(f"""
    ds_write_b32 v{vT + 2}, v{vZERO}
    s_and_b32 s{sU}, s{sU}, -2
    v_add_u32 v{vXA}, {SORT}, v{vX4}
    v_add_u32 v{vXB}, {SORT + 65536}, v{vX4}
    v_mul_u32_u24 v{vROW}, {4 * ROW2}, v{vLANE}
    s_mov_b32 s{sK}, {MAGIC}
    s_mov_b32 s{sCB}, {CB4}
    s_mov_b32 s{sR1B}, {R1B}
    s_mov_b32 s{sDONE}, 0
    s_mov_b32 s{sNOLD}, 0
    v_add_u32 v{vSTG + 8}, s{sU}, v{vT2}
    v_and_b32 v{vSTG + 8}, 0xfff, v{vSTG + 8}
    v_lshlrev_b32 v{vSTG + 8}, 3, v{vSTG + 8}
    v_xor_b32 v{vSTG + 9}, 0x4000, v{vSTG + 8}
    v_and_b32 v{vT}, 31, v0
    v_bfe_u32 v{vT + 1}, v0, 5, 2
    v_cmp_eq_u32 vcc, 31, v{vT}
    v_lshrrev_b32 v{vT + 2}, 7, v0
    v_lshl_add_u32 v{vT}, v{vT}, 3, v{vT + 2}
    v_subb_co_u32 v{vT + 1}, vcc, v{vT + 1}, 0, vcc
    v_lshl_add_u32 v{vIDX}, v{vT + 1}, 8, v{vT}
    v_cmp_gt_u32 vcc, {NT1}, v{vIDX}
    v_mul_u32_u24 v{vIDX}, {N1}, v{vIDX}
    """)
    for st in range(2):
        for s in range(NS):
            a(f"v_mov_b32 v{A(st, s)}, 0")
            a(f"v_mov_b32 v{G(st, s)}, 0")
    a(f"""
    s_waitcnt vmcnt(3)
    v_cndmask_b32 v{vLEN}, 0, v{vLEN}, vcc
    v_bfe_u32 v{vT}, v{vLEN}, 2, 14
    v_lshrrev_b32 v{vLEN}, 18, v{vLEN}
    v_add_u32 v{vIDX}, v{vIDX}, v{vT}
    v_add_u32 v{vT + 1}, {SEG - 1}, v{vLEN}
    v_mul_u32_u24 v{vT + 1}, 16645, v{vT + 1}
    v_lshrrev_b32 v{vT + 1}, 20, v{vT + 1}
    v_min_u32 v{vT + 2}, {SEG}, v{vLEN}
    v_cmp_lt_u32 {sr(sMASK, 2)}, 0, v{vLEN}
    v_lshl_or_b32 v{vW}, v{vIDX}, 6, v{vT + 2}
    """)
    wave_scan(a, "v_add_u32", vT + 1)
    a(f"""
    s_nop 0
    v_readlane_b32 s{sT}, v{vT + 1}, 63
    s_nop 3
    s_add_u32 s{sQUOTA}, s{sT}, {FIX - 1}
    s_mul_i32 s{sQUOTA}, s{sQUOTA}, 52429
    s_lshr_b32 s{sQUOTA}, s{sQUOTA}, 18
    s_add_u32 s{sNT}, s{sT}, {NS - 1}
    s_mul_i32 s{sNT}, s{sNT}, 34953
    s_lshr_b32 s{sNT}, s{sNT}, 19
    """)

    def pop(st, s):
        back, stub, empty, issue = a.uid("pb"), a.uid("pr"), a.uid("pe"), a.uid("pi")
        w = sW[st] + s
        if s >= 12 and OPT["greedy"] != "1":
            a(f"""
            s_cmp_le_u32 s{sQUOTA}, {s}
            s_cbranch_scc1 {empty}
            """)
        a(f"""
        s_cmp_eq_u64 {sr(sMASK, 2)}, 0
        s_cbranch_scc1 {stub}
        {back}:
        s_ff1_i32_b64 s{sL}, {sr(sMASK, 2)}
        s_bitset0_b64 {sr(sMASK, 2)}, s{sL}
        v_readlane_b32 s{w}, v{vW}, s{sL}
        s_lshr_b32 s{sT}, s{w}, 6
        s_bfm_b64 exec, s{w}, 0
        v_add_lshl_u32 v{A(st, s)}, s{sT}, v{vLANE}, 2
        v_lshrrev_b32 v{G(st, s)}, 1, v{A(st, s)}
        {issue}:
        buffer_load_dword v{A(st, s)}, v{A(st, s)}, {sr(sWS, 4)}, 0 offen {ld1}
        buffer_load_ushort v{G(st, s)}, v{G(st, s)}, {sr(sWS, 4)}, s{sR1B} offen {ld1}
        """)
        a.begin_tail()
        a(f"""
        {stub}:
        s_cmp_lg_u32 s{sDONE}, 0
        s_cbranch_scc1 {empty}
        """)
        refill_code(a, vIDX, vLEN, vW, vT + 3, sMASK)
        a(f"""
        s_cmp_eq_u64 {sr(sMASK, 2)}, 0
        s_cbranch_scc0 {back}
        s_mov_b32 s{sDONE}, 1
        {empty}:
        s_mov_b32 s{w}, 0
        s_mov_b64 exec, 0
        s_branch {issue}
        """)
        a.end_tail()

    stamp(a, 60)
    for s in range(NS):
        pop(0, s)
    a("s_mov_b64 exec, -1")
    wave_scan(a, "v_add_u32", vT)
    a(f"""
    v_mov_b32 v{vT + 1}, s{sNT}
    s_waitcnt lgkmcnt(0)
    s_barrier
    s_lshl_b64 exec, 1, 63
    ds_max_u32 v{vZERO}, v{vT + 1} offset:{MISC}
    ds_add_u32 v{vZERO}, v{vT} offset:{MISC + 4}
    """)
    early2 = OPT["k2early"] == "1"
    if not early2:
        for s in range(NS):
            pop(1, s)
    a(f"""
    s_mov_b64 exec, -1
    s_waitcnt vmcnt({(2 if early2 else 4) * NS})
    """)
    stamp(a, 61)
    global_max(a, vZ, sT)
    a(f"""
    v_rcp_f32 v{vT}, s{sT}
    s_nop 0
    v_mul_f32 v{vT}, {float(QMAX * 4)}, v{vT}
    """.replace(str(float(QMAX * 4)), "0x467f0000"))
    for i in range(8):
        a(f"""
        v_lshlrev_b32 v{vT + 2}, 16, v{vSTG + i}
        v_and_b32 v{vT + 3}, 0xffff0000, v{vSTG + i}
        v_mul_f32 v{vT + 2}, v{vT}, v{vT + 2}
        v_mul_f32 v{vT + 3}, v{vT}, v{vT + 3}
        v_cvt_pk_f16_f32 v{vSTG + i}, v{vT + 2}, v{vT + 3}
        """)
    a(f"""
    ds_write_b128 v{vSTG + 8}, {vr(vSTG, 4)} offset:{SLICE}
    ds_write_b128 v{vSTG + 9}, {vr(vSTG + 4, 4)} offset:{SLICE}
    s_waitcnt lgkmcnt(0)
    s_barrier
    ds_read_b64 {vr(vT, 2)}, v{vZERO} offset:{MISC}
    s_waitcnt lgkmcnt(0)
    v_readfirstlane_b32 s{sNT}, v{vT}
    v_readfirstlane_b32 s{sBASE}, v{vT + 1}
    s_nop 3
    s_max_u32 s{sNT}, s{sNT}, {FIX}
    s_mul_i32 s{sT}, s{sB}, {PAD2}
    s_add_u32 s{sBASE}, s{sBASE}, s{sT}
    s_add_u32 s{sBASE}, s{sBASE}, 15
    s_and_b32 s{sBASE}, s{sBASE}, -16
    s_mov_b32 s{sKT}, 0
    s_mov_b32 s{sNPREV}, 0
    s_mov_b32 s{sBPREV}, {R2}
    """)

    def copy_reads(chunks, regs, masks):
        a("s_mov_b64 exec, -1")
        for i, m in zip(chunks, masks):
            a(f"""
            s_sub_i32 s{sT}, s{sNPREV}, {i * 2048}
            v_cmp_gt_i32 {sr(m, 2)}, s{sT}, v{vT2}
            """)
        for i, r, m in zip(chunks, regs, masks):
            addr = vXA if i < 4 else vXB
            a(f"""
            s_mov_b64 exec, {sr(m, 2)}
            ds_read_b128 {vr(r, 4)}, v{addr} offset:{(i % 4) * 16384}
            """)

    def copy_stores(chunks, regs, masks):
        for i, r, m in zip(chunks, regs, masks):
            lab = a.uid("cs")
            a(f"""
            s_mov_b64 exec, {sr(m, 2)}
            s_cbranch_execz {lab}
            s_add_u32 s{sT}, s{sBPREV}, {i * 16384}
            buffer_store_dwordx4 {vr(r, 4)}, v{vX4}, {sr(sWS, 4)}, s{sT} offen {OPT['st2']}
            {lab}:
            """)

    def gathers(st, bt):
        for s in bt:
            a(f"""
            s_bfm_b64 exec, s{sW[st] + s}, 0
            v_lshrrev_b32 v{Z(s)}, 17, v{A(st, s)}
            v_and_b32 v{Z(s)}, 0x7ff8, v{Z(s)}
            ds_read_b64 {vr(Z(s), 2)}, v{Z(s)} offset:{SLICE}
            """)

    def encode(st, bt):
        for s in bt:
            z, aa, g = Z(s), A(st, s), G(st, s)
            a(f"""
            s_bfm_b64 exec, s{sW[st] + s}, 0
            v_fma_mix_f32 v{vT}, v{z}, v{g}, s{sK} op_sel_hi:[1,1,0]
            v_fma_mix_f32 v{vT + 1}, v{z}, v{g}, s{sK} op_sel:[1,0,0] op_sel_hi:[1,1,0]
            v_fma_mix_f32 v{vT + 2}, v{z + 1}, v{g}, s{sK} op_sel_hi:[1,1,0]
            v_fma_mix_f32 v{vT + 3}, v{z + 1}, v{g}, s{sK} op_sel:[1,0,0] op_sel_hi:[1,1,0]
            v_and_b32 v{g}, 0xfffff, v{aa}
            v_lshl_add_u32 v{z}, v{vT + 1}, 13, v{vT}
            v_mul_hi_u32_u24 v{g}, s{sCB}, v{g}
            v_lshl_add_u32 v{z + 1}, v{vT + 3}, 13, v{vT + 2}
            v_lshrrev_b32 v{vT}, 6, v{aa}
            v_lshl_add_u32 v{z}, v{aa}, 26, v{z}
            v_and_b32 v{aa}, 0x3fc, v{g}
            v_lshl_add_u32 v{z + 1}, v{vT}, 26, v{z + 1}
            ds_add_rtn_u32 v{g}, v{aa}, v{vEIGHT} offset:{HOFF}
            """)

    def phase_h(st):
        greedy = OPT["greedy"] == "1"
        if greedy:
            b0, b1, b2, b3 = range(0, 5), range(5, 10), range(10, 15), None
        else:
            b0, b1, b2, b3 = range(0, 5), range(5, 9), range(9, 13), range(13, 15)
        regs = [vSTG, vSTG + 4, vSTG + 8]
        lab, w0, w1, short = a.uid("h3"), a.uid("hw0"), a.uid("hw1"), a.uid("hs")
        p2 = OPT["prio2"] == "1"
        if p2:
            a("s_setprio 3")
        copy_reads([0, 1, 2], regs, sCM)
        a(f"""
        s_cmp_lg_u32 s{sNOLD}, 0
        s_cbranch_scc1 {w0}
        s_waitcnt vmcnt({2 * NS})
        {w1}:
        """)
        a.begin_tail()
        a(f"""
        {w0}:
        s_waitcnt vmcnt(0)
        s_branch {w1}
        """)
        a.end_tail()
        gathers(st, b0)
        a(f"""
        s_cmp_eq_u32 s{sW[st] + 5}, 0
        s_cbranch_scc1 {short}
        """)
        gathers(st, b1)
        a(f"s_waitcnt lgkmcnt({len(b1)})")
        copy_stores([0, 1, 2], regs, sCM)
        copy_reads([3, 4, 5], regs, sCM)
        encode(st, b0)
        if p2:
            a("s_setprio 2")
        gathers(st, b2)
        a(f"s_waitcnt lgkmcnt({len(b0) + len(b2)})")
        copy_stores([3, 4, 5], regs, sCM)
        copy_reads([6, 7], regs, sCM)
        encode(st, b1)
        if p2:
            a("s_setprio 1")
        a(f"s_waitcnt lgkmcnt({len(b1)})")
        copy_stores([6, 7], regs, sCM)
        encode(st, b2)
        if b3:
            a(f"""
            s_cmp_eq_u32 s{sW[st] + 13}, 0
            s_cbranch_scc1 {lab}
            """)
            gathers(st, b3)
            a("s_waitcnt lgkmcnt(0)")
            encode(st, b3)
        a(f"""
        {lab}:
        s_mov_b64 exec, -1
        s_waitcnt lgkmcnt(0)
        s_barrier
        """)
        a.begin_tail()
        a(f"""
        {short}:
        s_waitcnt lgkmcnt(0)
        """)
        copy_stores([0, 1, 2], regs, sCM)
        copy_reads([3, 4, 5], regs, sCM)
        a("s_waitcnt lgkmcnt(0)")
        copy_stores([3, 4, 5], regs, sCM)
        copy_reads([6, 7], regs, sCM)
        encode(st, b0)
        a(f"s_waitcnt lgkmcnt({len(b0)})")
        copy_stores([6, 7], regs, sCM)
        a(f"s_branch {lab}")
        a.end_tail()

    def phase_h_first():
        bs = [range(0, 5), range(5, 10), range(10, 15)]
        for n, bt in enumerate(bs):
            a(f"s_waitcnt vmcnt({2 * NS - 10})")
            gathers(0, bt)
            for s in bt:
                pop(1, s)
            if n:
                a("s_waitcnt lgkmcnt(5)")
                encode(0, bs[n - 1])
        a("s_waitcnt lgkmcnt(5)")
        encode(0, bs[2])
        a("""
        s_mov_b64 exec, -1
        s_waitcnt lgkmcnt(0)
        s_barrier
        s_branch L_k2_afterh
        """)

    c, z4, b4, x = vSTG, vSTG + 4, vSTG + 8, vT

    def phase_p():
        lab = a.uid("p")
        a(f"""
        s_cmp_lg_u32 s{sWAVE}, 0
        s_cbranch_scc1 {lab}
        ds_read_b128 {vr(c, 4)}, v{vX4} offset:{HOFF}
        v_mov_b32 v{z4}, 0
        v_mov_b32 v{z4 + 1}, 0
        v_mov_b32 v{z4 + 2}, 0
        v_mov_b32 v{z4 + 3}, 0
        s_waitcnt lgkmcnt(0)
        """)
        prefix_core(a, c, z4, b4, x, vX4, HOFF, POFF)
        a(f"""
        s_lshl_b64 exec, 1, 63
        ds_write_b32 v{vZERO}, v{x} offset:{MISC + 16}
        s_mov_b64 exec, -1
        s_waitcnt lgkmcnt(0)
        {lab}:
        s_barrier
        """)

    def offsets_store():
        lab, ovf, back = a.uid("os"), a.uid("ovf"), a.uid("ovfback")
        a(f"""
        s_cmp_lg_u32 s{sWAVE}, 0
        s_cbranch_scc1 {lab}
        s_mov_b64 exec, -1
        s_lshl_b32 s{sQ}, s{sKT}, 8
        s_add_u32 s{sQ}, s{sQ}, s{sB}
        s_cmp_ge_u32 s{sKT}, {FIX}
        s_cbranch_scc1 {ovf}
        {back}:
        s_lshl_b32 s{sQ}, s{sQ}, 2
        s_add_u32 s{sT}, s{sQ}, {OFF2}
        """)
        for j in range(4):
            a(f"v_lshrrev_b32 v{b4 + j}, 3, v{b4 + j}")
        for j in range(4):
            a(f"v_lshl_or_b32 v{c + j}, v{c + j}, 13, v{b4 + j}")
        for j in range(4):
            a(f"buffer_store_dword v{c + j}, v{vROW}, {sr(sWS, 4)}, s{sT} offen")
            if j < 3:
                a(f"s_add_u32 s{sT}, s{sT}, {ROW2}")
        a(f"""
        v_mov_b32 v{z4}, s{sBASE}
        s_add_u32 s{sT}, s{sQ}, {DIR2}
        s_mov_b64 exec, 1
        buffer_store_dword v{z4}, v{vZERO}, {sr(sWS, 4)}, s{sT} offen
        {lab}:
        """)
        a.begin_tail()
        a(f"""
        {ovf}:
        s_mov_b64 exec, 1
        v_mov_b32 v{z4}, 1
        s_mov_b32 s{sT}, {CNT}
        buffer_atomic_add v{z4}, v{vZERO}, {sr(sWS, 4)}, s{sT} offen sc0
        s_waitcnt vmcnt(0)
        v_readfirstlane_b32 s{sQ}, v{z4}
        s_mov_b64 exec, -1
        s_nop 3
        s_add_u32 s{sQ}, s{sQ}, {FIX * NB}
        s_branch {back}
        """)
        a.end_tail()

    def phase_s(st):
        l1, nop, fin = a.uid("sa"), a.uid("sn"), a.uid("sf")
        a(f"ds_read_b32 v{vT}, v{vZERO} offset:{MISC + 16}")
        for s in range(NS):
            if s in (5, 13):
                a(f"""
                s_cmp_eq_u32 s{sW[st] + s}, 0
                s_cbranch_scc1 {l1}
                """)
            a(f"""
            s_bfm_b64 exec, s{sW[st] + s}, 0
            ds_read_b32 v{A(st, s)}, v{A(st, s)} offset:{POFF}
            """)
        a(f"{l1}:")
        offsets_store()
        a(f"""
        s_mov_b64 exec, -1
        s_mov_b32 s{sNOLD}, s{sDONE}
        s_lshl_b32 s{sBPREV}, s{sBASE}, 3
        s_add_u32 s{sBPREV}, s{sBPREV}, {R2}
        s_cmp_lg_u32 s{sDONE}, 0
        s_waitcnt lgkmcnt(0)
        v_readfirstlane_b32 s{sNPREV}, v{vT}
        s_cbranch_scc1 {nop}
        """)

        def put(s):
            a(f"""
            s_bfm_b64 exec, s{sW[st] + s}, 0
            v_add_u32 v{A(st, s)}, v{A(st, s)}, v{G(st, s)}
            ds_write_b64 v{A(st, s)}, {vr(Z(s), 2)} offset:{SORT}
            """)
        for s in range(NS):
            if OPT["prio2"] == "1" and s in (0, 4, 8, 11):
                a(f"s_setprio {3 - (0, 4, 8, 11).index(s)}")
            put(s)
            pop(st, s)
        a(f"""
        {fin}:
        s_lshr_b32 s{sNPREV}, s{sNPREV}, 3
        s_add_u32 s{sNPREV}, s{sNPREV}, 15
        s_and_b32 s{sNPREV}, s{sNPREV}, -16
        s_add_u32 s{sBASE}, s{sBASE}, s{sNPREV}
        s_waitcnt lgkmcnt(0)
        s_barrier
        """)
        a.begin_tail()
        a(f"{nop}:")
        for s in range(NS):
            if s in (5, 10):
                a(f"""
                s_cmp_eq_u32 s{sW[st] + s}, 0
                s_cbranch_scc1 {fin}
                """)
            put(s)
            a(f"s_mov_b32 s{sW[st] + s}, 0")
        a(f"s_branch {fin}")
        a.end_tail()

    if early2:
        stamp(a, 4, sKT)
        phase_h_first()
    a("L_k2_loop:")
    for st in range(2):
        stamp(a, 4, sKT)
        phase_h(st)
        if st == 0:
            a("L_k2_afterh:")
        stamp(a, 5, sKT)
        phase_p()
        stamp(a, 6, sKT)
        phase_s(st)
        a(f"""
        s_add_u32 s{sKT}, s{sKT}, 1
        s_cmp_ge_u32 s{sKT}, s{sNT}
        """)
        a("s_cbranch_scc1 L_k2_final" if st == 0 else "s_cbranch_scc0 L_k2_loop")
    a("L_k2_final:")
    stamp(a, 1)
    regs = [vSTG, vSTG + 4, vSTG + 8] + [vZ + 4 * i for i in range(5)]
    masks = [32 + 2 * i for i in range(8)]
    copy_reads(list(range(8)), regs, masks)
    a("s_waitcnt lgkmcnt(0)")
    copy_stores(list(range(8)), regs, masks)
    stamp_flush(a, 1, sWS, sWAVE)
    a("""
    L_k2_end:
    s_endpgm
    """)
    a.flush_tail()
    a("L_k2_last:")
    return name, nv, 80, LDS


def k3(a):
    name = "accum_out_kernel"
    kernel_header(a, name)
    D = int(OPT["d3"])
    ACC, MISC = 0, 1024
    LDS = 131072
    sWAVE, sB = 3, 4
    sWS, sM, sDI, sOUT = 8, 12, 16, 20
    sMASK, sT, sU, sL, sLIVE, sR2 = 24, 26, 27, 28, 29, 30
    sNE, sQB, sPASS, sBAS, sUNIT, sDONE = 31, 32, 33, 34, 35, 5
    sC, sP, sSEL = 36, 38, 6
    sW = 40
    sWD, sWU, sC8, sWX = 56, 64, 72, 76
    vLANE, vZERO, vIDX, vLEN, vIDX2, vLEN2, vW, vQ2 = 1, 2, 3, 4, 5, 6, 7, 8
    vT = 10
    vZ = 20
    vM = vZ + 2 * D
    vS = vM + 8
    vRR = vS + 16
    vFA = vRR + 16
    vDI = vFA + 16
    vE8 = vDI + 4
    vRB = vE8 + 4
    nrb = 2
    nv = vRB + 8 * nrb
    Z = lambda i: vZ + 2 * i
    EPOCH = 512 // D

    a(f"""
    s_cmp_ge_u32 s2, {NB}
    s_cbranch_scc1 L_k3_end
    """)
    if OPT["pf3"] == "1":
        code_prefetch(a, "accum_out_kernel", "L_text_end", 16384, nv, 76)
        nv += 1
    a(f"""
    s_load_dwordx2 s[6:7], s[0:1], 104
    s_load_dwordx2 s[36:37], s[0:1], 0
    s_load_dwordx2 s[38:39], s[0:1], 24
    s_load_dwordx2 s[40:41], s[0:1], 88
    s_load_dwordx2 s[42:43], s[0:1], 40
    s_load_dwordx8 s[44:51], s[0:1], 56
    v_lshrrev_b32 v{vT}, 6, v0
    v_and_b32 v{vLANE}, 63, v0
    v_readfirstlane_b32 s{sWAVE}, v{vT}
    s_and_b32 s{sB}, s2, 7
    s_lshl_b32 s{sB}, s{sB}, 5
    s_lshr_b32 s{sT}, s2, 3
    s_add_u32 s{sB}, s{sB}, s{sT}
    v_mov_b32 v{vZERO}, 0
    v_and_b32 v{vQ2}, 15, v0
    v_lshl_add_u32 v{vQ2}, v{vT}, 4, v{vQ2}
    v_bfe_u32 v{vT + 1}, v0, 4, 2
    v_lshl_add_u32 v{vQ2}, v{vT + 1}, 8, v{vQ2}
    v_add_u32 v{vQ2}, 0x400, v{vQ2}
    s_mov_b32 s{sR2}, {R2}
    s_mov_b32 s{sQB}, 0
    s_waitcnt lgkmcnt(0)
    """)
    stamp(a, 0)
    srd(a, sWS, 6, WS_BYTES)

    def desc_loads():
        a(f"""
        v_add_lshl_u32 v{vT}, s{sQB}, v0, 2
        v_add_lshl_u32 v{vT + 1}, s{sQB}, v{vQ2}, 2
        s_mul_i32 s{sT}, s{sB}, {ROW2}
        s_add_u32 s{sT}, s{sT}, {OFF2}
        s_mov_b32 s{sU}, {DIR2}
        buffer_load_dword v{vLEN}, v{vT}, {sr(sWS, 4)}, s{sT} offen
        buffer_load_dword v{vIDX}, v{vT}, {sr(sWS, 4)}, s{sU} offen
        buffer_load_dword v{vLEN2}, v{vT + 1}, {sr(sWS, 4)}, s{sT} offen
        buffer_load_dword v{vIDX2}, v{vT + 1}, {sr(sWS, 4)}, s{sU} offen
        """)

    def desc_build():
        a(f"""
        v_add_u32 v{vT}, s{sQB}, v0
        v_add_u32 v{vT + 1}, s{sQB}, v{vQ2}
        v_cmp_gt_u32 vcc, s{sNE}, v{vT}
        v_cmp_gt_u32 {sr(sMASK, 2)}, s{sNE}, v{vT + 1}
        s_mov_b32 s{sDONE}, 0
        s_nop 0
        v_cndmask_b32 v{vLEN}, 0, v{vLEN}, vcc
        v_cndmask_b32 v{vLEN2}, 0, v{vLEN2}, {sr(sMASK, 2)}
        v_and_b32 v{vT}, 0xffff, v{vLEN}
        v_and_b32 v{vT + 1}, 0xffff, v{vLEN2}
        v_lshrrev_b32 v{vLEN}, 16, v{vLEN}
        v_lshrrev_b32 v{vLEN2}, 16, v{vLEN2}
        v_add_u32 v{vIDX}, v{vIDX}, v{vT}
        v_add_u32 v{vIDX2}, v{vIDX2}, v{vT + 1}
        v_min_u32 v{vT}, {SEG}, v{vLEN}
        v_cmp_lt_u32 {sr(sMASK, 2)}, 0, v{vLEN}
        v_lshl_or_b32 v{vW}, v{vIDX}, 6, v{vT}
        s_nop 3
        """)

    def pop(i):
        back, stub, empty, issue = a.uid("pb"), a.uid("pr"), a.uid("pe"), a.uid("pi")
        a(f"""
        s_cmp_eq_u64 {sr(sMASK, 2)}, 0
        s_cbranch_scc1 {stub}
        {back}:
        s_ff1_i32_b64 s{sL}, {sr(sMASK, 2)}
        s_bitset0_b64 {sr(sMASK, 2)}, s{sL}
        v_readlane_b32 s{sW + i}, v{vW}, s{sL}
        s_lshr_b32 s{sT}, s{sW + i}, 6
        s_bfm_b64 exec, s{sW + i}, 0
        v_add_lshl_u32 v{Z(i)}, s{sT}, v{vLANE}, 3
        {issue}:
        buffer_load_dwordx2 {vr(Z(i), 2)}, v{Z(i)}, {sr(sWS, 4)}, s{sR2} offen {OPT['ld2']}
        """)
        a.begin_tail()
        a(f"""
        {stub}:
        s_cmp_lg_u32 s{sDONE}, 0
        s_cbranch_scc1 {empty}
        """)
        refill_code(a, vIDX, vLEN, vW, vT + 8, sMASK, pend=((vIDX, vLEN), (vIDX2, vLEN2)))
        a(f"""
        s_cmp_eq_u64 {sr(sMASK, 2)}, 0
        s_cbranch_scc0 {back}
        s_mov_b32 s{sDONE}, 1
        {empty}:
        s_mov_b32 s{sW + i}, 0
        s_mov_b64 exec, 0
        s_branch {issue}
        """)
        a.end_tail()

    def process(i):
        z, t = Z(i), vT
        a(f"""
        s_bfm_b64 exec, s{sW + i}, 0
        v_perm_b32 v{t + 4}, v{z + 1}, v{z}, s{sSEL}
        v_and_b32 v{t}, 0x1fff, v{z}
        v_bfe_u32 v{t + 1}, v{z}, 13, 13
        v_and_b32 v{t + 4}, 0xfcfc, v{t + 4}
        v_and_b32 v{t + 2}, 0x1fff, v{z + 1}
        v_bfe_u32 v{t + 3}, v{z + 1}, 13, 13
        v_add_u32 v{t + 4}, v{t + 4}, v{t + 4}
        v_lshl_add_u64 {vr(t, 2)}, {vr(t, 2)}, 0, {sr(sC, 2)}
        v_lshl_add_u64 {vr(t + 2, 2)}, {vr(t + 2, 2)}, 0, {sr(sC, 2)}
        ds_add_u64 v{t + 4}, {vr(t, 2)} offset:{ACC}
        ds_add_u64 v{t + 4}, {vr(t + 2, 2)} offset:{ACC + 512}
        """)

    def zero_acc():
        a(f"""
        v_mov_b32 v{vT}, 0
        v_mov_b32 v{vT + 1}, 0
        v_mov_b32 v{vT + 2}, 0
        v_mov_b32 v{vT + 3}, 0
        v_lshlrev_b32 v{vT + 4}, 4, v{vLANE}
        s_lshl_b32 s{sT}, s{sWAVE}, 11
        v_add_u32 v{vT + 4}, s{sT}, v{vT + 4}
        v_add_u32 v{vT + 5}, 0x10000, v{vT + 4}
        ds_write_b128 v{vT + 4}, {vr(vT, 4)} offset:{ACC}
        ds_write_b128 v{vT + 4}, {vr(vT, 4)} offset:{ACC + 32768}
        ds_write_b128 v{vT + 5}, {vr(vT, 4)} offset:{ACC}
        ds_write_b128 v{vT + 5}, {vr(vT, 4)} offset:{ACC + 32768}
        ds_write_b32 v{vZERO}, v{vZERO} offset:{MISC}
        """)

    desc_loads()
    srd(a, sM, 36, E * 8)
    srd(a, sDI, 38, E * 2)
    srd(a, sOUT, 40, E * 8)
    a(f"""
    s_add_u32 s6, s6, {CNT}
    s_addc_u32 s7, s7, 0
    s_load_dword s{sNE}, s[6:7], 0
    s_load_dwordx8 {sr(sWD, 8)}, s[48:49], 0
    s_load_dwordx8 {sr(sWU, 8)}, s[50:51], 0
    s_load_dwordx4 {sr(sC8, 4)}, s[42:43], 0
    s_mov_b64 s[92:93], s[44:45]
    s_mov_b64 s[94:95], s[46:47]
    """)
    for i in range(D):
        a(f"v_mov_b32 v{Z(i)}, 0")
    for i in range(16):
        a(f"v_mov_b32 v{vFA + i}, 0")
    zero_acc()
    a(f"""
    s_mul_i32 s{sT}, s{sB}, {SPAN}
    v_mov_b32 v{vT + 8}, 0x8000000
    v_add_u32 v{vE8}, s{sT}, v0
    v_add_u32 v{vE8 + 1}, 0x400, v{vE8}
    v_add_u32 v{vE8 + 2}, 0x800, v{vE8}
    v_add_u32 v{vE8 + 3}, 0xc00, v{vE8}
    v_cmp_gt_u32 vcc, {SPAN - 3072}, v0
    s_mov_b32 s{sC}, 0xfffff000
    s_mov_b32 s{sC + 1}, 0xffffefff
    v_cndmask_b32 v{vE8 + 3}, v{vT + 8}, v{vE8 + 3}, vcc
    s_lshr_b32 s{sBAS}, s{sWAVE}, 2
    s_lshl_b32 s{sBAS}, s{sBAS}, 1
    s_add_u32 s{sBAS}, s{sBAS}, 1
    s_mov_b32 s{sPASS}, 0
    s_waitcnt lgkmcnt(0)
    s_mov_b32 s{sSEL}, 0x0c0c0703
    s_add_u32 s{sNE}, s{sNE}, {FIX * NB}
    s_waitcnt vmcnt(0)
    """)
    stamp(a, 4)
    desc_build()
    for i in range(D):
        pop(i)
    def side_loads():
        a(f"""
        s_mov_b64 exec, -1
        v_lshlrev_b32 v{vT + 8}, 4, v{vLANE}
        s_mov_b32 s{sT}, {MAXS}
        buffer_load_dwordx4 {vr(vS, 4)}, v{vT + 8}, {sr(sWS, 4)}, s{sT} offen
        """)
        for r in range(4):
            a(f"v_lshlrev_b32 v{vDI + r}, 1, v{vE8 + r}")
        for r in range(4):
            a(f"buffer_load_ushort v{vDI + r}, v{vDI + r}, {sr(sDI, 4)}, 0 offen")
        for r in range(4):
            a(f"v_lshlrev_b32 v{vE8 + r}, 3, v{vE8 + r}")
        for r in range(4):
            a(f"buffer_load_dwordx2 {vr(vM + 2 * r, 2)}, v{vE8 + r}, {sr(sM, 4)}, 0 offen {OPT['ld_m']}")

    late = OPT["late3"] == "1"
    if OPT["prio3"] == "1":
        a("s_setprio 3")
    if late:
        a("s_barrier")
        side_loads()
    else:
        side_loads()
        a("s_barrier")
    stamp(a, 7)
    for i in range(D):
        a(f"s_waitcnt vmcnt({D - 1 + 9})")
        process(i)
        pop(i)
    a(f"""
    L_k3_loop:
    s_add_u32 s{sPASS}, s{sPASS}, 1
    s_cmp_eq_u32 s{sPASS}, s{sBAS}
    s_cbranch_scc1 L_k3_basis
    L_k3_basisback:
    """)
    if OPT["prio3"] == "1":
        n = 80 // D
        for p, at in ((2, n * 3 // 10), (1, n * 6 // 10), (0, n * 8 // 10)):
            lab = a.uid("prio")
            a(f"""
            s_cmp_lg_u32 s{sPASS}, {at}
            s_cbranch_scc1 {lab}
            s_setprio {p}
            {lab}:
            """)
    a(f"""
    s_cmp_eq_u32 s{sW}, 0
    s_cbranch_scc1 L_k3_drained
    s_cmp_ge_u32 s{sPASS}, {EPOCH}
    s_cbranch_scc1 L_k3_full
    L_k3_pass:
    """)
    for i in range(D):
        a(f"s_waitcnt vmcnt({D - 1})")
        process(i)
        pop(i)
    a(f"""
    s_branch L_k3_loop
    L_k3_drained:
    s_mov_b64 exec, -1
    s_add_u32 s{sQB}, s{sQB}, 2048
    s_cmp_lt_u32 s{sQB}, s{sNE}
    s_cbranch_scc1 L_k3_next
    s_sub_u32 s{sQB}, s{sQB}, 2048
    s_cmp_lt_u32 s{sPASS}, s{sBAS}
    s_cbranch_scc0 L_k3_join
    s_mov_b32 s{sBAS}, s{sPASS}
    s_branch L_k3_basis
    L_k3_join:
    """)
    stamp(a, 8)
    a(f"""
    s_waitcnt lgkmcnt(0)
    s_barrier
    """)
    stamp(a, 9)

    a.begin_tail()
    a("L_k3_next:")
    desc_loads()
    a("s_waitcnt vmcnt(0)")
    desc_build()
    a(f"""
    s_branch L_k3_prime
    L_k3_full:
    s_mov_b64 exec, -1
    v_mov_b32 v{vT}, 1
    ds_write_b32 v{vZERO}, v{vT} offset:{MISC}
    s_branch L_k3_join
    """)
    a.end_tail()

    def fold(rs):
        for r in rs:
            t = vRB + 4 * r
            a(f"""
            v_lshrrev_b32 v{vT}, 3, v{vE8 + r}
            v_add_u32 v{vT + 1}, {TOPK}, v{vT}
            v_add_u32 v{vT}, {TOPK << 6}, v{vT}
            v_and_b32 v{vT + 1}, 63, v{vT + 1}
            v_and_b32 v{vT}, 0xfc0, v{vT}
            v_lshl_or_b32 v{vT}, v{vT}, 2, v{vT + 1}
            v_lshlrev_b32 v{vT}, 3, v{vT}
            ds_read_b64 {vr(t, 2)}, v{vT} offset:{ACC}
            ds_read_b64 {vr(t + 2, 2)}, v{vT} offset:{ACC + 512}
            """)
        a(f"""
        ds_read_b32 v{vT + 4}, v{vZERO} offset:{MISC}
        s_waitcnt lgkmcnt(0)
        v_readfirstlane_b32 s{sLIVE}, v{vT + 4}
        """)
        for r in rs:
            t = vRB + 4 * r
            a(f"""
            v_lshrrev_b32 v{vT}, 31, v{t}
            v_lshrrev_b32 v{vT + 1}, 31, v{t + 2}
            v_add_u32 v{t + 1}, v{t + 1}, v{vT}
            v_add_u32 v{t + 3}, v{t + 3}, v{vT + 1}
            """)
            for j in range(4):
                a(f"v_cvt_f32_i32 v{t + j}, v{t + j}")
            for j in range(4):
                a(f"v_add_f32 v{vFA + 4 * r + j}, v{vFA + 4 * r + j}, v{t + j}")

    def wpair(sw):
        a(f"""
        s_lshl_b32 s{sP}, s{sw}, 16
        s_and_b32 s{sP + 1}, s{sw}, 0xffff0000
        """)

    def pkmac(first, dst, src):
        base, hi = src & ~1, src & 1
        if first:
            a(f"v_pk_mul_f32 {vr(dst, 2)}, {vr(base, 2)}, {sr(sP, 2)} op_sel:[{hi},0] op_sel_hi:[{hi},1]")
        else:
            a(f"v_pk_fma_f32 {vr(dst, 2)}, {vr(base, 2)}, {sr(sP, 2)}, {vr(dst, 2)} op_sel:[{hi},0,0] op_sel_hi:[{hi},1,1]")

    def epilogue(rs):
        for k in range(4):
            for jp in range(2):
                wpair(sWD + 2 * k + jp)
                for r in rs:
                    pkmac(k == 0, vRB + 4 * r + 2 * jp, vFA + 4 * r + k)
        for r in rs:
            for j in range(4):
                a(f"v_mul_f32 v{vRB + 4 * r + j}, v{vRB + 4 * r + j}, v{vS + 4 * r + j}")
        for k in range(4):
            for jp in range(2):
                wpair(sWU + 2 * k + jp)
                for r in rs:
                    pkmac(k == 0, vFA + 4 * r + 2 * jp, vRB + 4 * r + k)
        for r in rs:
            t, m = vRB + 4 * r, vM + 2 * r
            a(f"""
            v_lshlrev_b32 v{t}, 16, v{m}
            v_and_b32 v{t + 1}, 0xffff0000, v{m}
            v_lshlrev_b32 v{t + 2}, 16, v{m + 1}
            v_and_b32 v{t + 3}, 0xffff0000, v{m + 1}
            """)
            for j in range(4):
                a(f"v_fmac_f32 v{t + j}, v{vFA + 4 * r + j}, v{vRR + 4 * r + j}")
            a(f"""
            v_cvt_pk_bf16_f32 v{t}, v{t}, v{t + 1}
            v_cvt_pk_bf16_f32 v{t + 1}, v{t + 2}, v{t + 3}
            buffer_store_dwordx2 {vr(t, 2)}, v{vE8 + r}, {sr(sOUT, 4)}, 0 offen {OPT['st_out']}
            """)

    a(f"""
    s_cmp_eq_u32 s{sWAVE}, 0
    s_cbranch_scc1 L_k3_epi4
    """)
    for rs, pre in (([0, 1, 2], ""), ([0, 1, 2, 3], "L_k3_epi4:")):
        if pre:
            a(pre)
        fold(rs)
        a(f"""
        s_cmp_lg_u32 s{sLIVE}, 0
        s_cbranch_scc1 L_k3_again
        """)
        epilogue(rs)
        stamp_flush(a, 2, sWS, sWAVE)
        a("s_endpgm")
    a(f"""
    L_k3_again:
    s_barrier
    """)
    zero_acc()
    a(f"""
    s_mov_b32 s{sPASS}, s{sBAS}
    s_waitcnt lgkmcnt(0)
    s_barrier
    s_branch L_k3_basisback
    L_k3_prime:
    """)
    for i in range(D):
        pop(i)
    a("s_branch L_k3_basisback")

    def basis(rs):
        x = lambda n, kp: vRB + 8 * n + 2 * kp
        for n, r in enumerate(rs):
            a(f"v_lshlrev_b32 v{vDI + r}, 16, v{vDI + r}")
        for kp in range(4):
            wpair(sC8 + kp)

            def rnd():
                for n in range(len(rs)):
                    a(f"v_cvt_pk_bf16_f32 v{x(n, kp)}, v{x(n, kp)}, v{x(n, kp) + 1}")
                for n in range(len(rs)):
                    a(f"v_and_b32 v{x(n, kp) + 1}, 0xffff0000, v{x(n, kp)}")
                for n in range(len(rs)):
                    a(f"v_lshlrev_b32 v{x(n, kp)}, 16, v{x(n, kp)}")

            def each(op):
                for n in range(len(rs)):
                    for h in range(2):
                        a(op.format(v=f"v{x(n, kp) + h}"))
            for n, r in enumerate(rs):
                d = vDI + r
                hi = d & 1
                a(f"v_pk_add_f32 {vr(x(n, kp), 2)}, {vr(d & ~1, 2)}, {sr(sP, 2)} op_sel:[{hi},0] op_sel_hi:[{hi},1] neg_lo:[0,1] neg_hi:[0,1]")
            rnd()
            each("v_mul_f32 {v}, {v}, {v}")
            rnd()
            each("v_mul_f32 {v}, 0xc1200000, {v}")
            rnd()
            each("v_mul_f32 {v}, 0x3fb8aa3b, {v}")
            each("v_exp_f32 {v}, {v}")
            a("s_nop 0")
            rnd()
        for dst, ptr in ((vS, 94), (vRR, 92)):
            a(f"""
            s_load_dwordx16 {sr(sWX, 16)}, s[{ptr}:{ptr + 1}], 0
            s_waitcnt lgkmcnt(0)
            """)
            for k in range(8):
                for jp in range(2):
                    wpair(sWX + 2 * k + jp)
                    for n, r in enumerate(rs):
                        pkmac(k == 0, dst + 4 * r + 2 * jp, vRB + 8 * n + k)
        for r in rs:
            for j in range(4):
                a(f"v_mul_f32 v{vS + 4 * r + j}, v{vT + 9}, v{vS + 4 * r + j}")
            for jp in range(2):
                y = vRR + 4 * r + 2 * jp
                a(f"""
                v_cvt_pk_bf16_f32 v{y}, v{y}, v{y + 1}
                v_and_b32 v{y + 1}, 0xffff0000, v{y}
                v_lshlrev_b32 v{y}, 16, v{y}
                """)

    a(f"""
    L_k3_basis:
    s_mov_b64 exec, -1
    s_waitcnt vmcnt({D})
    """)
    stamp(a, 5)
    global_max(a, vS, sUNIT)
    a(f"""
    v_mov_b32 v{vT + 9}, s{sUNIT}
    v_mul_f32 v{vT + 9}, 0x39808081, v{vT + 9}
    """)
    basis([0, 1])
    a(f"""
    s_cmp_eq_u32 s{sWAVE}, 0
    s_cbranch_scc1 L_k3_basis23
    """)
    basis([2])
    stamp(a, 6)
    a("""
    s_branch L_k3_basisback
    L_k3_basis23:
    """)
    basis([2, 3])
    stamp(a, 6)
    a("""
    s_branch L_k3_basisback
    L_k3_end:
    s_endpgm
    """)
    a.flush_tail()
    a("L_text_end:")
    return name, nv, 96, LDS


HEADER = """; Three launches: partition by idx_in, gather + partition by idx_out, accumulate + epilogue.
"""


def build():
    a = Asm()
    ks = [k1(a), k2(a), k3(a)]
    out = HEADER
    for name, nv, ns, lds in ks:
        out += f"; @launch kernel={name} grid=({NB},1,1) block=(1024,1,1) lds={lds}\n"
    out += '.amdgcn_target "amdgcn-amd-amdhsa--gfx950"\n.text\n'
    out += a.text()
    out += '.section .rodata,"a"\n'
    for name, nv, ns, lds in ks:
        assert nv <= (127 if OPT["prof"] else 128), (name, nv)
        out += kernel_desc(name, 128 if OPT["prof"] else nv, 102 if OPT["prof"] else ns)
    return out


if __name__ == "__main__":
    path = sys.argv[1]
    for kv in sys.argv[2:]:
        k, v = kv.split("=")
        OPT[k] = v.replace("+", " ")
    open(path, "w").write(build())
```

```python
import sys
from asmlib import Asm, vr, sr, srd, wave_scan, kernel_header, kernel_desc, code_prefetch

E = 800000
T = 12800000
NB = 256
SPAN = 3125
CB4 = 4 * 1374390
N1 = 13312
DYN0 = 3 * NB * N1
NGRP = (T - DYN0) // 4096
NLAST = 3 * 4096
assert DYN0 + NGRP * 4096 == T
RT = DYN0 + NB * NLAST

R1A = 0
R1B = RT * 4
ROW1 = 4096 + 128
OFF1 = RT * 6
CNT = OFF1 + NB * ROW1
MAXS = CNT + 1024
DIR2 = MAXS + 1024
ROW2 = 65536 + 128
OFF2 = DIR2 + 65536
R2 = OFF2 + NB * ROW2
WS_BYTES = 268435456
assert OFF1 % 128 == 0 and R2 % 128 == 0 and OFF2 % 128 == 0
assert R2 + (1 << 27) <= 240000000
PAD2 = 14592
FIX = 5
NS = 15
SEG = 63
MAGIC = 0x4C001000
TOPK = 0x13
QMAX = 4080
MAXFLOOR = 0x0880

OPT = dict(ld_in="nt", st1="sc0 sc1", ld1="", st2="sc0 sc1", ld2="", ld_m="", st_out="", prof="", d3="5", k1early="0",
           k2early="1", greedy="0", prio3="1", late3="1", pf1="1", pf2="0", pf3="0", tlb="0", k1thr="", prio2="1", prio1="0", clpos="1", r3="128", hlag="0")
PROF = 240000000
VPROF = 127


def stamp(a, i, dyn=None):
    if not OPT["prof"]:
        return
    a("""
    s_memrealtime s[98:99]
    s_waitcnt lgkmcnt(0)
    """)
    if dyn is None:
        a(f"v_writelane_b32 v{VPROF}, s98, {i}")
    else:
        a(f"""
        s_lshl_b32 s99, s{dyn}, 2
        s_add_u32 m0, s99, {i}
        s_nop 0
        v_writelane_b32 v{VPROF}, s98, m0
        """)


def stamp_flush(a, kidx, sWS, sWAVE):
    if not OPT["prof"]:
        return
    stamp(a, 2)
    a("s_waitcnt vmcnt(0)")
    stamp(a, 3)
    lab = a.uid("pf")
    a(f"""
    s_mov_b64 exec, -1
    s_and_b32 s98, s{sWAVE}, 7
    s_cmp_lg_u32 s98, 0
    s_cbranch_scc1 {lab}
    s_lshr_b32 s98, s{sWAVE}, 3
    s_lshl_b32 s99, s2, 1
    s_add_u32 s98, s98, s99
    s_lshl_b32 s98, s98, 8
    s_add_u32 s98, s98, {PROF + kidx * 512 * 256}
    v_and_b32 v0, 63, v0
    v_lshlrev_b32 v0, 2, v0
    buffer_store_dword v{VPROF}, v0, s[{sWS}:{sWS + 3}], s98 offen
    {lab}:
    """)


def slice_loads(a, sM, sROW, sT, vX4, vTMP, dst):
    a(f"""
    s_and_b32 s{sT}, s{sROW}, -2
    s_lshl_b32 s{sT}, s{sT}, 3
    v_mov_b32 v{vTMP}, 0x40000000
    v_cmp_gt_u32 vcc, {(SPAN + 1) // 2 - 1024}, v0
    buffer_load_dwordx4 {vr(dst, 4)}, v{vX4}, {sr(sM, 4)}, s{sT} offen {OPT['ld_m']}
    s_add_u32 s{sT}, s{sT}, 16384
    v_cndmask_b32 v{vTMP}, v{vTMP}, v{vX4}, vcc
    buffer_load_dwordx4 {vr(dst + 4, 4)}, v{vTMP}, {sr(sM, 4)}, s{sT} offen {OPT['ld_m']}
    """)


def prefix_core(a, c, z, b, x, vX4, HOFF, POFF):
    a(f"""
    ds_write_b128 v{vX4}, {vr(z, 4)} offset:{HOFF}
    v_add_u32 v{b + 2}, v{c}, v{c + 1}
    v_add_u32 v{b + 3}, v{b + 2}, v{c + 2}
    v_add_u32 v{x + 1}, v{b + 3}, v{c + 3}
    v_mov_b32 v{x}, v{x + 1}
    """)
    wave_scan(a, "v_add_u32", x)
    a(f"""
    v_sub_u32 v{b}, v{x}, v{x + 1}
    v_add_u32 v{b + 1}, v{b}, v{c}
    v_add_u32 v{b + 2}, v{b}, v{b + 2}
    v_add_u32 v{b + 3}, v{b}, v{b + 3}
    ds_write_b128 v{vX4}, {vr(b, 4)} offset:{POFF}
    """)


def global_max(a, v4, sDST):
    a(f"""
    v_max3_u32 v{v4}, v{v4}, v{v4 + 1}, v{v4 + 2}
    v_max_u32 v{v4}, v{v4}, v{v4 + 3}
    """)
    wave_scan(a, "v_max_u32", v4)
    a(f"""
    s_nop 0
    v_readlane_b32 s{sDST}, v{v4}, 63
    s_nop 3
    s_max_u32 s{sDST}, s{sDST}, {MAXFLOOR}
    s_lshl_b32 s{sDST}, s{sDST}, 16
    """)


def k1(a):
    name = "part_in_kernel"
    kernel_header(a, name)
    HOFF, POFF, MISC, BUF = 0, 1024, 2048, 2176
    BUFB = BUF + N1 * 4
    sIN, sOUT, sANG, sWS, sM = 12, 16, 20, 24, 40
    sWAVE, sCB, sT, sA, sB, sU, sPOS = 3, 28, 29, 30, 31, 36, 37
    sTI = [32, 33, 34]
    sCL, sN, sG, sDBG, sLB = 47, 48, 49, 50, 35
    vX4, vX4b, vX2, vTI, vTA, vFOUR, vF = 1, 2, 3, 4, 5, 6, 7
    sets = []
    base = 8
    for s in range(2):
        sets.append(dict(i=base, o=base + 14, g=base + 28))
        base += 36
    vRANK = base
    vROW = vRANK + 13
    vSTG = vRANK + 14
    vC = vSTG + 20
    vCL = sets[0]['i'] + 13
    vZERO = sets[1]['i'] + 13
    nv = vC + 4
    ld = OPT["ld_in"]
    a(f"""
    s_cmp_ge_u32 s2, {NB}
    s_cbranch_scc1 L_k1_end
    """)
    if OPT["pf1"] == "1":
        code_prefetch(a, "part_in_kernel", "L_text_end", 57344, nv, 40)
        nv += 1
    a(f"""
    s_load_dwordx4 s[4:7], s[0:1], 8
    s_load_dwordx2 s[8:9], s[0:1], 32
    s_load_dwordx2 s[10:11], s[0:1], 104
    s_load_dwordx2 s[38:39], s[0:1], 0
    s_load_dwordx2 s[44:45], s[0:1], 48
    s_load_dwordx2 {sr(sDBG, 2)}, s[0:1], 96
    v_lshrrev_b32 v{vFOUR}, 6, v0
    v_lshlrev_b32 v{vX4}, 4, v0
    v_readfirstlane_b32 s{sWAVE}, v{vFOUR}
    v_add_u32 v{vX4b}, 0x10000, v{vX4}
    v_lshlrev_b32 v{vX2}, 3, v0
    v_lshlrev_b32 v{vTI}, 2, v0
    v_lshlrev_b32 v{vTA}, 1, v0
    v_mov_b32 v{vSTG}, 0
    v_mov_b32 v{vZERO}, 0
    s_mov_b32 s{sCB}, {CB4}
    v_mov_b32 v{vFOUR}, 4
    v_mul_u32_u24 v{vROW}, {4 * ROW1}, v0
    s_mov_b32 s{sTI[0]}, s2
    s_add_u32 s{sTI[1]}, s2, 256
    s_add_u32 s{sTI[2]}, s2, 512
    s_mul_i32 s{sLB}, s2, {NLAST}
    s_add_u32 s{sLB}, s{sLB}, {DYN0}
    s_mov_b32 s{sN}, 0
    s_waitcnt lgkmcnt(0)
    s_load_dword s46, s[44:45], 0
    """)
    stamp(a, 0)
    srd(a, sIN, 4, T * 4)
    srd(a, sOUT, 6, T * 4)
    srd(a, sANG, 8, T * 2)
    srd(a, sWS, 10, WS_BYTES)
    srd(a, sM, 38, E * 8)

    def loads(st, g):
        if g < 3:
            a(f"""
            buffer_load_dwordx4 {vr(st['i'] + 4 * g, 4)}, v{vX4}, {sr(sIN, 4)}, s{sA} offen {ld}
            buffer_load_dwordx4 {vr(st['o'] + 4 * g, 4)}, v{vX4}, {sr(sOUT, 4)}, s{sA} offen {ld}
            buffer_load_dwordx2 {vr(st['g'] + 2 * g, 2)}, v{vX2}, {sr(sANG, 4)}, s{sB} offen {ld}
            """)
        else:
            a(f"""
            buffer_load_dword v{st['i'] + 12}, v{vTI}, {sr(sIN, 4)}, s{sA} offen {ld}
            buffer_load_dword v{st['o'] + 12}, v{vTI}, {sr(sOUT, 4)}, s{sA} offen {ld}
            buffer_load_ushort v{st['g'] + 6}, v{vTA}, {sr(sANG, 4)}, s{sB} offen {ld}
            """)

    def load_group(k, g):
        a(f"""
        s_mul_i32 s{sB}, s{sTI[k]}, {N1 * 2}
        s_add_u32 s{sB}, s{sB}, {g * 8192}
        s_lshl_b32 s{sA}, s{sB}, 1
        """)
        loads(sets[k % 2], g)

    def claim_issue():
        lab = a.uid("ci")
        a(f"""
        s_cmp_lg_u32 s{sWAVE}, 0
        s_cbranch_scc1 {lab}
        s_mov_b32 s{sCL}, 1
        s_atomic_add s{sCL}, {sr(sDBG, 2)}, 0 glc
        {lab}:
        """)

    def claim_publish(n):
        lab = a.uid("cp")
        a(f"""
        s_cmp_lg_u32 s{sWAVE}, 0
        s_cbranch_scc1 {lab}
        v_mov_b32 v{vCL}, s{sCL}
        ds_write_b32 v{vZERO}, v{vCL} offset:{MISC + 4 + 4 * n}
        s_waitcnt lgkmcnt(0)
        {lab}:
        """)

    def claim_read(n):
        a(f"ds_read_b32 v{vCL}, v{vZERO} offset:{MISC + 4 + 4 * n}")

    def claimed_loads(g):
        r3 = int(OPT["r3"])
        r2 = NGRP - NB - r3
        assert r3 <= r2 <= NB
        if g == 0:
            a(f"""
            v_readfirstlane_b32 s{sG}, v{vCL}
            s_mov_b32 s{sN}, 1
            s_cmp_lt_u32 s{sG}, {r3}
            s_addc_u32 s{sN}, s{sN}, 0
            s_cmp_lt_u32 s{sG}, {r2}
            s_addc_u32 s{sN}, s{sN}, 0
            s_min_u32 s{sT}, s{sG}, {r3}
            s_min_u32 s{sU}, s{sG}, {r2}
            s_add_u32 s{sG}, s{sG}, s{sT}
            s_add_u32 s{sG}, s{sG}, s{sU}
            """)
        a(f"""
        s_add_u32 s{sB}, s{sG}, {g}
        s_cmp_gt_u32 s{sN}, {g}
        s_cselect_b32 s{sB}, s{sB}, {NGRP}
        s_lshl_b32 s{sB}, s{sB}, 13
        s_add_u32 s{sB}, s{sB}, {DYN0 * 2}
        s_lshl_b32 s{sA}, s{sB}, 1
        """)
        loads(sets[1], g)

    for g in range(4):
        load_group(0, g)
    a(f"""
    s_cmp_lg_u32 s{sWAVE}, 0
    s_cbranch_scc1 L_k1_noinit
    v_mov_b32 v{vSTG + 1}, 0
    v_mov_b32 v{vSTG + 2}, 0
    v_mov_b32 v{vSTG + 3}, 0
    ds_write_b128 v{vX4}, {vr(vSTG, 4)} offset:{HOFF}
    ds_write_b32 v{vSTG}, v{vSTG} offset:{MISC}
    s_cmp_lg_u32 s2, 0
    s_cbranch_scc1 L_k1_noinit
    s_mov_b32 s{sT}, {CNT}
    buffer_store_dword v{vSTG}, v{vTI}, {sr(sWS, 4)}, s{sT} offen
    L_k1_noinit:
    s_waitcnt lgkmcnt(0)
    s_lshl_b32 s46, s46, 16
    v_mov_b32 v{vF}, s46
    s_barrier
    """)
    for g in range(4):
        load_group(1, g)

    def copy_reads():
        lab = a.uid("cr")
        for i in range(4):
            a(f"ds_read_b128 {vr(vSTG + 4 * i, 4)}, v{vX4} offset:{BUF + i * 16384}")
        a(f"""
        s_cmp_ge_u32 s{sWAVE}, 14
        s_cbranch_scc1 {lab}
        ds_read_b128 {vr(vSTG + 16, 4)}, v{vX4b} offset:{BUF}
        {lab}:
        """)

    def copy_store(i, sTile):
        st = OPT["st1"]
        if i < 3:
            a(f"""
            s_mul_i32 s{sT}, s{sTile}, {N1 * 4}
            s_add_u32 s{sT}, s{sT}, {R1A + i * 16384}
            buffer_store_dwordx4 {vr(vSTG + 4 * i, 4)}, v{vX4}, {sr(sWS, 4)}, s{sT} offen {st}
            """)
        elif i == 3:
            a(f"""
            s_mul_i32 s{sT}, s{sTile}, {N1 * 4}
            s_add_u32 s{sT}, s{sT}, {R1A + 49152}
            s_mul_i32 s{sU}, s{sTile}, {N1 * 2}
            s_add_u32 s{sU}, s{sU}, {R1B - 4096}
            s_cmp_lt_u32 s{sWAVE}, 4
            s_cselect_b32 s{sT}, s{sT}, s{sU}
            buffer_store_dwordx4 {vr(vSTG + 12, 4)}, v{vX4}, {sr(sWS, 4)}, s{sT} offen {st}
            """)
        else:
            lab = a.uid("cs")
            a(f"""
            s_cmp_ge_u32 s{sWAVE}, 14
            s_cbranch_scc1 {lab}
            s_mul_i32 s{sT}, s{sTile}, {N1 * 2}
            s_add_u32 s{sT}, s{sT}, {R1B + 12288}
            buffer_store_dwordx4 {vr(vSTG + 16, 4)}, v{vX4}, {sr(sWS, 4)}, s{sT} offen {st}
            {lab}:
            """)

    def hist(st, js):
        for j in js:
            a(f"v_mul_hi_u32_u24 v{vRANK + j}, s{sCB}, v{st['i'] + j}")
        for j in js:
            a(f"v_lshl_or_b32 v{st['o'] + j}, v{st['i'] + j}, 20, v{st['o'] + j}")
        for j in js:
            a(f"v_and_b32 v{st['i'] + j}, 0x3fc, v{vRANK + j}")
        for j in js:
            a(f"ds_add_rtn_u32 v{vRANK + j}, v{st['i'] + j}, v{vFOUR} offset:{HOFF}")

    def cosines(regs):
        ops = ["v_lshlrev_b32 {x}, 16, {g}", "v_and_b32 {y}, 0xffff0000, {g}",
               f"v_mul_f32 {{x}}, v{vF}, {{x}}", f"v_mul_f32 {{y}}, v{vF}, {{y}}",
               "v_cvt_pk_bf16_f32 {g}, {x}, {y}",
               "v_lshlrev_b32 {x}, 16, {g}", "v_and_b32 {y}, 0xffff0000, {g}",
               "v_mul_f32 {x}, 0.15915494, {x}", "v_mul_f32 {y}, 0.15915494, {y}",
               "v_fract_f32 {x}, {x}", "v_fract_f32 {y}, {y}",
               "v_cos_f32 {x}, {x}", "v_cos_f32 {y}, {y}"]
        for op in ops:
            for n, g in enumerate(regs):
                a(op.format(g=f"v{g}", x=f"v{vC + 2 * n}", y=f"v{vC + 2 * n + 1}"))
        a("s_nop 0")
        for n, g in enumerate(regs):
            a(f"v_cvt_pk_f16_f32 v{g}, v{vC + 2 * n}, v{vC + 2 * n + 1}")

    def skip_unless(g, lab):
        a(f"""
        s_cmp_le_u32 s{sN}, {g}
        s_cbranch_scc1 {lab}
        """)

    def phase_h(k):
        st = sets[k % 2]
        if k > 0:
            copy_reads()
        if k == 1 and OPT["clpos"] == "0":
            claim_issue()
        if k > 0:
            a(f"s_waitcnt vmcnt({[0, 12, 9, 2][k]})")
        stores = [[0, 1], [2, 3], [4]] if k < 3 else [[0, 1], [2, 3, 4], []]
        for g in range(3):
            lab = a.uid("hg")
            if k == 0:
                a(f"s_waitcnt vmcnt({24 - 3 * g - 2})")
            if k == 3:
                skip_unless(g, lab)
            hist(st, range(4 * g, 4 * g + 4))
            if k == 3:
                cosines([st['g'] + 2 * g, st['g'] + 2 * g + 1])
                a(f"{lab}:")
            if k > 0:
                if g == 0:
                    a(f"s_waitcnt lgkmcnt({4 if k < 3 else 0})")
                for i in stores[g]:
                    copy_store(i, sTI[k - 1])
            if k == 0:
                a(f"s_waitcnt vmcnt({24 - 3 * g - 3})")
            if k == 1 and g == 1 and OPT["clpos"] == "1":
                claim_issue()
            if k < 3:
                cosines([st['g'] + 2 * g, st['g'] + 2 * g + 1])
        if k == 0:
            a("s_waitcnt vmcnt(12)")
        if k < 3:
            hist(st, [12])
            cosines([st['g'] + 6])
        a("s_waitcnt lgkmcnt(0)")
        if k == 1:
            claim_publish(0)
        a("s_barrier")

    def phase_p(k):
        lab = a.uid("p")
        c, z, b, x = vSTG, vSTG + 4, vSTG + 8, vSTG + 12
        a(f"""
        s_cmp_lg_u32 s{sWAVE}, 0
        s_cbranch_scc1 {lab}
        ds_read_b128 {vr(c, 4)}, v{vX4} offset:{HOFF}
        v_mov_b32 v{z}, 0
        v_mov_b32 v{z + 1}, 0
        v_mov_b32 v{z + 2}, 0
        v_mov_b32 v{z + 3}, 0
        s_waitcnt lgkmcnt(0)
        """)
        prefix_core(a, c, z, b, x, vX4, HOFF, POFF)
        a(f"""
        s_waitcnt lgkmcnt(0)
        {lab}:
        s_barrier
        """)

    def offsets_store(k):
        lab = a.uid("os")
        c, b = vSTG, vSTG + 8
        a(f"""
        s_cmp_lg_u32 s{sWAVE}, 0
        s_cbranch_scc1 {lab}
        s_and_b32 s{sT}, s2, 7
        s_mul_i32 s{sT}, s{sT}, {96 if k < 3 else 32}
        s_lshr_b32 s{sU}, s2, 3
        s_add_u32 s{sT}, s{sT}, s{sU}
        s_lshl_b32 s{sT}, s{sT}, 2
        s_add_u32 s{sT}, s{sT}, {OFF1 + (k * 128 if k < 3 else 768 * 4)}
        """)
        for j in range(4):
            a(f"v_lshl_or_b32 v{c + j}, v{c + j}, 16, v{b + j}")
        for j in range(4):
            a(f"buffer_store_dword v{c + j}, v{vROW}, {sr(sWS, 4)}, s{sT} offen")
            if j < 3:
                a(f"s_add_u32 s{sT}, s{sT}, {ROW1}")
        a(f"{lab}:")

    def scatter(st, js):
        for j in js:
            a(f"v_add_u32 v{vRANK + j}, v{st['i'] + j}, v{vRANK + j}")
        for j in js:
            a(f"ds_write_b32 v{vRANK + j}, v{st['o'] + j} offset:{BUF}")
        for j in js:
            a(f"v_lshrrev_b32 v{st['i'] + j}, 1, v{vRANK + j}")
        for j in js:
            op = "ds_write_b16" if j % 2 == 0 else "ds_write_b16_d16_hi"
            a(f"{op} v{st['i'] + j}, v{st['g'] + j // 2} offset:{BUFB}")

    vM8 = sets[0]['i']

    def phase_s(k):
        st = sets[k % 2]
        lab = a.uid("se")
        if k == 1:
            claim_read(0)
        if k < 3:
            for j in range(13):
                a(f"ds_read_b32 v{st['i'] + j}, v{st['i'] + j} offset:{POFF}")
        else:
            l2 = a.uid("sr")
            for g in range(3):
                skip_unless(g, l2)
                for j in range(4 * g, 4 * g + 4):
                    a(f"ds_read_b32 v{st['i'] + j}, v{st['i'] + j} offset:{POFF}")
            a(f"{l2}:")
        offsets_store(k)
        a("s_waitcnt lgkmcnt(0)")
        for g in range(3):
            if k == 3:
                skip_unless(g, lab)
            scatter(st, range(4 * g, 4 * g + 4))
            if k == 0:
                load_group(2, g)
            if k == 1:
                claimed_loads(g)
        if k < 3:
            scatter(st, [12])
        if k == 0:
            load_group(2, 3)
        if k == 2:
            a(f"""
            s_mul_i32 s{sU}, s2, {SPAN}
            """)
            slice_loads(a, sM, sU, sT, vX4, vC, vM8)
        a(f"""
        {lab}:
        s_waitcnt lgkmcnt(0)
        """)
        a("s_barrier")

    for k in range(4):
        stamp(a, 4 + 4 * k)
        phase_h(k)
        stamp(a, 5 + 4 * k)
        phase_p(k)
        stamp(a, 6 + 4 * k)
        phase_s(k)
    stamp(a, 1)
    a(f"""
    s_lshl_b32 s{sA}, s{sN}, 3
    s_min_u32 s{sB}, s{sA}, 16
    s_sub_i32 s{sA}, s{sA}, 16
    """)
    parts = [(f"s_cmp_gt_u32 s{sN}, {i}", BUF + i * 16384, 2, R1A + i * 16384) for i in range(3)]
    parts += [(f"s_cmp_lt_u32 s{sWAVE}, s{sB}", BUFB, 1, R1B), (f"s_cmp_lt_i32 s{sWAVE}, s{sA}", BUFB + 16384 - 65536, 1, R1B + 16384)]
    for i, (cond, off, sh, g) in enumerate(parts):
        lab = a.uid("fr")
        a(f"""
        {cond}
        s_cbranch_scc0 {lab}
        ds_read_b128 {vr(vSTG + 4 * i, 4)}, v{vX4 if i < 4 else vX4b} offset:{off}
        {lab}:
        """)
    a("s_waitcnt vmcnt(0) lgkmcnt(0)")
    for i, (cond, off, sh, g) in enumerate(parts):
        lab = a.uid("fs")
        a(f"""
        {cond}
        s_cbranch_scc0 {lab}
        s_lshl_b32 s{sT}, s{sLB}, {sh}
        s_add_u32 s{sT}, s{sT}, {g}
        buffer_store_dwordx4 {vr(vSTG + 4 * i, 4)}, v{vX4}, {sr(sWS, 4)}, s{sT} offen {OPT['st1']}
        {lab}:
        """)
    for i in range(8):
        a(f"v_and_b32 v{vM8 + i}, 0x7fff7fff, v{vM8 + i}")
    for d, x, y in ((0, 0, 1), (2, 2, 3), (4, 4, 5), (6, 6, 7), (0, 0, 2), (4, 4, 6), (0, 0, 4)):
        a(f"v_pk_max_u16 v{vM8 + d}, v{vM8 + x}, v{vM8 + y}")
    a(f"""
    v_lshrrev_b32 v{vC}, 16, v{vM8}
    v_and_b32 v{vM8}, 0xffff, v{vM8}
    v_max_u32 v{vC}, v{vC}, v{vM8}
    v_mov_b32 v{vC + 1}, 0
    """)
    wave_scan(a, "v_max_u32", vC)
    a(f"""
    s_lshl_b64 exec, 1, 63
    ds_max_u32 v{vC + 1}, v{vC} offset:{MISC}
    s_waitcnt lgkmcnt(0)
    s_barrier
    s_cmp_lg_u32 s{sWAVE}, 0
    s_cbranch_scc1 L_k1_nomax
    ds_read_b32 v{vC}, v{vC + 1} offset:{MISC}
    s_lshl_b32 s{sT}, s2, 2
    s_add_u32 s{sT}, s{sT}, {MAXS}
    s_waitcnt lgkmcnt(0)
    buffer_store_dword v{vC}, v{vC + 1}, {sr(sWS, 4)}, s{sT} offen
    L_k1_nomax:
    """)
    stamp_flush(a, 0, sWS, sWAVE)
    a("""
    L_k1_end:
    s_endpgm
    """)
    return name, nv, 56, BUFB + N1 * 2


def refill_code(a, vIDX, vLEN, vW, vT, sMASK, pend=None):
    a(f"""
    s_mov_b64 exec, -1
    v_add_u32 v{vIDX}, {SEG}, v{vIDX}
    v_subrev_u32 v{vLEN}, {SEG}, v{vLEN}
    v_max_i32 v{vLEN}, 0, v{vLEN}
    """)
    if pend is not None:
        cur, pen = pend
        a(f"""
        v_cmp_eq_u32 vcc, 0, v{vLEN}
        s_nop 1
        """)
        for c, p in zip(cur, pen):
            a(f"v_cndmask_b32 v{c}, v{c}, v{p}, vcc")
        a(f"v_cndmask_b32 v{pen[1]}, v{pen[1]}, 0, vcc")
    a(f"""
    v_min_u32 v{vT}, {SEG}, v{vLEN}
    v_cmp_lt_u32 {sr(sMASK, 2)}, 0, v{vLEN}
    v_lshl_or_b32 v{vW}, v{vIDX}, 6, v{vT}
    s_nop 3
    """)


def k2(a):
    name = "gather_part_kernel"
    kernel_header(a, name)
    HOFF, POFF, MISC, SLICE, SORT = 0, 1024, 2048, 4096, 36864
    LDS = SORT + NS * 1024 * 8
    sWAVE, sB = 3, 4
    sWS, sM = 8, 12
    sK, sCB, sDONE, sNOLD = 16, 17, 18, 19
    sMASK, sQUOTA, sNT, sKT, sT, sU, sL = 20, 22, 23, 24, 25, 26, 27
    sBASE, sNPREV, sR1B, sBPREV, sQ = 28, 29, 31, 64, 65
    sW = [32, 48]
    sCM = [66, 68, 70]
    vLANE, vX4, vXA, vXB, vT2, vEIGHT, vIDX, vLEN, vW, vZERO, vROW = 1, 2, 3, 4, 5, 6, 7, 8, 9, 10, 11
    vT = 12
    vSTG = 16
    vR = [28, 28 + 2 * NS]
    vZ = 28 + 4 * NS
    nv = vZ + 2 * NS
    A = lambda st, s: vR[st] + 2 * s
    G = lambda st, s: vR[st] + 2 * s + 1
    Z = lambda s: vZ + 2 * s
    ld1 = OPT["ld1"]

    a(f"""
    s_cmp_ge_u32 s2, {NB}
    s_cbranch_scc1 L_k2_end
    """)
    if OPT["pf2"] == "1":
        code_prefetch(a, "gather_part_kernel", "L_k2_last", 24576, nv, 72)
        nv += 1
    a(f"""
    s_load_dwordx2 s[6:7], s[0:1], 104
    s_load_dwordx2 s[32:33], s[0:1], 0
    v_lshrrev_b32 v{vEIGHT}, 6, v0
    v_and_b32 v{vLANE}, 63, v0
    v_readfirstlane_b32 s{sWAVE}, v{vEIGHT}
    s_and_b32 s{sB}, s2, 7
    s_lshl_b32 s{sB}, s{sB}, 5
    s_lshr_b32 s{sT}, s2, 3
    s_add_u32 s{sB}, s{sB}, s{sT}
    v_lshlrev_b32 v{vX4}, 4, v0
    v_lshlrev_b32 v{vT2}, 1, v0
    s_mul_i32 s{sU}, s{sWAVE}, 48
    v_add_u32 v{vIDX}, s{sU}, v{vLANE}
    v_lshl_add_u32 v{vW}, v{vLANE}, 4, s{sWAVE}
    v_cmp_gt_u32 vcc, 48, v{vLANE}
    v_lshlrev_b32 v{vT + 3}, 4, v{vLANE}
    s_nop 0
    v_cndmask_b32 v{vIDX}, v{vW}, v{vIDX}, vcc
    v_lshlrev_b32 v{vT + 2}, 2, v{vIDX}
    v_mov_b32 v{vZERO}, 0
    v_mov_b32 v{vEIGHT}, 8
    s_mul_i32 s{sT}, s{sB}, {ROW1}
    s_add_u32 s{sT}, s{sT}, {OFF1}
    s_mov_b32 s{sU}, {MAXS}
    s_waitcnt lgkmcnt(0)
    """)
    stamp(a, 0)
    srd(a, sWS, 6, WS_BYTES)
    a(f"""
    buffer_load_dword v{vLEN}, v{vT + 2}, {sr(sWS, 4)}, s{sT} offen
    buffer_load_dwordx4 {vr(vZ, 4)}, v{vT + 3}, {sr(sWS, 4)}, s{sU} offen
    """)
    srd(a, sM, 32, E * 8)
    a(f"s_mul_i32 s{sU}, s{sB}, {SPAN}")
    slice_loads(a, sM, sU, sT, vX4, vT + 1, vSTG)
    a(f"""
    v_lshlrev_b32 v{vT + 2}, 2, v0
    ds_write_b32 v{vT + 2}, v{vZERO}
    s_and_b32 s{sU}, s{sU}, -2
    v_add_u32 v{vXA}, {SORT}, v{vX4}
    v_add_u32 v{vXB}, {SORT + 65536}, v{vX4}
    v_mul_u32_u24 v{vROW}, {4 * ROW2}, v{vLANE}
    s_mov_b32 s{sK}, {MAGIC}
    s_mov_b32 s{sCB}, {CB4}
    s_mov_b32 s{sR1B}, {R1B}
    s_mov_b32 s{sDONE}, 0
    s_mov_b32 s{sNOLD}, 0
    v_add_u32 v{vSTG + 8}, s{sU}, v{vT2}
    v_and_b32 v{vSTG + 8}, 0xfff, v{vSTG + 8}
    v_lshlrev_b32 v{vSTG + 8}, 3, v{vSTG + 8}
    v_xor_b32 v{vSTG + 9}, 0x4000, v{vSTG + 8}
    v_and_b32 v{vT}, 31, v{vIDX}
    v_lshrrev_b32 v{vT + 1}, 5, v{vIDX}
    v_mul_u32_u24 v{vT + 2}, 43, v{vT + 1}
    v_lshrrev_b32 v{vT + 2}, 7, v{vT + 2}
    v_mad_i32_i24 v{vT + 3}, v{vT + 2}, -3, v{vT + 1}
    v_lshl_add_u32 v{vT + 2}, v{vT}, 3, v{vT + 2}
    v_lshl_add_u32 v{vT + 2}, v{vT + 3}, 8, v{vT + 2}
    v_mul_u32_u24 v{vT + 2}, {N1}, v{vT + 2}
    v_subrev_u32 v{vT + 1}, 24, v{vT + 1}
    v_lshl_add_u32 v{vT}, v{vT}, 3, v{vT + 1}
    v_cmp_gt_u32 vcc, 48, v{vLANE}
    v_mul_u32_u24 v{vT}, {NLAST}, v{vT}
    v_add_u32 v{vT}, {DYN0}, v{vT}
    v_cndmask_b32 v{vIDX}, v{vT}, v{vT + 2}, vcc
    """)
    for st in range(2):
        for s in range(NS):
            a(f"v_mov_b32 v{A(st, s)}, 0")
            a(f"v_mov_b32 v{G(st, s)}, 0")
    a(f"""
    s_waitcnt vmcnt(3)
    v_bfe_u32 v{vT}, v{vLEN}, 2, 14
    v_lshrrev_b32 v{vLEN}, 18, v{vLEN}
    v_add_u32 v{vIDX}, v{vIDX}, v{vT}
    v_add_u32 v{vT + 1}, {SEG - 1}, v{vLEN}
    v_mul_u32_u24 v{vT + 1}, 16645, v{vT + 1}
    v_lshrrev_b32 v{vT + 1}, 20, v{vT + 1}
    v_min_u32 v{vT + 2}, {SEG}, v{vLEN}
    v_cmp_lt_u32 {sr(sMASK, 2)}, 0, v{vLEN}
    v_lshl_or_b32 v{vW}, v{vIDX}, 6, v{vT + 2}
    """)
    wave_scan(a, "v_add_u32", vT + 1)
    a(f"""
    s_nop 0
    v_readlane_b32 s{sT}, v{vT + 1}, 63
    s_nop 3
    s_add_u32 s{sQUOTA}, s{sT}, {FIX - 1}
    s_mul_i32 s{sQUOTA}, s{sQUOTA}, 52429
    s_lshr_b32 s{sQUOTA}, s{sQUOTA}, 18
    s_add_u32 s{sNT}, s{sT}, {NS - 1}
    s_mul_i32 s{sNT}, s{sNT}, 34953
    s_lshr_b32 s{sNT}, s{sNT}, 19
    """)

    def pop(st, s):
        back, stub, empty, issue = a.uid("pb"), a.uid("pr"), a.uid("pe"), a.uid("pi")
        w = sW[st] + s
        if s >= 12 and OPT["greedy"] != "1":
            a(f"""
            s_cmp_le_u32 s{sQUOTA}, {s}
            s_cbranch_scc1 {empty}
            """)
        a(f"""
        s_cmp_eq_u64 {sr(sMASK, 2)}, 0
        s_cbranch_scc1 {stub}
        {back}:
        s_ff1_i32_b64 s{sL}, {sr(sMASK, 2)}
        s_bitset0_b64 {sr(sMASK, 2)}, s{sL}
        v_readlane_b32 s{w}, v{vW}, s{sL}
        s_lshr_b32 s{sT}, s{w}, 6
        s_bfm_b64 exec, s{w}, 0
        v_add_lshl_u32 v{A(st, s)}, s{sT}, v{vLANE}, 2
        v_lshrrev_b32 v{G(st, s)}, 1, v{A(st, s)}
        {issue}:
        buffer_load_dword v{A(st, s)}, v{A(st, s)}, {sr(sWS, 4)}, 0 offen {ld1}
        buffer_load_ushort v{G(st, s)}, v{G(st, s)}, {sr(sWS, 4)}, s{sR1B} offen {ld1}
        """)
        a.begin_tail()
        a(f"""
        {stub}:
        s_cmp_lg_u32 s{sDONE}, 0
        s_cbranch_scc1 {empty}
        """)
        refill_code(a, vIDX, vLEN, vW, vT + 3, sMASK)
        a(f"""
        s_cmp_eq_u64 {sr(sMASK, 2)}, 0
        s_cbranch_scc0 {back}
        s_mov_b32 s{sDONE}, 1
        {empty}:
        s_mov_b32 s{w}, 0
        s_mov_b64 exec, 0
        s_branch {issue}
        """)
        a.end_tail()

    stamp(a, 60)
    for s in range(NS):
        pop(0, s)
    a("s_mov_b64 exec, -1")
    wave_scan(a, "v_add_u32", vT)
    a(f"""
    v_mov_b32 v{vT + 1}, s{sNT}
    s_waitcnt lgkmcnt(0)
    s_barrier
    s_lshl_b64 exec, 1, 63
    ds_max_u32 v{vZERO}, v{vT + 1} offset:{MISC}
    ds_add_u32 v{vZERO}, v{vT} offset:{MISC + 4}
    """)
    early2 = OPT["k2early"] == "1"
    if not early2:
        for s in range(NS):
            pop(1, s)
    a(f"""
    s_mov_b64 exec, -1
    s_waitcnt vmcnt({(2 if early2 else 4) * NS})
    """)
    stamp(a, 61)
    global_max(a, vZ, sT)
    a(f"""
    v_rcp_f32 v{vT}, s{sT}
    s_nop 0
    v_mul_f32 v{vT}, {float(QMAX * 4)}, v{vT}
    """.replace(str(float(QMAX * 4)), "0x467f0000"))
    for i in range(8):
        a(f"""
        v_lshlrev_b32 v{vT + 2}, 16, v{vSTG + i}
        v_and_b32 v{vT + 3}, 0xffff0000, v{vSTG + i}
        v_mul_f32 v{vT + 2}, v{vT}, v{vT + 2}
        v_mul_f32 v{vT + 3}, v{vT}, v{vT + 3}
        v_cvt_pk_f16_f32 v{vSTG + i}, v{vT + 2}, v{vT + 3}
        """)
    a(f"""
    ds_write_b128 v{vSTG + 8}, {vr(vSTG, 4)} offset:{SLICE}
    ds_write_b128 v{vSTG + 9}, {vr(vSTG + 4, 4)} offset:{SLICE}
    s_waitcnt lgkmcnt(0)
    s_barrier
    ds_read_b64 {vr(vT, 2)}, v{vZERO} offset:{MISC}
    s_waitcnt lgkmcnt(0)
    v_readfirstlane_b32 s{sNT}, v{vT}
    v_readfirstlane_b32 s{sBASE}, v{vT + 1}
    s_nop 3
    s_max_u32 s{sNT}, s{sNT}, {FIX}
    s_mul_i32 s{sT}, s{sB}, {PAD2}
    s_add_u32 s{sBASE}, s{sBASE}, s{sT}
    s_add_u32 s{sBASE}, s{sBASE}, 15
    s_and_b32 s{sBASE}, s{sBASE}, -16
    s_mov_b32 s{sKT}, 0
    s_mov_b32 s{sNPREV}, 0
    s_mov_b32 s{sBPREV}, {R2}
    """)

    def copy_reads(chunks, regs, masks):
        a("s_mov_b64 exec, -1")
        for i, m in zip(chunks, masks):
            a(f"""
            s_sub_i32 s{sT}, s{sNPREV}, {i * 2048}
            v_cmp_gt_i32 {sr(m, 2)}, s{sT}, v{vT2}
            """)
        for i, r, m in zip(chunks, regs, masks):
            addr = vXA if i < 4 else vXB
            a(f"""
            s_mov_b64 exec, {sr(m, 2)}
            ds_read_b128 {vr(r, 4)}, v{addr} offset:{(i % 4) * 16384}
            """)

    def copy_stores(chunks, regs, masks):
        for i, r, m in zip(chunks, regs, masks):
            lab = a.uid("cs")
            a(f"""
            s_mov_b64 exec, {sr(m, 2)}
            s_cbranch_execz {lab}
            s_add_u32 s{sT}, s{sBPREV}, {i * 16384}
            buffer_store_dwordx4 {vr(r, 4)}, v{vX4}, {sr(sWS, 4)}, s{sT} offen {OPT['st2']}
            {lab}:
            """)

    def gathers(st, bt):
        for s in bt:
            a(f"""
            s_bfm_b64 exec, s{sW[st] + s}, 0
            v_lshrrev_b32 v{Z(s)}, 17, v{A(st, s)}
            v_and_b32 v{Z(s)}, 0x7ff8, v{Z(s)}
            ds_read_b64 {vr(Z(s), 2)}, v{Z(s)} offset:{SLICE}
            """)

    def encode(st, bt):
        for s in bt:
            z, aa, g = Z(s), A(st, s), G(st, s)
            a(f"""
            s_bfm_b64 exec, s{sW[st] + s}, 0
            v_fma_mix_f32 v{vT}, v{z}, v{g}, s{sK} op_sel_hi:[1,1,0]
            v_fma_mix_f32 v{vT + 1}, v{z}, v{g}, s{sK} op_sel:[1,0,0] op_sel_hi:[1,1,0]
            v_fma_mix_f32 v{vT + 2}, v{z + 1}, v{g}, s{sK} op_sel_hi:[1,1,0]
            v_fma_mix_f32 v{vT + 3}, v{z + 1}, v{g}, s{sK} op_sel:[1,0,0] op_sel_hi:[1,1,0]
            v_and_b32 v{g}, 0xfffff, v{aa}
            v_lshl_add_u32 v{z}, v{vT + 1}, 13, v{vT}
            v_mul_hi_u32_u24 v{g}, s{sCB}, v{g}
            v_lshl_add_u32 v{z + 1}, v{vT + 3}, 13, v{vT + 2}
            v_lshrrev_b32 v{vT}, 6, v{aa}
            v_lshl_add_u32 v{z}, v{aa}, 26, v{z}
            v_and_b32 v{aa}, 0x3fc, v{g}
            v_lshl_add_u32 v{z + 1}, v{vT}, 26, v{z + 1}
            ds_add_rtn_u32 v{g}, v{aa}, v{vEIGHT} offset:{HOFF}
            """)

    def phase_h(st):
        greedy = OPT["greedy"] == "1"
        if greedy:
            b0, b1, b2, b3 = range(0, 5), range(5, 10), range(10, 15), None
        else:
            b0, b1, b2, b3 = range(0, 5), range(5, 9), range(9, 13), range(13, 15)
        regs = [vSTG, vSTG + 4, vSTG + 8]
        lab, w0, w1, short = a.uid("h3"), a.uid("hw0"), a.uid("hw1"), a.uid("hs")
        p2 = OPT["prio2"] == "1"
        if p2:
            a("s_setprio 3")
        copy_reads([0, 1, 2], regs, sCM)
        a(f"""
        s_cmp_lg_u32 s{sNOLD}, 0
        s_cbranch_scc1 {w0}
        s_waitcnt vmcnt({2 * NS})
        {w1}:
        """)
        a.begin_tail()
        a(f"""
        {w0}:
        s_waitcnt vmcnt(0)
        s_branch {w1}
        """)
        a.end_tail()
        LAG = int(OPT["hlag"])
        if LAG:
            n = 15 if greedy else 13
            ds = [("C", 0), ("C", 1), ("C", 2)]
            swaps = {1: ([0, 1, 2], [3, 4, 5]), 5: ([3, 4, 5], [6, 7]), 9: ([6, 7], [])}
            for s in range(n + LAG):
                if s < n:
                    gathers(st, [s])
                    ds.append(("G", s))
                if s == LAG - 1:
                    a(f"""
                    s_cmp_eq_u32 s{sW[st] + LAG}, 0
                    s_cbranch_scc1 {short}
                    """)
                if s >= LAG:
                    e = s - LAG
                    tags = [("G", e)] + ([("C", swaps[e][0][-1])] if e in swaps else [])
                    a(f"s_waitcnt lgkmcnt({len(ds) - 1 - max(ds.index(t) for t in tags)})")
                    if e in swaps:
                        copy_stores(swaps[e][0], regs, sCM)
                        if swaps[e][1]:
                            copy_reads(swaps[e][1], regs, sCM)
                            ds.extend(("C", i) for i in swaps[e][1])
                    encode(st, [e])
                    ds.append(("R", e))
                    if p2 and e in (3, 7, 10):
                        a(f"s_setprio {2 - (3, 7, 10).index(e)}")
            b0 = range(LAG)
        else:
            gathers(st, b0)
            a(f"""
            s_cmp_eq_u32 s{sW[st] + 5}, 0
            s_cbranch_scc1 {short}
            """)
            gathers(st, b1)
            a(f"s_waitcnt lgkmcnt({len(b1)})")
            copy_stores([0, 1, 2], regs, sCM)
            copy_reads([3, 4, 5], regs, sCM)
            encode(st, b0)
            if p2:
                a("s_setprio 2")
            gathers(st, b2)
            a(f"s_waitcnt lgkmcnt({len(b0) + len(b2)})")
            copy_stores([3, 4, 5], regs, sCM)
            copy_reads([6, 7], regs, sCM)
            encode(st, b1)
            if p2:
                a("s_setprio 1")
            a(f"s_waitcnt lgkmcnt({len(b1)})")
            copy_stores([6, 7], regs, sCM)
            encode(st, b2)
        if b3:
            a(f"""
            s_cmp_eq_u32 s{sW[st] + 13}, 0
            s_cbranch_scc1 {lab}
            """)
            gathers(st, b3)
            a("s_waitcnt lgkmcnt(0)")
            encode(st, b3)
        a(f"""
        {lab}:
        s_mov_b64 exec, -1
        s_waitcnt lgkmcnt(0)
        s_barrier
        """)
        a.begin_tail()
        a(f"""
        {short}:
        s_waitcnt lgkmcnt(0)
        """)
        copy_stores([0, 1, 2], regs, sCM)
        copy_reads([3, 4, 5], regs, sCM)
        a("s_waitcnt lgkmcnt(0)")
        copy_stores([3, 4, 5], regs, sCM)
        copy_reads([6, 7], regs, sCM)
        encode(st, b0)
        a(f"s_waitcnt lgkmcnt({len(b0)})")
        copy_stores([6, 7], regs, sCM)
        a(f"s_branch {lab}")
        a.end_tail()

    def phase_h_first():
        bs = [range(0, 5), range(5, 10), range(10, 15)]
        for n, bt in enumerate(bs):
            a(f"s_waitcnt vmcnt({2 * NS - 10})")
            gathers(0, bt)
            for s in bt:
                pop(1, s)
            if n:
                a("s_waitcnt lgkmcnt(5)")
                encode(0, bs[n - 1])
        a("s_waitcnt lgkmcnt(5)")
        encode(0, bs[2])
        a("""
        s_mov_b64 exec, -1
        s_waitcnt lgkmcnt(0)
        s_barrier
        s_branch L_k2_afterh
        """)

    c, z4, b4, x = vSTG, vSTG + 4, vSTG + 8, vT

    def phase_p():
        lab = a.uid("p")
        a(f"""
        s_cmp_lg_u32 s{sWAVE}, 0
        s_cbranch_scc1 {lab}
        ds_read_b128 {vr(c, 4)}, v{vX4} offset:{HOFF}
        v_mov_b32 v{z4}, 0
        v_mov_b32 v{z4 + 1}, 0
        v_mov_b32 v{z4 + 2}, 0
        v_mov_b32 v{z4 + 3}, 0
        s_waitcnt lgkmcnt(0)
        """)
        prefix_core(a, c, z4, b4, x, vX4, HOFF, POFF)
        a(f"""
        s_lshl_b64 exec, 1, 63
        ds_write_b32 v{vZERO}, v{x} offset:{MISC + 16}
        s_mov_b64 exec, -1
        s_waitcnt lgkmcnt(0)
        {lab}:
        s_barrier
        """)

    def offsets_store():
        lab, ovf, back = a.uid("os"), a.uid("ovf"), a.uid("ovfback")
        a(f"""
        s_cmp_lg_u32 s{sWAVE}, 0
        s_cbranch_scc1 {lab}
        s_mov_b64 exec, -1
        s_lshl_b32 s{sQ}, s{sKT}, 8
        s_add_u32 s{sQ}, s{sQ}, s{sB}
        s_cmp_ge_u32 s{sKT}, {FIX}
        s_cbranch_scc1 {ovf}
        {back}:
        s_lshl_b32 s{sQ}, s{sQ}, 2
        s_add_u32 s{sT}, s{sQ}, {OFF2}
        """)
        for j in range(4):
            a(f"v_lshrrev_b32 v{b4 + j}, 3, v{b4 + j}")
        for j in range(4):
            a(f"v_lshl_or_b32 v{c + j}, v{c + j}, 13, v{b4 + j}")
        for j in range(4):
            a(f"buffer_store_dword v{c + j}, v{vROW}, {sr(sWS, 4)}, s{sT} offen")
            if j < 3:
                a(f"s_add_u32 s{sT}, s{sT}, {ROW2}")
        a(f"""
        v_mov_b32 v{z4}, s{sBASE}
        s_add_u32 s{sT}, s{sQ}, {DIR2}
        s_mov_b64 exec, 1
        buffer_store_dword v{z4}, v{vZERO}, {sr(sWS, 4)}, s{sT} offen
        {lab}:
        """)
        a.begin_tail()
        a(f"""
        {ovf}:
        s_mov_b64 exec, 1
        v_mov_b32 v{z4}, 1
        s_mov_b32 s{sT}, {CNT}
        buffer_atomic_add v{z4}, v{vZERO}, {sr(sWS, 4)}, s{sT} offen sc0
        s_waitcnt vmcnt(0)
        v_readfirstlane_b32 s{sQ}, v{z4}
        s_mov_b64 exec, -1
        s_nop 3
        s_add_u32 s{sQ}, s{sQ}, {FIX * NB}
        s_branch {back}
        """)
        a.end_tail()

    def phase_s(st):
        l1, nop, fin = a.uid("sa"), a.uid("sn"), a.uid("sf")
        a(f"ds_read_b32 v{vT}, v{vZERO} offset:{MISC + 16}")
        for s in range(NS):
            if s in (5, 13):
                a(f"""
                s_cmp_eq_u32 s{sW[st] + s}, 0
                s_cbranch_scc1 {l1}
                """)
            a(f"""
            s_bfm_b64 exec, s{sW[st] + s}, 0
            ds_read_b32 v{A(st, s)}, v{A(st, s)} offset:{POFF}
            """)
        a(f"{l1}:")
        offsets_store()
        a(f"""
        s_mov_b64 exec, -1
        s_mov_b32 s{sNOLD}, s{sDONE}
        s_lshl_b32 s{sBPREV}, s{sBASE}, 3
        s_add_u32 s{sBPREV}, s{sBPREV}, {R2}
        s_cmp_lg_u32 s{sDONE}, 0
        s_waitcnt lgkmcnt(0)
        v_readfirstlane_b32 s{sNPREV}, v{vT}
        s_cbranch_scc1 {nop}
        """)

        def put(s):
            a(f"""
            s_bfm_b64 exec, s{sW[st] + s}, 0
            v_add_u32 v{A(st, s)}, v{A(st, s)}, v{G(st, s)}
            ds_write_b64 v{A(st, s)}, {vr(Z(s), 2)} offset:{SORT}
            """)
        for s in range(NS):
            if OPT["prio2"] == "1" and s in (0, 4, 8, 11):
                a(f"s_setprio {3 - (0, 4, 8, 11).index(s)}")
            put(s)
            pop(st, s)
        a(f"""
        {fin}:
        s_lshr_b32 s{sNPREV}, s{sNPREV}, 3
        s_add_u32 s{sNPREV}, s{sNPREV}, 15
        s_and_b32 s{sNPREV}, s{sNPREV}, -16
        s_add_u32 s{sBASE}, s{sBASE}, s{sNPREV}
        s_waitcnt lgkmcnt(0)
        s_barrier
        """)
        a.begin_tail()
        a(f"{nop}:")
        for s in range(NS):
            if s in (5, 10):
                a(f"""
                s_cmp_eq_u32 s{sW[st] + s}, 0
                s_cbranch_scc1 {fin}
                """)
            put(s)
            a(f"s_mov_b32 s{sW[st] + s}, 0")
        a(f"s_branch {fin}")
        a.end_tail()

    if early2:
        stamp(a, 4, sKT)
        phase_h_first()
    a("L_k2_loop:")
    for st in range(2):
        stamp(a, 4, sKT)
        phase_h(st)
        if st == 0:
            a("L_k2_afterh:")
        stamp(a, 5, sKT)
        phase_p()
        stamp(a, 6, sKT)
        phase_s(st)
        a(f"""
        s_add_u32 s{sKT}, s{sKT}, 1
        s_cmp_ge_u32 s{sKT}, s{sNT}
        """)
        a("s_cbranch_scc1 L_k2_final" if st == 0 else "s_cbranch_scc0 L_k2_loop")
    a("L_k2_final:")
    stamp(a, 1)
    regs = [vSTG, vSTG + 4, vSTG + 8] + [vZ + 4 * i for i in range(5)]
    masks = [32 + 2 * i for i in range(8)]
    copy_reads(list(range(8)), regs, masks)
    a("s_waitcnt lgkmcnt(0)")
    copy_stores(list(range(8)), regs, masks)
    stamp_flush(a, 1, sWS, sWAVE)
    a("""
    L_k2_end:
    s_endpgm
    """)
    a.flush_tail()
    a("L_k2_last:")
    return name, nv, 80, LDS


def k3(a):
    name = "accum_out_kernel"
    kernel_header(a, name)
    D = int(OPT["d3"])
    ACC, MISC = 0, 1024
    LDS = 131072
    sWAVE, sB = 3, 4
    sWS, sM, sDI, sOUT = 8, 12, 16, 20
    sMASK, sT, sU, sL, sLIVE, sR2 = 24, 26, 27, 28, 29, 30
    sNE, sQB, sPASS, sBAS, sUNIT, sDONE = 31, 32, 33, 34, 35, 5
    sC, sP, sSEL = 36, 38, 6
    sW = 40
    sWD, sWU, sC8, sWX = 56, 64, 72, 76
    vLANE, vZERO, vIDX, vLEN, vIDX2, vLEN2, vW, vQ2 = 1, 2, 3, 4, 5, 6, 7, 8
    vT = 10
    vZ = 20
    vM = vZ + 2 * D
    vS = vM + 8
    vRR = vS + 16
    vFA = vRR + 16
    vDI = vFA + 16
    vE8 = vDI + 4
    vRB = vE8 + 4
    nrb = 2
    nv = vRB + 8 * nrb
    Z = lambda i: vZ + 2 * i
    EPOCH = 512 // D

    a(f"""
    s_cmp_ge_u32 s2, {NB}
    s_cbranch_scc1 L_k3_end
    """)
    if OPT["pf3"] == "1":
        code_prefetch(a, "accum_out_kernel", "L_text_end", 16384, nv, 76)
        nv += 1
    a(f"""
    s_load_dwordx2 s[6:7], s[0:1], 104
    s_load_dwordx2 s[36:37], s[0:1], 0
    s_load_dwordx2 s[38:39], s[0:1], 24
    s_load_dwordx2 s[40:41], s[0:1], 88
    s_load_dwordx2 s[42:43], s[0:1], 40
    s_load_dwordx8 s[44:51], s[0:1], 56
    v_lshrrev_b32 v{vT}, 6, v0
    v_and_b32 v{vLANE}, 63, v0
    v_readfirstlane_b32 s{sWAVE}, v{vT}
    s_and_b32 s{sB}, s2, 7
    s_lshl_b32 s{sB}, s{sB}, 5
    s_lshr_b32 s{sT}, s2, 3
    s_add_u32 s{sB}, s{sB}, s{sT}
    v_mov_b32 v{vZERO}, 0
    v_and_b32 v{vQ2}, 15, v0
    v_lshl_add_u32 v{vQ2}, v{vT}, 4, v{vQ2}
    v_bfe_u32 v{vT + 1}, v0, 4, 2
    v_lshl_add_u32 v{vQ2}, v{vT + 1}, 8, v{vQ2}
    v_add_u32 v{vQ2}, 0x400, v{vQ2}
    s_mov_b32 s{sR2}, {R2}
    s_mov_b32 s{sQB}, 0
    s_waitcnt lgkmcnt(0)
    """)
    stamp(a, 0)
    srd(a, sWS, 6, WS_BYTES)

    def desc_loads():
        a(f"""
        v_add_lshl_u32 v{vT}, s{sQB}, v0, 2
        v_add_lshl_u32 v{vT + 1}, s{sQB}, v{vQ2}, 2
        s_mul_i32 s{sT}, s{sB}, {ROW2}
        s_add_u32 s{sT}, s{sT}, {OFF2}
        s_mov_b32 s{sU}, {DIR2}
        buffer_load_dword v{vLEN}, v{vT}, {sr(sWS, 4)}, s{sT} offen
        buffer_load_dword v{vIDX}, v{vT}, {sr(sWS, 4)}, s{sU} offen
        buffer_load_dword v{vLEN2}, v{vT + 1}, {sr(sWS, 4)}, s{sT} offen
        buffer_load_dword v{vIDX2}, v{vT + 1}, {sr(sWS, 4)}, s{sU} offen
        """)

    def desc_build():
        a(f"""
        v_add_u32 v{vT}, s{sQB}, v0
        v_add_u32 v{vT + 1}, s{sQB}, v{vQ2}
        v_cmp_gt_u32 vcc, s{sNE}, v{vT}
        v_cmp_gt_u32 {sr(sMASK, 2)}, s{sNE}, v{vT + 1}
        s_mov_b32 s{sDONE}, 0
        s_nop 0
        v_cndmask_b32 v{vLEN}, 0, v{vLEN}, vcc
        v_cndmask_b32 v{vLEN2}, 0, v{vLEN2}, {sr(sMASK, 2)}
        v_and_b32 v{vT}, 0xffff, v{vLEN}
        v_and_b32 v{vT + 1}, 0xffff, v{vLEN2}
        v_lshrrev_b32 v{vLEN}, 16, v{vLEN}
        v_lshrrev_b32 v{vLEN2}, 16, v{vLEN2}
        v_add_u32 v{vIDX}, v{vIDX}, v{vT}
        v_add_u32 v{vIDX2}, v{vIDX2}, v{vT + 1}
        v_min_u32 v{vT}, {SEG}, v{vLEN}
        v_cmp_lt_u32 {sr(sMASK, 2)}, 0, v{vLEN}
        v_lshl_or_b32 v{vW}, v{vIDX}, 6, v{vT}
        s_nop 3
        """)

    def pop(i):
        back, stub, empty, issue = a.uid("pb"), a.uid("pr"), a.uid("pe"), a.uid("pi")
        a(f"""
        s_cmp_eq_u64 {sr(sMASK, 2)}, 0
        s_cbranch_scc1 {stub}
        {back}:
        s_ff1_i32_b64 s{sL}, {sr(sMASK, 2)}
        s_bitset0_b64 {sr(sMASK, 2)}, s{sL}
        v_readlane_b32 s{sW + i}, v{vW}, s{sL}
        s_lshr_b32 s{sT}, s{sW + i}, 6
        s_bfm_b64 exec, s{sW + i}, 0
        v_add_lshl_u32 v{Z(i)}, s{sT}, v{vLANE}, 3
        {issue}:
        buffer_load_dwordx2 {vr(Z(i), 2)}, v{Z(i)}, {sr(sWS, 4)}, s{sR2} offen {OPT['ld2']}
        """)
        a.begin_tail()
        a(f"""
        {stub}:
        s_cmp_lg_u32 s{sDONE}, 0
        s_cbranch_scc1 {empty}
        """)
        refill_code(a, vIDX, vLEN, vW, vT + 8, sMASK, pend=((vIDX, vLEN), (vIDX2, vLEN2)))
        a(f"""
        s_cmp_eq_u64 {sr(sMASK, 2)}, 0
        s_cbranch_scc0 {back}
        s_mov_b32 s{sDONE}, 1
        {empty}:
        s_mov_b32 s{sW + i}, 0
        s_mov_b64 exec, 0
        s_branch {issue}
        """)
        a.end_tail()

    def process(i):
        z, t = Z(i), vT
        a(f"""
        s_bfm_b64 exec, s{sW + i}, 0
        v_perm_b32 v{t + 4}, v{z + 1}, v{z}, s{sSEL}
        v_and_b32 v{t}, 0x1fff, v{z}
        v_bfe_u32 v{t + 1}, v{z}, 13, 13
        v_and_b32 v{t + 4}, 0xfcfc, v{t + 4}
        v_and_b32 v{t + 2}, 0x1fff, v{z + 1}
        v_bfe_u32 v{t + 3}, v{z + 1}, 13, 13
        v_add_u32 v{t + 4}, v{t + 4}, v{t + 4}
        v_lshl_add_u64 {vr(t, 2)}, {vr(t, 2)}, 0, {sr(sC, 2)}
        v_lshl_add_u64 {vr(t + 2, 2)}, {vr(t + 2, 2)}, 0, {sr(sC, 2)}
        ds_add_u64 v{t + 4}, {vr(t, 2)} offset:{ACC}
        ds_add_u64 v{t + 4}, {vr(t + 2, 2)} offset:{ACC + 512}
        """)

    def zero_acc():
        a(f"""
        v_mov_b32 v{vT}, 0
        v_mov_b32 v{vT + 1}, 0
        v_mov_b32 v{vT + 2}, 0
        v_mov_b32 v{vT + 3}, 0
        v_lshlrev_b32 v{vT + 4}, 4, v{vLANE}
        s_lshl_b32 s{sT}, s{sWAVE}, 11
        v_add_u32 v{vT + 4}, s{sT}, v{vT + 4}
        v_add_u32 v{vT + 5}, 0x10000, v{vT + 4}
        ds_write_b128 v{vT + 4}, {vr(vT, 4)} offset:{ACC}
        ds_write_b128 v{vT + 4}, {vr(vT, 4)} offset:{ACC + 32768}
        ds_write_b128 v{vT + 5}, {vr(vT, 4)} offset:{ACC}
        ds_write_b128 v{vT + 5}, {vr(vT, 4)} offset:{ACC + 32768}
        ds_write_b32 v{vZERO}, v{vZERO} offset:{MISC}
        """)

    desc_loads()
    srd(a, sM, 36, E * 8)
    srd(a, sDI, 38, E * 2)
    srd(a, sOUT, 40, E * 8)
    a(f"""
    s_add_u32 s6, s6, {CNT}
    s_addc_u32 s7, s7, 0
    s_load_dword s{sNE}, s[6:7], 0
    s_load_dwordx8 {sr(sWD, 8)}, s[48:49], 0
    s_load_dwordx8 {sr(sWU, 8)}, s[50:51], 0
    s_load_dwordx4 {sr(sC8, 4)}, s[42:43], 0
    s_mov_b64 s[92:93], s[44:45]
    s_mov_b64 s[94:95], s[46:47]
    """)
    for i in range(D):
        a(f"v_mov_b32 v{Z(i)}, 0")
    for i in range(16):
        a(f"v_mov_b32 v{vFA + i}, 0")
    zero_acc()
    a(f"""
    s_mul_i32 s{sT}, s{sB}, {SPAN}
    v_mov_b32 v{vT + 8}, 0x8000000
    v_add_u32 v{vE8}, s{sT}, v0
    v_add_u32 v{vE8 + 1}, 0x400, v{vE8}
    v_add_u32 v{vE8 + 2}, 0x800, v{vE8}
    v_add_u32 v{vE8 + 3}, 0xc00, v{vE8}
    v_cmp_gt_u32 vcc, {SPAN - 3072}, v0
    s_mov_b32 s{sC}, 0xfffff000
    s_mov_b32 s{sC + 1}, 0xffffefff
    v_cndmask_b32 v{vE8 + 3}, v{vT + 8}, v{vE8 + 3}, vcc
    s_lshr_b32 s{sBAS}, s{sWAVE}, 2
    s_lshl_b32 s{sBAS}, s{sBAS}, 1
    s_add_u32 s{sBAS}, s{sBAS}, 1
    s_mov_b32 s{sPASS}, 0
    s_waitcnt lgkmcnt(0)
    s_mov_b32 s{sSEL}, 0x0c0c0703
    s_add_u32 s{sNE}, s{sNE}, {FIX * NB}
    s_waitcnt vmcnt(0)
    """)
    stamp(a, 4)
    desc_build()
    for i in range(D):
        pop(i)
    def side_loads():
        a(f"""
        s_mov_b64 exec, -1
        v_lshlrev_b32 v{vT + 8}, 4, v{vLANE}
        s_mov_b32 s{sT}, {MAXS}
        buffer_load_dwordx4 {vr(vS, 4)}, v{vT + 8}, {sr(sWS, 4)}, s{sT} offen
        """)
        for r in range(4):
            a(f"v_lshlrev_b32 v{vDI + r}, 1, v{vE8 + r}")
        for r in range(4):
            a(f"buffer_load_ushort v{vDI + r}, v{vDI + r}, {sr(sDI, 4)}, 0 offen")
        for r in range(4):
            a(f"v_lshlrev_b32 v{vE8 + r}, 3, v{vE8 + r}")
        for r in range(4):
            a(f"buffer_load_dwordx2 {vr(vM + 2 * r, 2)}, v{vE8 + r}, {sr(sM, 4)}, 0 offen {OPT['ld_m']}")

    late = OPT["late3"] == "1"
    if OPT["prio3"] == "1":
        a("s_setprio 3")
    if late:
        a("s_barrier")
        side_loads()
    else:
        side_loads()
        a("s_barrier")
    stamp(a, 7)
    for i in range(D):
        a(f"s_waitcnt vmcnt({D - 1 + 9})")
        process(i)
        pop(i)
    a(f"""
    L_k3_loop:
    s_add_u32 s{sPASS}, s{sPASS}, 1
    s_cmp_eq_u32 s{sPASS}, s{sBAS}
    s_cbranch_scc1 L_k3_basis
    L_k3_basisback:
    """)
    if OPT["prio3"] == "1":
        n = 80 // D
        for p, at in ((2, n * 3 // 10), (1, n * 6 // 10), (0, n * 8 // 10)):
            lab = a.uid("prio")
            a(f"""
            s_cmp_lg_u32 s{sPASS}, {at}
            s_cbranch_scc1 {lab}
            s_setprio {p}
            {lab}:
            """)
    a(f"""
    s_cmp_eq_u32 s{sW}, 0
    s_cbranch_scc1 L_k3_drained
    s_cmp_ge_u32 s{sPASS}, {EPOCH}
    s_cbranch_scc1 L_k3_full
    L_k3_pass:
    """)
    for i in range(D):
        a(f"s_waitcnt vmcnt({D - 1})")
        process(i)
        pop(i)
    a(f"""
    s_branch L_k3_loop
    L_k3_drained:
    s_mov_b64 exec, -1
    s_add_u32 s{sQB}, s{sQB}, 2048
    s_cmp_lt_u32 s{sQB}, s{sNE}
    s_cbranch_scc1 L_k3_next
    s_sub_u32 s{sQB}, s{sQB}, 2048
    s_cmp_lt_u32 s{sPASS}, s{sBAS}
    s_cbranch_scc0 L_k3_join
    s_mov_b32 s{sBAS}, s{sPASS}
    s_branch L_k3_basis
    L_k3_join:
    """)
    stamp(a, 8)
    a(f"""
    s_waitcnt lgkmcnt(0)
    s_barrier
    """)
    stamp(a, 9)

    a.begin_tail()
    a("L_k3_next:")
    desc_loads()
    a("s_waitcnt vmcnt(0)")
    desc_build()
    a(f"""
    s_branch L_k3_prime
    L_k3_full:
    s_mov_b64 exec, -1
    v_mov_b32 v{vT}, 1
    ds_write_b32 v{vZERO}, v{vT} offset:{MISC}
    s_branch L_k3_join
    """)
    a.end_tail()

    def fold(rs):
        for r in rs:
            t = vRB + 4 * r
            a(f"""
            v_lshrrev_b32 v{vT}, 3, v{vE8 + r}
            v_add_u32 v{vT + 1}, {TOPK}, v{vT}
            v_add_u32 v{vT}, {TOPK << 6}, v{vT}
            v_and_b32 v{vT + 1}, 63, v{vT + 1}
            v_and_b32 v{vT}, 0xfc0, v{vT}
            v_lshl_or_b32 v{vT}, v{vT}, 2, v{vT + 1}
            v_lshlrev_b32 v{vT}, 3, v{vT}
            ds_read_b64 {vr(t, 2)}, v{vT} offset:{ACC}
            ds_read_b64 {vr(t + 2, 2)}, v{vT} offset:{ACC + 512}
            """)
        a(f"""
        ds_read_b32 v{vT + 4}, v{vZERO} offset:{MISC}
        s_waitcnt lgkmcnt(0)
        v_readfirstlane_b32 s{sLIVE}, v{vT + 4}
        """)
        for r in rs:
            t = vRB + 4 * r
            a(f"""
            v_lshrrev_b32 v{vT}, 31, v{t}
            v_lshrrev_b32 v{vT + 1}, 31, v{t + 2}
            v_add_u32 v{t + 1}, v{t + 1}, v{vT}
            v_add_u32 v{t + 3}, v{t + 3}, v{vT + 1}
            """)
            for j in range(4):
                a(f"v_cvt_f32_i32 v{t + j}, v{t + j}")
            for j in range(4):
                a(f"v_add_f32 v{vFA + 4 * r + j}, v{vFA + 4 * r + j}, v{t + j}")

    def wpair(sw):
        a(f"""
        s_lshl_b32 s{sP}, s{sw}, 16
        s_and_b32 s{sP + 1}, s{sw}, 0xffff0000
        """)

    def pkmac(first, dst, src):
        base, hi = src & ~1, src & 1
        if first:
            a(f"v_pk_mul_f32 {vr(dst, 2)}, {vr(base, 2)}, {sr(sP, 2)} op_sel:[{hi},0] op_sel_hi:[{hi},1]")
        else:
            a(f"v_pk_fma_f32 {vr(dst, 2)}, {vr(base, 2)}, {sr(sP, 2)}, {vr(dst, 2)} op_sel:[{hi},0,0] op_sel_hi:[{hi},1,1]")

    def epilogue(rs):
        for k in range(4):
            for jp in range(2):
                wpair(sWD + 2 * k + jp)
                for r in rs:
                    pkmac(k == 0, vRB + 4 * r + 2 * jp, vFA + 4 * r + k)
        for r in rs:
            for j in range(4):
                a(f"v_mul_f32 v{vRB + 4 * r + j}, v{vRB + 4 * r + j}, v{vS + 4 * r + j}")
        for k in range(4):
            for jp in range(2):
                wpair(sWU + 2 * k + jp)
                for r in rs:
                    pkmac(k == 0, vFA + 4 * r + 2 * jp, vRB + 4 * r + k)
        for r in rs:
            t, m = vRB + 4 * r, vM + 2 * r
            a(f"""
            v_lshlrev_b32 v{t}, 16, v{m}
            v_and_b32 v{t + 1}, 0xffff0000, v{m}
            v_lshlrev_b32 v{t + 2}, 16, v{m + 1}
            v_and_b32 v{t + 3}, 0xffff0000, v{m + 1}
            """)
            for j in range(4):
                a(f"v_fmac_f32 v{t + j}, v{vFA + 4 * r + j}, v{vRR + 4 * r + j}")
            a(f"""
            v_cvt_pk_bf16_f32 v{t}, v{t}, v{t + 1}
            v_cvt_pk_bf16_f32 v{t + 1}, v{t + 2}, v{t + 3}
            buffer_store_dwordx2 {vr(t, 2)}, v{vE8 + r}, {sr(sOUT, 4)}, 0 offen {OPT['st_out']}
            """)

    a(f"""
    s_cmp_eq_u32 s{sWAVE}, 0
    s_cbranch_scc1 L_k3_epi4
    """)
    for rs, pre in (([0, 1, 2], ""), ([0, 1, 2, 3], "L_k3_epi4:")):
        if pre:
            a(pre)
        fold(rs)
        a(f"""
        s_cmp_lg_u32 s{sLIVE}, 0
        s_cbranch_scc1 L_k3_again
        """)
        epilogue(rs)
        stamp_flush(a, 2, sWS, sWAVE)
        a("s_endpgm")
    a(f"""
    L_k3_again:
    s_barrier
    """)
    zero_acc()
    a(f"""
    s_mov_b32 s{sPASS}, s{sBAS}
    s_waitcnt lgkmcnt(0)
    s_barrier
    s_branch L_k3_basisback
    L_k3_prime:
    """)
    for i in range(D):
        pop(i)
    a("s_branch L_k3_basisback")

    def basis(rs):
        x = lambda n, kp: vRB + 8 * n + 2 * kp
        for n, r in enumerate(rs):
            a(f"v_lshlrev_b32 v{vDI + r}, 16, v{vDI + r}")
        for kp in range(4):
            wpair(sC8 + kp)

            def rnd():
                for n in range(len(rs)):
                    a(f"v_cvt_pk_bf16_f32 v{x(n, kp)}, v{x(n, kp)}, v{x(n, kp) + 1}")
                for n in range(len(rs)):
                    a(f"v_and_b32 v{x(n, kp) + 1}, 0xffff0000, v{x(n, kp)}")
                for n in range(len(rs)):
                    a(f"v_lshlrev_b32 v{x(n, kp)}, 16, v{x(n, kp)}")

            def each(op):
                for n in range(len(rs)):
                    for h in range(2):
                        a(op.format(v=f"v{x(n, kp) + h}"))
            for n, r in enumerate(rs):
                d = vDI + r
                hi = d & 1
                a(f"v_pk_add_f32 {vr(x(n, kp), 2)}, {vr(d & ~1, 2)}, {sr(sP, 2)} op_sel:[{hi},0] op_sel_hi:[{hi},1] neg_lo:[0,1] neg_hi:[0,1]")
            rnd()
            each("v_mul_f32 {v}, {v}, {v}")
            rnd()
            each("v_mul_f32 {v}, 0xc1200000, {v}")
            rnd()
            each("v_mul_f32 {v}, 0x3fb8aa3b, {v}")
            each("v_exp_f32 {v}, {v}")
            a("s_nop 0")
            rnd()
        for dst, ptr in ((vS, 94), (vRR, 92)):
            a(f"""
            s_load_dwordx16 {sr(sWX, 16)}, s[{ptr}:{ptr + 1}], 0
            s_waitcnt lgkmcnt(0)
            """)
            for k in range(8):
                for jp in range(2):
                    wpair(sWX + 2 * k + jp)
                    for n, r in enumerate(rs):
                        pkmac(k == 0, dst + 4 * r + 2 * jp, vRB + 8 * n + k)
        for r in rs:
            for j in range(4):
                a(f"v_mul_f32 v{vS + 4 * r + j}, v{vT + 9}, v{vS + 4 * r + j}")
            for jp in range(2):
                y = vRR + 4 * r + 2 * jp
                a(f"""
                v_cvt_pk_bf16_f32 v{y}, v{y}, v{y + 1}
                v_and_b32 v{y + 1}, 0xffff0000, v{y}
                v_lshlrev_b32 v{y}, 16, v{y}
                """)

    a(f"""
    L_k3_basis:
    s_mov_b64 exec, -1
    s_waitcnt vmcnt({D})
    """)
    stamp(a, 5)
    global_max(a, vS, sUNIT)
    a(f"""
    v_mov_b32 v{vT + 9}, s{sUNIT}
    v_mul_f32 v{vT + 9}, 0x39808081, v{vT + 9}
    """)
    basis([0, 1])
    a(f"""
    s_cmp_eq_u32 s{sWAVE}, 0
    s_cbranch_scc1 L_k3_basis23
    """)
    basis([2])
    stamp(a, 6)
    a("""
    s_branch L_k3_basisback
    L_k3_basis23:
    """)
    basis([2, 3])
    stamp(a, 6)
    a("""
    s_branch L_k3_basisback
    L_k3_end:
    s_endpgm
    """)
    a.flush_tail()
    a("L_text_end:")
    return name, nv, 96, LDS


HEADER = """; Three launches: partition by idx_in, gather + partition by idx_out, accumulate + epilogue.
"""


def build():
    a = Asm()
    ks = [k1(a), k2(a), k3(a)]
    out = HEADER
    for name, nv, ns, lds in ks:
        out += f"; @launch kernel={name} grid=({NB},1,1) block=(1024,1,1) lds={lds}\n"
    out += '.amdgcn_target "amdgcn-amd-amdhsa--gfx950"\n.text\n'
    out += a.text()
    out += '.section .rodata,"a"\n'
    for name, nv, ns, lds in ks:
        assert nv <= (127 if OPT["prof"] else 128), (name, nv)
        out += kernel_desc(name, 128 if OPT["prof"] else nv, 102 if OPT["prof"] else ns)
    return out


if __name__ == "__main__":
    path = sys.argv[1]
    for kv in sys.argv[2:]:
        k, v = kv.split("=")
        OPT[k] = v.replace("+", " ")
    open(path, "w").write(build())
```

```python
import sys
from asmlib import Asm, vr, sr, srd, wave_scan, kernel_header, kernel_desc, code_prefetch

E = 800000
T = 12800000
NB = 256
SPAN = 3125
CB4 = 4 * 1374390
N1 = 13312
DYN0 = 3 * NB * N1
NGRP = (T - DYN0) // 4096
NLAST = 3 * 4096
assert DYN0 + NGRP * 4096 == T
RT = DYN0 + NB * NLAST

R1A = 0
R1B = RT * 4
ROW1 = 4096 + 128
OFF1 = RT * 6
CNT = OFF1 + NB * ROW1
MAXS = CNT + 1024
DIR2 = MAXS + 1024
ROW2 = 65536 + 128
OFF2 = DIR2 + 65536
R2 = OFF2 + NB * ROW2
WS_BYTES = 268435456
assert OFF1 % 128 == 0 and R2 % 128 == 0 and OFF2 % 128 == 0
assert R2 + (1 << 27) <= 240000000
PAD2 = 14592
FIX = 5
NS = 15
SEG = 63
MAGIC = 0x4C001000
TOPK = 0x13
QMAX = 4080
MAXFLOOR = 0x0880

OPT = dict(ld_in="nt", st1="sc0 sc1", ld1="", st2="sc0 sc1", ld2="", ld_m="", st_out="", prof="", d3="5", k1early="0",
           k2early="1", greedy="0", prio3="1", late3="1", pf1="1", pf2="0", pf3="0", tlb="0", k1thr="", prio2="1", prio1="0", clpos="1", r3="128", hlag="0", mpos="2", nmain="14", cosr="1")
PROF = 240000000
VPROF = 127


def stamp(a, i, dyn=None):
    if not OPT["prof"]:
        return
    a("""
    s_memrealtime s[98:99]
    s_waitcnt lgkmcnt(0)
    """)
    if dyn is None:
        a(f"v_writelane_b32 v{VPROF}, s98, {i}")
    else:
        a(f"""
        s_lshl_b32 s99, s{dyn}, 2
        s_add_u32 m0, s99, {i}
        s_nop 0
        v_writelane_b32 v{VPROF}, s98, m0
        """)


def stamp_flush(a, kidx, sWS, sWAVE):
    if not OPT["prof"]:
        return
    stamp(a, 2)
    a("s_waitcnt vmcnt(0)")
    stamp(a, 3)
    lab = a.uid("pf")
    a(f"""
    s_mov_b64 exec, -1
    s_and_b32 s98, s{sWAVE}, 7
    s_cmp_lg_u32 s98, 0
    s_cbranch_scc1 {lab}
    s_lshr_b32 s98, s{sWAVE}, 3
    s_lshl_b32 s99, s2, 1
    s_add_u32 s98, s98, s99
    s_lshl_b32 s98, s98, 8
    s_add_u32 s98, s98, {PROF + kidx * 512 * 256}
    v_and_b32 v0, 63, v0
    v_lshlrev_b32 v0, 2, v0
    buffer_store_dword v{VPROF}, v0, s[{sWS}:{sWS + 3}], s98 offen
    {lab}:
    """)


def slice_loads(a, sM, sROW, sT, vX4, vTMP, dst):
    a(f"""
    s_and_b32 s{sT}, s{sROW}, -2
    s_lshl_b32 s{sT}, s{sT}, 3
    v_mov_b32 v{vTMP}, 0x40000000
    v_cmp_gt_u32 vcc, {(SPAN + 1) // 2 - 1024}, v0
    buffer_load_dwordx4 {vr(dst, 4)}, v{vX4}, {sr(sM, 4)}, s{sT} offen {OPT['ld_m']}
    s_add_u32 s{sT}, s{sT}, 16384
    v_cndmask_b32 v{vTMP}, v{vTMP}, v{vX4}, vcc
    buffer_load_dwordx4 {vr(dst + 4, 4)}, v{vTMP}, {sr(sM, 4)}, s{sT} offen {OPT['ld_m']}
    """)


def prefix_core(a, c, z, b, x, vX4, HOFF, POFF):
    a(f"""
    ds_write_b128 v{vX4}, {vr(z, 4)} offset:{HOFF}
    v_add_u32 v{b + 2}, v{c}, v{c + 1}
    v_add_u32 v{b + 3}, v{b + 2}, v{c + 2}
    v_add_u32 v{x + 1}, v{b + 3}, v{c + 3}
    v_mov_b32 v{x}, v{x + 1}
    """)
    wave_scan(a, "v_add_u32", x)
    a(f"""
    v_sub_u32 v{b}, v{x}, v{x + 1}
    v_add_u32 v{b + 1}, v{b}, v{c}
    v_add_u32 v{b + 2}, v{b}, v{b + 2}
    v_add_u32 v{b + 3}, v{b}, v{b + 3}
    ds_write_b128 v{vX4}, {vr(b, 4)} offset:{POFF}
    """)


def global_max(a, v4, sDST):
    a(f"""
    v_max3_u32 v{v4}, v{v4}, v{v4 + 1}, v{v4 + 2}
    v_max_u32 v{v4}, v{v4}, v{v4 + 3}
    """)
    wave_scan(a, "v_max_u32", v4)
    a(f"""
    s_nop 0
    v_readlane_b32 s{sDST}, v{v4}, 63
    s_nop 3
    s_max_u32 s{sDST}, s{sDST}, {MAXFLOOR}
    s_lshl_b32 s{sDST}, s{sDST}, 16
    """)


def k1(a):
    name = "part_in_kernel"
    kernel_header(a, name)
    HOFF, POFF, MISC, BUF = 0, 1024, 2048, 2176
    BUFB = BUF + N1 * 4
    sIN, sOUT, sANG, sWS, sM = 12, 16, 20, 24, 40
    sWAVE, sCB, sT, sA, sB, sU, sPOS = 3, 28, 29, 30, 31, 36, 37
    sTI = [32, 33, 34]
    sCL, sN, sG, sDBG, sLB = 47, 48, 49, 50, 35
    vX4, vX4b, vX2, vTI, vTA, vFOUR, vF = 1, 2, 3, 4, 5, 6, 7
    sets = []
    base = 8
    for s in range(2):
        sets.append(dict(i=base, o=base + 14, g=base + 28))
        base += 36
    vRANK = base
    vROW = vRANK + 13
    vSTG = vRANK + 14
    vC = vSTG + 20
    vCL = sets[0]['i'] + 13
    vZERO = sets[1]['i'] + 13
    nv = vC + 4
    ld = OPT["ld_in"]
    a(f"""
    s_cmp_ge_u32 s2, {NB}
    s_cbranch_scc1 L_k1_end
    """)
    if OPT["pf1"] == "1":
        code_prefetch(a, "part_in_kernel", "L_text_end", 57344, nv, 40)
        nv += 1
    a(f"""
    s_load_dwordx4 s[4:7], s[0:1], 8
    s_load_dwordx2 s[8:9], s[0:1], 32
    s_load_dwordx2 s[10:11], s[0:1], 104
    s_load_dwordx2 s[38:39], s[0:1], 0
    s_load_dwordx2 s[44:45], s[0:1], 48
    s_load_dwordx2 {sr(sDBG, 2)}, s[0:1], 96
    v_lshrrev_b32 v{vFOUR}, 6, v0
    v_lshlrev_b32 v{vX4}, 4, v0
    v_readfirstlane_b32 s{sWAVE}, v{vFOUR}
    v_add_u32 v{vX4b}, 0x10000, v{vX4}
    v_lshlrev_b32 v{vX2}, 3, v0
    v_lshlrev_b32 v{vTI}, 2, v0
    v_lshlrev_b32 v{vTA}, 1, v0
    v_mov_b32 v{vSTG}, 0
    v_mov_b32 v{vZERO}, 0
    s_mov_b32 s{sCB}, {CB4}
    v_mov_b32 v{vFOUR}, 4
    v_mul_u32_u24 v{vROW}, {4 * ROW1}, v0
    s_mov_b32 s{sTI[0]}, s2
    s_add_u32 s{sTI[1]}, s2, 256
    s_add_u32 s{sTI[2]}, s2, 512
    s_mul_i32 s{sLB}, s2, {NLAST}
    s_add_u32 s{sLB}, s{sLB}, {DYN0}
    s_mov_b32 s{sN}, 0
    s_waitcnt lgkmcnt(0)
    s_load_dword s46, s[44:45], 0
    """)
    stamp(a, 0)
    srd(a, sIN, 4, T * 4)
    srd(a, sOUT, 6, T * 4)
    srd(a, sANG, 8, T * 2)
    srd(a, sWS, 10, WS_BYTES)
    srd(a, sM, 38, E * 8)

    def loads(st, g):
        if g < 3:
            a(f"""
            buffer_load_dwordx4 {vr(st['i'] + 4 * g, 4)}, v{vX4}, {sr(sIN, 4)}, s{sA} offen {ld}
            buffer_load_dwordx4 {vr(st['o'] + 4 * g, 4)}, v{vX4}, {sr(sOUT, 4)}, s{sA} offen {ld}
            buffer_load_dwordx2 {vr(st['g'] + 2 * g, 2)}, v{vX2}, {sr(sANG, 4)}, s{sB} offen {ld}
            """)
        else:
            a(f"""
            buffer_load_dword v{st['i'] + 12}, v{vTI}, {sr(sIN, 4)}, s{sA} offen {ld}
            buffer_load_dword v{st['o'] + 12}, v{vTI}, {sr(sOUT, 4)}, s{sA} offen {ld}
            buffer_load_ushort v{st['g'] + 6}, v{vTA}, {sr(sANG, 4)}, s{sB} offen {ld}
            """)

    def load_group(k, g):
        a(f"""
        s_mul_i32 s{sB}, s{sTI[k]}, {N1 * 2}
        s_add_u32 s{sB}, s{sB}, {g * 8192}
        s_lshl_b32 s{sA}, s{sB}, 1
        """)
        loads(sets[k % 2], g)

    def claim_issue():
        lab = a.uid("ci")
        a(f"""
        s_cmp_lg_u32 s{sWAVE}, 0
        s_cbranch_scc1 {lab}
        s_mov_b32 s{sCL}, 1
        s_atomic_add s{sCL}, {sr(sDBG, 2)}, 0 glc
        {lab}:
        """)

    def claim_publish(n):
        lab = a.uid("cp")
        a(f"""
        s_cmp_lg_u32 s{sWAVE}, 0
        s_cbranch_scc1 {lab}
        v_mov_b32 v{vCL}, s{sCL}
        ds_write_b32 v{vZERO}, v{vCL} offset:{MISC + 4 + 4 * n}
        s_waitcnt lgkmcnt(0)
        {lab}:
        """)

    def claim_read(n):
        a(f"ds_read_b32 v{vCL}, v{vZERO} offset:{MISC + 4 + 4 * n}")

    def claimed_loads(g):
        r3 = int(OPT["r3"])
        r2 = NGRP - NB - r3
        assert r3 <= r2 <= NB
        if g == 0:
            a(f"""
            v_readfirstlane_b32 s{sG}, v{vCL}
            s_mov_b32 s{sN}, 1
            s_cmp_lt_u32 s{sG}, {r3}
            s_addc_u32 s{sN}, s{sN}, 0
            s_cmp_lt_u32 s{sG}, {r2}
            s_addc_u32 s{sN}, s{sN}, 0
            s_min_u32 s{sT}, s{sG}, {r3}
            s_min_u32 s{sU}, s{sG}, {r2}
            s_add_u32 s{sG}, s{sG}, s{sT}
            s_add_u32 s{sG}, s{sG}, s{sU}
            """)
        a(f"""
        s_add_u32 s{sB}, s{sG}, {g}
        s_cmp_gt_u32 s{sN}, {g}
        s_cselect_b32 s{sB}, s{sB}, {NGRP}
        s_lshl_b32 s{sB}, s{sB}, 13
        s_add_u32 s{sB}, s{sB}, {DYN0 * 2}
        s_lshl_b32 s{sA}, s{sB}, 1
        """)
        loads(sets[1], g)

    for g in range(4):
        load_group(0, g)
    a(f"""
    s_cmp_lg_u32 s{sWAVE}, 0
    s_cbranch_scc1 L_k1_noinit
    v_mov_b32 v{vSTG + 1}, 0
    v_mov_b32 v{vSTG + 2}, 0
    v_mov_b32 v{vSTG + 3}, 0
    ds_write_b128 v{vX4}, {vr(vSTG, 4)} offset:{HOFF}
    ds_write_b32 v{vSTG}, v{vSTG} offset:{MISC}
    s_cmp_lg_u32 s2, 0
    s_cbranch_scc1 L_k1_noinit
    s_mov_b32 s{sT}, {CNT}
    buffer_store_dword v{vSTG}, v{vTI}, {sr(sWS, 4)}, s{sT} offen
    L_k1_noinit:
    s_waitcnt lgkmcnt(0)
    s_lshl_b32 s46, s46, 16
    v_mov_b32 v{vF}, s46
    s_barrier
    """)
    for g in range(4):
        load_group(1, g)

    def copy_reads():
        lab = a.uid("cr")
        for i in range(4):
            a(f"ds_read_b128 {vr(vSTG + 4 * i, 4)}, v{vX4} offset:{BUF + i * 16384}")
        a(f"""
        s_cmp_ge_u32 s{sWAVE}, 14
        s_cbranch_scc1 {lab}
        ds_read_b128 {vr(vSTG + 16, 4)}, v{vX4b} offset:{BUF}
        {lab}:
        """)

    def copy_store(i, sTile):
        st = OPT["st1"]
        if i < 3:
            a(f"""
            s_mul_i32 s{sT}, s{sTile}, {N1 * 4}
            s_add_u32 s{sT}, s{sT}, {R1A + i * 16384}
            buffer_store_dwordx4 {vr(vSTG + 4 * i, 4)}, v{vX4}, {sr(sWS, 4)}, s{sT} offen {st}
            """)
        elif i == 3:
            a(f"""
            s_mul_i32 s{sT}, s{sTile}, {N1 * 4}
            s_add_u32 s{sT}, s{sT}, {R1A + 49152}
            s_mul_i32 s{sU}, s{sTile}, {N1 * 2}
            s_add_u32 s{sU}, s{sU}, {R1B - 4096}
            s_cmp_lt_u32 s{sWAVE}, 4
            s_cselect_b32 s{sT}, s{sT}, s{sU}
            buffer_store_dwordx4 {vr(vSTG + 12, 4)}, v{vX4}, {sr(sWS, 4)}, s{sT} offen {st}
            """)
        else:
            lab = a.uid("cs")
            a(f"""
            s_cmp_ge_u32 s{sWAVE}, 14
            s_cbranch_scc1 {lab}
            s_mul_i32 s{sT}, s{sTile}, {N1 * 2}
            s_add_u32 s{sT}, s{sT}, {R1B + 12288}
            buffer_store_dwordx4 {vr(vSTG + 16, 4)}, v{vX4}, {sr(sWS, 4)}, s{sT} offen {st}
            {lab}:
            """)

    def hist(st, js):
        for j in js:
            a(f"v_mul_hi_u32_u24 v{vRANK + j}, s{sCB}, v{st['i'] + j}")
        for j in js:
            a(f"v_lshl_or_b32 v{st['o'] + j}, v{st['i'] + j}, 20, v{st['o'] + j}")
        for j in js:
            a(f"v_and_b32 v{st['i'] + j}, 0x3fc, v{vRANK + j}")
        for j in js:
            a(f"ds_add_rtn_u32 v{vRANK + j}, v{st['i'] + j}, v{vFOUR} offset:{HOFF}")

    def cosines(regs):
        ops = ["v_lshlrev_b32 {x}, 16, {g}", "v_and_b32 {y}, 0xffff0000, {g}",
               f"v_mul_f32 {{x}}, v{vF}, {{x}}", f"v_mul_f32 {{y}}, v{vF}, {{y}}",
               "v_cvt_pk_bf16_f32 {g}, {x}, {y}",
               "v_lshlrev_b32 {x}, 16, {g}", "v_and_b32 {y}, 0xffff0000, {g}",
               "v_mul_f32 {x}, 0.15915494, {x}", "v_mul_f32 {y}, 0.15915494, {y}",
               "v_fract_f32 {x}, {x}", "v_fract_f32 {y}, {y}",
               "v_cos_f32 {x}, {x}", "v_cos_f32 {y}, {y}"]
        for op in ops:
            for n, g in enumerate(regs):
                a(op.format(g=f"v{g}", x=f"v{vC + 2 * n}", y=f"v{vC + 2 * n + 1}"))
        a("s_nop 0")
        if OPT["cosr"] == "1":
            for op in ops[4:7]:
                for n, g in enumerate(regs):
                    a(op.format(g=f"v{g}", x=f"v{vC + 2 * n}", y=f"v{vC + 2 * n + 1}"))
        for n, g in enumerate(regs):
            a(f"v_cvt_pk_f16_f32 v{g}, v{vC + 2 * n}, v{vC + 2 * n + 1}")

    def skip_unless(g, lab):
        a(f"""
        s_cmp_le_u32 s{sN}, {g}
        s_cbranch_scc1 {lab}
        """)

    def phase_h(k):
        st = sets[k % 2]
        if k > 0:
            copy_reads()
        if k == 1 and OPT["clpos"] == "0":
            claim_issue()
        if k > 0:
            a(f"s_waitcnt vmcnt({[0, 12, 9, 2 if OPT['mpos'] == '2' else 0][k]})")
        stores = [[0, 1], [2, 3], [4]] if k < 3 else [[0, 1], [2, 3, 4], []]
        for g in range(3):
            lab = a.uid("hg")
            if k == 0:
                a(f"s_waitcnt vmcnt({24 - 3 * g - 2})")
            if k == 3:
                skip_unless(g, lab)
            if OPT["prio1"] == "1":
                a(f"s_setprio {3 - g}")
            hist(st, range(4 * g, 4 * g + 4))
            if k == 3:
                cosines([st['g'] + 2 * g, st['g'] + 2 * g + 1])
                a(f"{lab}:")
            if k > 0:
                if g == 0:
                    a(f"s_waitcnt lgkmcnt({4 if k < 3 else 0})")
                for i in stores[g]:
                    copy_store(i, sTI[k - 1])
            if k == 0:
                a(f"s_waitcnt vmcnt({24 - 3 * g - 3})")
            if k == 1 and g == 1 and OPT["clpos"] == "1":
                claim_issue()
            if k < 3:
                cosines([st['g'] + 2 * g, st['g'] + 2 * g + 1])
        if k == 0:
            a("s_waitcnt vmcnt(12)")
        if k < 3:
            hist(st, [12])
            cosines([st['g'] + 6])
        a("s_waitcnt lgkmcnt(0)")
        if k == 1:
            claim_publish(0)
        a("s_barrier")

    def phase_p(k):
        lab = a.uid("p")
        c, z, b, x = vSTG, vSTG + 4, vSTG + 8, vSTG + 12
        a(f"""
        s_cmp_lg_u32 s{sWAVE}, 0
        s_cbranch_scc1 {lab}
        ds_read_b128 {vr(c, 4)}, v{vX4} offset:{HOFF}
        v_mov_b32 v{z}, 0
        v_mov_b32 v{z + 1}, 0
        v_mov_b32 v{z + 2}, 0
        v_mov_b32 v{z + 3}, 0
        s_waitcnt lgkmcnt(0)
        """)
        prefix_core(a, c, z, b, x, vX4, HOFF, POFF)
        a(f"""
        s_waitcnt lgkmcnt(0)
        {lab}:
        s_barrier
        """)

    def offsets_store(k):
        lab = a.uid("os")
        c, b = vSTG, vSTG + 8
        a(f"""
        s_cmp_lg_u32 s{sWAVE}, 0
        s_cbranch_scc1 {lab}
        s_and_b32 s{sT}, s2, 7
        s_mul_i32 s{sT}, s{sT}, {96 if k < 3 else 32}
        s_lshr_b32 s{sU}, s2, 3
        s_add_u32 s{sT}, s{sT}, s{sU}
        s_lshl_b32 s{sT}, s{sT}, 2
        s_add_u32 s{sT}, s{sT}, {OFF1 + (k * 128 if k < 3 else 768 * 4)}
        """)
        for j in range(4):
            a(f"v_lshl_or_b32 v{c + j}, v{c + j}, 16, v{b + j}")
        for j in range(4):
            a(f"buffer_store_dword v{c + j}, v{vROW}, {sr(sWS, 4)}, s{sT} offen")
            if j < 3:
                a(f"s_add_u32 s{sT}, s{sT}, {ROW1}")
        a(f"{lab}:")

    def scatter(st, js):
        for j in js:
            a(f"v_add_u32 v{vRANK + j}, v{st['i'] + j}, v{vRANK + j}")
        for j in js:
            a(f"ds_write_b32 v{vRANK + j}, v{st['o'] + j} offset:{BUF}")
        for j in js:
            a(f"v_lshrrev_b32 v{st['i'] + j}, 1, v{vRANK + j}")
        for j in js:
            op = "ds_write_b16" if j % 2 == 0 else "ds_write_b16_d16_hi"
            a(f"{op} v{st['i'] + j}, v{st['g'] + j // 2} offset:{BUFB}")

    vM8 = sets[0]['i']

    def phase_s(k):
        st = sets[k % 2]
        lab = a.uid("se")
        if k == 1:
            claim_read(0)
        if k < 3:
            for j in range(13):
                a(f"ds_read_b32 v{st['i'] + j}, v{st['i'] + j} offset:{POFF}")
        else:
            l2 = a.uid("sr")
            for g in range(3):
                skip_unless(g, l2)
                for j in range(4 * g, 4 * g + 4):
                    a(f"ds_read_b32 v{st['i'] + j}, v{st['i'] + j} offset:{POFF}")
            a(f"{l2}:")
        offsets_store(k)
        if k == 3 and OPT["mpos"] == "3":
            a(f"s_mul_i32 s{sU}, s2, {SPAN}")
            slice_loads(a, sM, sU, sT, vX4, vC, vM8)
        a("s_waitcnt lgkmcnt(0)")
        for g in range(3):
            if k == 3:
                skip_unless(g, lab)
            if OPT["prio1"] == "1":
                a(f"s_setprio {3 - g}")
            scatter(st, range(4 * g, 4 * g + 4))
            if k == 0:
                load_group(2, g)
            if k == 1:
                claimed_loads(g)
        if k < 3:
            scatter(st, [12])
        if k == 0:
            load_group(2, 3)
        if k == 2 and OPT["mpos"] == "2":
            a(f"s_mul_i32 s{sU}, s2, {SPAN}")
            slice_loads(a, sM, sU, sT, vX4, vC, vM8)
        a(f"""
        {lab}:
        s_waitcnt lgkmcnt(0)
        """)
        a("s_barrier")

    for k in range(4):
        stamp(a, 4 + 4 * k)
        phase_h(k)
        stamp(a, 5 + 4 * k)
        phase_p(k)
        stamp(a, 6 + 4 * k)
        phase_s(k)
    stamp(a, 1)
    a(f"""
    s_lshl_b32 s{sA}, s{sN}, 3
    s_min_u32 s{sB}, s{sA}, 16
    s_sub_i32 s{sA}, s{sA}, 16
    """)
    parts = [(f"s_cmp_gt_u32 s{sN}, {i}", BUF + i * 16384, 2, R1A + i * 16384) for i in range(3)]
    parts += [(f"s_cmp_lt_u32 s{sWAVE}, s{sB}", BUFB, 1, R1B), (f"s_cmp_lt_i32 s{sWAVE}, s{sA}", BUFB + 16384 - 65536, 1, R1B + 16384)]
    for i, (cond, off, sh, g) in enumerate(parts):
        lab = a.uid("fr")
        a(f"""
        {cond}
        s_cbranch_scc0 {lab}
        ds_read_b128 {vr(vSTG + 4 * i, 4)}, v{vX4 if i < 4 else vX4b} offset:{off}
        {lab}:
        """)
    a("s_waitcnt lgkmcnt(0)")
    for i, (cond, off, sh, g) in enumerate(parts):
        a(f"""
        {cond}
        s_cselect_b64 exec, -1, 0
        s_lshl_b32 s{sT}, s{sLB}, {sh}
        s_add_u32 s{sT}, s{sT}, {g}
        buffer_store_dwordx4 {vr(vSTG + 4 * i, 4)}, v{vX4}, {sr(sWS, 4)}, s{sT} offen {OPT['st1']}
        """)
    a("""
    s_mov_b64 exec, -1
    s_waitcnt vmcnt(5)
    """)
    for i in range(8):
        a(f"v_and_b32 v{vM8 + i}, 0x7fff7fff, v{vM8 + i}")
    for d, x, y in ((0, 0, 1), (2, 2, 3), (4, 4, 5), (6, 6, 7), (0, 0, 2), (4, 4, 6), (0, 0, 4)):
        a(f"v_pk_max_u16 v{vM8 + d}, v{vM8 + x}, v{vM8 + y}")
    a(f"""
    v_lshrrev_b32 v{vC}, 16, v{vM8}
    v_and_b32 v{vM8}, 0xffff, v{vM8}
    v_max_u32 v{vC}, v{vC}, v{vM8}
    v_mov_b32 v{vC + 1}, 0
    """)
    wave_scan(a, "v_max_u32", vC)
    a(f"""
    s_lshl_b64 exec, 1, 63
    ds_max_u32 v{vC + 1}, v{vC} offset:{MISC}
    s_waitcnt lgkmcnt(0)
    s_barrier
    s_cmp_lg_u32 s{sWAVE}, 0
    s_cbranch_scc1 L_k1_nomax
    ds_read_b32 v{vC}, v{vC + 1} offset:{MISC}
    s_lshl_b32 s{sT}, s2, 2
    s_add_u32 s{sT}, s{sT}, {MAXS}
    s_waitcnt lgkmcnt(0)
    buffer_store_dword v{vC}, v{vC + 1}, {sr(sWS, 4)}, s{sT} offen
    L_k1_nomax:
    """)
    stamp_flush(a, 0, sWS, sWAVE)
    a("""
    L_k1_end:
    s_endpgm
    """)
    return name, nv, 56, BUFB + N1 * 2


def refill_code(a, vIDX, vLEN, vW, vT, sMASK, pend=None):
    a(f"""
    s_mov_b64 exec, -1
    v_add_u32 v{vIDX}, {SEG}, v{vIDX}
    v_subrev_u32 v{vLEN}, {SEG}, v{vLEN}
    v_max_i32 v{vLEN}, 0, v{vLEN}
    """)
    if pend is not None:
        cur, pen = pend
        a(f"""
        v_cmp_eq_u32 vcc, 0, v{vLEN}
        s_nop 1
        """)
        for c, p in zip(cur, pen):
            a(f"v_cndmask_b32 v{c}, v{c}, v{p}, vcc")
        a(f"v_cndmask_b32 v{pen[1]}, v{pen[1]}, 0, vcc")
    a(f"""
    v_min_u32 v{vT}, {SEG}, v{vLEN}
    v_cmp_lt_u32 {sr(sMASK, 2)}, 0, v{vLEN}
    v_lshl_or_b32 v{vW}, v{vIDX}, 6, v{vT}
    s_nop 3
    """)


def k2(a):
    name = "gather_part_kernel"
    kernel_header(a, name)
    HOFF, POFF, MISC, SLICE, SORT = 0, 1024, 2048, 4096, 36864
    LDS = SORT + NS * 1024 * 8
    sWAVE, sB = 3, 4
    sWS, sM = 8, 12
    sK, sCB, sDONE, sNOLD = 16, 17, 18, 19
    sMASK, sQUOTA, sNT, sKT, sT, sU, sL = 20, 22, 23, 24, 25, 26, 27
    sBASE, sNPREV, sR1B, sBPREV, sQ = 28, 29, 31, 64, 65
    sW = [32, 48]
    sCM = [66, 68, 70]
    vLANE, vX4, vXA, vXB, vT2, vEIGHT, vIDX, vLEN, vW, vZERO, vROW = 1, 2, 3, 4, 5, 6, 7, 8, 9, 10, 11
    vT = 12
    vSTG = 16
    vR = [28, 28 + 2 * NS]
    vZ = 28 + 4 * NS
    nv = vZ + 2 * NS
    A = lambda st, s: vR[st] + 2 * s
    G = lambda st, s: vR[st] + 2 * s + 1
    Z = lambda s: vZ + 2 * s
    ld1 = OPT["ld1"]

    a(f"""
    s_cmp_ge_u32 s2, {NB}
    s_cbranch_scc1 L_k2_end
    """)
    if OPT["pf2"] == "1":
        code_prefetch(a, "gather_part_kernel", "L_k2_last", 24576, nv, 72)
        nv += 1
    a(f"""
    s_load_dwordx2 s[6:7], s[0:1], 104
    s_load_dwordx2 s[32:33], s[0:1], 0
    v_lshrrev_b32 v{vEIGHT}, 6, v0
    v_and_b32 v{vLANE}, 63, v0
    v_readfirstlane_b32 s{sWAVE}, v{vEIGHT}
    s_and_b32 s{sB}, s2, 7
    s_lshl_b32 s{sB}, s{sB}, 5
    s_lshr_b32 s{sT}, s2, 3
    s_add_u32 s{sB}, s{sB}, s{sT}
    v_lshlrev_b32 v{vX4}, 4, v0
    v_lshlrev_b32 v{vT2}, 1, v0
    s_mul_i32 s{sU}, s{sWAVE}, 48
    v_add_u32 v{vIDX}, s{sU}, v{vLANE}
    v_lshl_add_u32 v{vW}, v{vLANE}, 4, s{sWAVE}
    v_cmp_gt_u32 vcc, 48, v{vLANE}
    v_lshlrev_b32 v{vT + 3}, 4, v{vLANE}
    s_nop 0
    v_cndmask_b32 v{vIDX}, v{vW}, v{vIDX}, vcc
    v_lshlrev_b32 v{vT + 2}, 2, v{vIDX}
    v_mov_b32 v{vZERO}, 0
    v_mov_b32 v{vEIGHT}, 8
    s_mul_i32 s{sT}, s{sB}, {ROW1}
    s_add_u32 s{sT}, s{sT}, {OFF1}
    s_mov_b32 s{sU}, {MAXS}
    s_waitcnt lgkmcnt(0)
    """)
    stamp(a, 0)
    srd(a, sWS, 6, WS_BYTES)
    a(f"""
    buffer_load_dword v{vLEN}, v{vT + 2}, {sr(sWS, 4)}, s{sT} offen
    buffer_load_dwordx4 {vr(vZ, 4)}, v{vT + 3}, {sr(sWS, 4)}, s{sU} offen
    """)
    srd(a, sM, 32, E * 8)
    a(f"s_mul_i32 s{sU}, s{sB}, {SPAN}")
    slice_loads(a, sM, sU, sT, vX4, vT + 1, vSTG)
    a(f"""
    v_lshlrev_b32 v{vT + 2}, 2, v0
    ds_write_b32 v{vT + 2}, v{vZERO}
    s_and_b32 s{sU}, s{sU}, -2
    v_add_u32 v{vXA}, {SORT}, v{vX4}
    v_add_u32 v{vXB}, {SORT + 65536}, v{vX4}
    v_mul_u32_u24 v{vROW}, {4 * ROW2}, v{vLANE}
    s_mov_b32 s{sK}, {MAGIC}
    s_mov_b32 s{sCB}, {CB4}
    s_mov_b32 s{sR1B}, {R1B}
    s_mov_b32 s{sDONE}, 0
    s_mov_b32 s{sNOLD}, 0
    v_add_u32 v{vSTG + 8}, s{sU}, v{vT2}
    v_and_b32 v{vSTG + 8}, 0xfff, v{vSTG + 8}
    v_lshlrev_b32 v{vSTG + 8}, 3, v{vSTG + 8}
    v_xor_b32 v{vSTG + 9}, 0x4000, v{vSTG + 8}
    v_and_b32 v{vT}, 31, v{vIDX}
    v_lshrrev_b32 v{vT + 1}, 5, v{vIDX}
    v_mul_u32_u24 v{vT + 2}, 43, v{vT + 1}
    v_lshrrev_b32 v{vT + 2}, 7, v{vT + 2}
    v_mad_i32_i24 v{vT + 3}, v{vT + 2}, -3, v{vT + 1}
    v_lshl_add_u32 v{vT + 2}, v{vT}, 3, v{vT + 2}
    v_lshl_add_u32 v{vT + 2}, v{vT + 3}, 8, v{vT + 2}
    v_mul_u32_u24 v{vT + 2}, {N1}, v{vT + 2}
    v_subrev_u32 v{vT + 1}, 24, v{vT + 1}
    v_lshl_add_u32 v{vT}, v{vT}, 3, v{vT + 1}
    v_cmp_gt_u32 vcc, 48, v{vLANE}
    v_mul_u32_u24 v{vT}, {NLAST}, v{vT}
    v_add_u32 v{vT}, {DYN0}, v{vT}
    v_cndmask_b32 v{vIDX}, v{vT}, v{vT + 2}, vcc
    """)
    for st in range(2):
        for s in range(NS):
            a(f"v_mov_b32 v{A(st, s)}, 0")
            a(f"v_mov_b32 v{G(st, s)}, 0")
    a(f"""
    s_waitcnt vmcnt(3)
    v_bfe_u32 v{vT}, v{vLEN}, 2, 14
    v_lshrrev_b32 v{vLEN}, 18, v{vLEN}
    v_add_u32 v{vIDX}, v{vIDX}, v{vT}
    v_add_u32 v{vT + 1}, {SEG - 1}, v{vLEN}
    v_mul_u32_u24 v{vT + 1}, 16645, v{vT + 1}
    v_lshrrev_b32 v{vT + 1}, 20, v{vT + 1}
    v_min_u32 v{vT + 2}, {SEG}, v{vLEN}
    v_cmp_lt_u32 {sr(sMASK, 2)}, 0, v{vLEN}
    v_lshl_or_b32 v{vW}, v{vIDX}, 6, v{vT + 2}
    """)
    wave_scan(a, "v_add_u32", vT + 1)
    a(f"""
    s_nop 0
    v_readlane_b32 s{sT}, v{vT + 1}, 63
    s_nop 3
    s_add_u32 s{sQUOTA}, s{sT}, {FIX - 1}
    s_mul_i32 s{sQUOTA}, s{sQUOTA}, 52429
    s_lshr_b32 s{sQUOTA}, s{sQUOTA}, 18
    s_add_u32 s{sNT}, s{sT}, {NS - 1}
    s_mul_i32 s{sNT}, s{sNT}, 34953
    s_lshr_b32 s{sNT}, s{sNT}, 19
    """)

    def pop(st, s):
        back, stub, empty, issue = a.uid("pb"), a.uid("pr"), a.uid("pe"), a.uid("pi")
        w = sW[st] + s
        if s >= 12 and OPT["greedy"] != "1":
            a(f"""
            s_cmp_le_u32 s{sQUOTA}, {s}
            s_cbranch_scc1 {empty}
            """)
        a(f"""
        s_cmp_eq_u64 {sr(sMASK, 2)}, 0
        s_cbranch_scc1 {stub}
        {back}:
        s_ff1_i32_b64 s{sL}, {sr(sMASK, 2)}
        s_bitset0_b64 {sr(sMASK, 2)}, s{sL}
        v_readlane_b32 s{w}, v{vW}, s{sL}
        s_lshr_b32 s{sT}, s{w}, 6
        s_bfm_b64 exec, s{w}, 0
        v_add_lshl_u32 v{A(st, s)}, s{sT}, v{vLANE}, 2
        v_lshrrev_b32 v{G(st, s)}, 1, v{A(st, s)}
        {issue}:
        buffer_load_dword v{A(st, s)}, v{A(st, s)}, {sr(sWS, 4)}, 0 offen {ld1}
        buffer_load_ushort v{G(st, s)}, v{G(st, s)}, {sr(sWS, 4)}, s{sR1B} offen {ld1}
        """)
        a.begin_tail()
        a(f"""
        {stub}:
        s_cmp_lg_u32 s{sDONE}, 0
        s_cbranch_scc1 {empty}
        """)
        refill_code(a, vIDX, vLEN, vW, vT + 3, sMASK)
        a(f"""
        s_cmp_eq_u64 {sr(sMASK, 2)}, 0
        s_cbranch_scc0 {back}
        s_mov_b32 s{sDONE}, 1
        {empty}:
        s_mov_b32 s{w}, 0
        s_mov_b64 exec, 0
        s_branch {issue}
        """)
        a.end_tail()

    stamp(a, 60)
    for s in range(NS):
        pop(0, s)
    a("s_mov_b64 exec, -1")
    wave_scan(a, "v_add_u32", vT)
    a(f"""
    v_mov_b32 v{vT + 1}, s{sNT}
    s_waitcnt lgkmcnt(0)
    s_barrier
    s_lshl_b64 exec, 1, 63
    ds_max_u32 v{vZERO}, v{vT + 1} offset:{MISC}
    ds_add_u32 v{vZERO}, v{vT} offset:{MISC + 4}
    """)
    early2 = OPT["k2early"] == "1"
    if not early2:
        for s in range(NS):
            pop(1, s)
    a(f"""
    s_mov_b64 exec, -1
    s_waitcnt vmcnt({(2 if early2 else 4) * NS})
    """)
    stamp(a, 61)
    global_max(a, vZ, sT)
    a(f"""
    v_rcp_f32 v{vT}, s{sT}
    s_nop 0
    v_mul_f32 v{vT}, {float(QMAX * 4)}, v{vT}
    """.replace(str(float(QMAX * 4)), "0x467f0000"))
    for i in range(8):
        a(f"""
        v_lshlrev_b32 v{vT + 2}, 16, v{vSTG + i}
        v_and_b32 v{vT + 3}, 0xffff0000, v{vSTG + i}
        v_mul_f32 v{vT + 2}, v{vT}, v{vT + 2}
        v_mul_f32 v{vT + 3}, v{vT}, v{vT + 3}
        v_cvt_pk_f16_f32 v{vSTG + i}, v{vT + 2}, v{vT + 3}
        """)
    a(f"""
    ds_write_b128 v{vSTG + 8}, {vr(vSTG, 4)} offset:{SLICE}
    ds_write_b128 v{vSTG + 9}, {vr(vSTG + 4, 4)} offset:{SLICE}
    s_waitcnt lgkmcnt(0)
    s_barrier
    ds_read_b64 {vr(vT, 2)}, v{vZERO} offset:{MISC}
    s_waitcnt lgkmcnt(0)
    v_readfirstlane_b32 s{sNT}, v{vT}
    v_readfirstlane_b32 s{sBASE}, v{vT + 1}
    s_nop 3
    s_max_u32 s{sNT}, s{sNT}, {FIX}
    s_mul_i32 s{sT}, s{sB}, {PAD2}
    s_add_u32 s{sBASE}, s{sBASE}, s{sT}
    s_add_u32 s{sBASE}, s{sBASE}, 15
    s_and_b32 s{sBASE}, s{sBASE}, -16
    s_mov_b32 s{sKT}, 0
    s_mov_b32 s{sNPREV}, 0
    s_mov_b32 s{sBPREV}, {R2}
    """)

    def copy_reads(chunks, regs, masks):
        a("s_mov_b64 exec, -1")
        for i, m in zip(chunks, masks):
            a(f"""
            s_sub_i32 s{sT}, s{sNPREV}, {i * 2048}
            v_cmp_gt_i32 {sr(m, 2)}, s{sT}, v{vT2}
            """)
        for i, r, m in zip(chunks, regs, masks):
            addr = vXA if i < 4 else vXB
            a(f"""
            s_mov_b64 exec, {sr(m, 2)}
            ds_read_b128 {vr(r, 4)}, v{addr} offset:{(i % 4) * 16384}
            """)

    def copy_stores(chunks, regs, masks):
        for i, r, m in zip(chunks, regs, masks):
            lab = a.uid("cs")
            a(f"""
            s_mov_b64 exec, {sr(m, 2)}
            s_cbranch_execz {lab}
            s_add_u32 s{sT}, s{sBPREV}, {i * 16384}
            buffer_store_dwordx4 {vr(r, 4)}, v{vX4}, {sr(sWS, 4)}, s{sT} offen {OPT['st2']}
            {lab}:
            """)

    def gathers(st, bt):
        for s in bt:
            a(f"""
            s_bfm_b64 exec, s{sW[st] + s}, 0
            v_lshrrev_b32 v{Z(s)}, 17, v{A(st, s)}
            v_and_b32 v{Z(s)}, 0x7ff8, v{Z(s)}
            ds_read_b64 {vr(Z(s), 2)}, v{Z(s)} offset:{SLICE}
            """)

    def encode(st, bt):
        for s in bt:
            z, aa, g = Z(s), A(st, s), G(st, s)
            a(f"""
            s_bfm_b64 exec, s{sW[st] + s}, 0
            v_fma_mix_f32 v{vT}, v{z}, v{g}, s{sK} op_sel_hi:[1,1,0]
            v_fma_mix_f32 v{vT + 1}, v{z}, v{g}, s{sK} op_sel:[1,0,0] op_sel_hi:[1,1,0]
            v_fma_mix_f32 v{vT + 2}, v{z + 1}, v{g}, s{sK} op_sel_hi:[1,1,0]
            v_fma_mix_f32 v{vT + 3}, v{z + 1}, v{g}, s{sK} op_sel:[1,0,0] op_sel_hi:[1,1,0]
            v_and_b32 v{g}, 0xfffff, v{aa}
            v_lshl_add_u32 v{z}, v{vT + 1}, 13, v{vT}
            v_mul_hi_u32_u24 v{g}, s{sCB}, v{g}
            v_lshl_add_u32 v{z + 1}, v{vT + 3}, 13, v{vT + 2}
            v_lshrrev_b32 v{vT}, 6, v{aa}
            v_lshl_add_u32 v{z}, v{aa}, 26, v{z}
            v_and_b32 v{aa}, 0x3fc, v{g}
            v_lshl_add_u32 v{z + 1}, v{vT}, 26, v{z + 1}
            ds_add_rtn_u32 v{g}, v{aa}, v{vEIGHT} offset:{HOFF}
            """)

    def phase_h(st):
        greedy = OPT["greedy"] == "1"
        if greedy:
            b0, b1, b2, b3 = range(0, 5), range(5, 10), range(10, 15), None
        else:
            nm = int(OPT["nmain"])
            b0, b1, b2, b3 = range(0, 5), range(5, nm - 4), range(nm - 4, nm), range(nm, 15)
        regs = [vSTG, vSTG + 4, vSTG + 8]
        lab, w0, w1, short = a.uid("h3"), a.uid("hw0"), a.uid("hw1"), a.uid("hs")
        p2 = OPT["prio2"] == "1"
        if p2:
            a("s_setprio 3")
        copy_reads([0, 1, 2], regs, sCM)
        a(f"""
        s_cmp_lg_u32 s{sNOLD}, 0
        s_cbranch_scc1 {w0}
        s_waitcnt vmcnt({2 * NS})
        {w1}:
        """)
        a.begin_tail()
        a(f"""
        {w0}:
        s_waitcnt vmcnt(0)
        s_branch {w1}
        """)
        a.end_tail()
        LAG = int(OPT["hlag"])
        if LAG:
            n = 15 if greedy else int(OPT["nmain"])
            ds = [("C", 0), ("C", 1), ("C", 2)]
            swaps = {1: ([0, 1, 2], [3, 4, 5]), 5: ([3, 4, 5], [6, 7]), 9: ([6, 7], [])}
            for s in range(n + LAG):
                if s < n:
                    gathers(st, [s])
                    ds.append(("G", s))
                if s == LAG - 1:
                    a(f"""
                    s_cmp_eq_u32 s{sW[st] + LAG}, 0
                    s_cbranch_scc1 {short}
                    """)
                if s >= LAG:
                    e = s - LAG
                    tags = [("G", e)] + ([("C", swaps[e][0][-1])] if e in swaps else [])
                    a(f"s_waitcnt lgkmcnt({len(ds) - 1 - max(ds.index(t) for t in tags)})")
                    if e in swaps:
                        copy_stores(swaps[e][0], regs, sCM)
                        if swaps[e][1]:
                            copy_reads(swaps[e][1], regs, sCM)
                            ds.extend(("C", i) for i in swaps[e][1])
                    encode(st, [e])
                    ds.append(("R", e))
                    if p2 and e in (3, 7, 10):
                        a(f"s_setprio {2 - (3, 7, 10).index(e)}")
            b0 = range(LAG)
        else:
            gathers(st, b0)
            a(f"""
            s_cmp_eq_u32 s{sW[st] + 5}, 0
            s_cbranch_scc1 {short}
            """)
            gathers(st, b1)
            a(f"s_waitcnt lgkmcnt({len(b1)})")
            copy_stores([0, 1, 2], regs, sCM)
            copy_reads([3, 4, 5], regs, sCM)
            encode(st, b0)
            if p2:
                a("s_setprio 2")
            gathers(st, b2)
            a(f"s_waitcnt lgkmcnt({len(b0) + len(b2)})")
            copy_stores([3, 4, 5], regs, sCM)
            copy_reads([6, 7], regs, sCM)
            encode(st, b1)
            if p2:
                a("s_setprio 1")
            a(f"s_waitcnt lgkmcnt({len(b1)})")
            copy_stores([6, 7], regs, sCM)
            encode(st, b2)
        if b3:
            a(f"""
            s_cmp_eq_u32 s{sW[st] + b3[0]}, 0
            s_cbranch_scc1 {lab}
            """)
            gathers(st, b3)
            a("s_waitcnt lgkmcnt(0)")
            encode(st, b3)
        a(f"""
        {lab}:
        s_mov_b64 exec, -1
        s_waitcnt lgkmcnt(0)
        s_barrier
        """)
        a.begin_tail()
        a(f"""
        {short}:
        s_waitcnt lgkmcnt(0)
        """)
        copy_stores([0, 1, 2], regs, sCM)
        copy_reads([3, 4, 5], regs, sCM)
        a("s_waitcnt lgkmcnt(0)")
        copy_stores([3, 4, 5], regs, sCM)
        copy_reads([6, 7], regs, sCM)
        encode(st, b0)
        a(f"s_waitcnt lgkmcnt({len(b0)})")
        copy_stores([6, 7], regs, sCM)
        a(f"s_branch {lab}")
        a.end_tail()

    def phase_h_first():
        bs = [range(0, 5), range(5, 10), range(10, 15)]
        for n, bt in enumerate(bs):
            a(f"s_waitcnt vmcnt({2 * NS - 10})")
            gathers(0, bt)
            for s in bt:
                pop(1, s)
            if n:
                a("s_waitcnt lgkmcnt(5)")
                encode(0, bs[n - 1])
        a("s_waitcnt lgkmcnt(5)")
        encode(0, bs[2])
        a("""
        s_mov_b64 exec, -1
        s_waitcnt lgkmcnt(0)
        s_barrier
        s_branch L_k2_afterh
        """)

    c, z4, b4, x = vSTG, vSTG + 4, vSTG + 8, vT

    def phase_p():
        lab = a.uid("p")
        a(f"""
        s_cmp_lg_u32 s{sWAVE}, 0
        s_cbranch_scc1 {lab}
        ds_read_b128 {vr(c, 4)}, v{vX4} offset:{HOFF}
        v_mov_b32 v{z4}, 0
        v_mov_b32 v{z4 + 1}, 0
        v_mov_b32 v{z4 + 2}, 0
        v_mov_b32 v{z4 + 3}, 0
        s_waitcnt lgkmcnt(0)
        """)
        prefix_core(a, c, z4, b4, x, vX4, HOFF, POFF)
        a(f"""
        s_lshl_b64 exec, 1, 63
        ds_write_b32 v{vZERO}, v{x} offset:{MISC + 16}
        s_mov_b64 exec, -1
        s_waitcnt lgkmcnt(0)
        {lab}:
        s_barrier
        """)

    def offsets_store():
        lab, ovf, back = a.uid("os"), a.uid("ovf"), a.uid("ovfback")
        a(f"""
        s_cmp_lg_u32 s{sWAVE}, 0
        s_cbranch_scc1 {lab}
        s_mov_b64 exec, -1
        s_lshl_b32 s{sQ}, s{sKT}, 8
        s_add_u32 s{sQ}, s{sQ}, s{sB}
        s_cmp_ge_u32 s{sKT}, {FIX}
        s_cbranch_scc1 {ovf}
        {back}:
        s_lshl_b32 s{sQ}, s{sQ}, 2
        s_add_u32 s{sT}, s{sQ}, {OFF2}
        """)
        for j in range(4):
            a(f"v_lshrrev_b32 v{b4 + j}, 3, v{b4 + j}")
        for j in range(4):
            a(f"v_lshl_or_b32 v{c + j}, v{c + j}, 13, v{b4 + j}")
        for j in range(4):
            a(f"buffer_store_dword v{c + j}, v{vROW}, {sr(sWS, 4)}, s{sT} offen")
            if j < 3:
                a(f"s_add_u32 s{sT}, s{sT}, {ROW2}")
        a(f"""
        v_mov_b32 v{z4}, s{sBASE}
        s_add_u32 s{sT}, s{sQ}, {DIR2}
        s_mov_b64 exec, 1
        buffer_store_dword v{z4}, v{vZERO}, {sr(sWS, 4)}, s{sT} offen
        {lab}:
        """)
        a.begin_tail()
        a(f"""
        {ovf}:
        s_mov_b64 exec, 1
        v_mov_b32 v{z4}, 1
        s_mov_b32 s{sT}, {CNT}
        buffer_atomic_add v{z4}, v{vZERO}, {sr(sWS, 4)}, s{sT} offen sc0
        s_waitcnt vmcnt(0)
        v_readfirstlane_b32 s{sQ}, v{z4}
        s_mov_b64 exec, -1
        s_nop 3
        s_add_u32 s{sQ}, s{sQ}, {FIX * NB}
        s_branch {back}
        """)
        a.end_tail()

    def phase_s(st):
        l1, nop, fin = a.uid("sa"), a.uid("sn"), a.uid("sf")
        a(f"ds_read_b32 v{vT}, v{vZERO} offset:{MISC + 16}")
        for s in range(NS):
            if s in (5, int(OPT["nmain"])):
                a(f"""
                s_cmp_eq_u32 s{sW[st] + s}, 0
                s_cbranch_scc1 {l1}
                """)
            a(f"""
            s_bfm_b64 exec, s{sW[st] + s}, 0
            ds_read_b32 v{A(st, s)}, v{A(st, s)} offset:{POFF}
            """)
        a(f"{l1}:")
        offsets_store()
        a(f"""
        s_mov_b64 exec, -1
        s_mov_b32 s{sNOLD}, s{sDONE}
        s_lshl_b32 s{sBPREV}, s{sBASE}, 3
        s_add_u32 s{sBPREV}, s{sBPREV}, {R2}
        s_cmp_lg_u32 s{sDONE}, 0
        s_waitcnt lgkmcnt(0)
        v_readfirstlane_b32 s{sNPREV}, v{vT}
        s_cbranch_scc1 {nop}
        """)

        def put(s):
            a(f"""
            s_bfm_b64 exec, s{sW[st] + s}, 0
            v_add_u32 v{A(st, s)}, v{A(st, s)}, v{G(st, s)}
            ds_write_b64 v{A(st, s)}, {vr(Z(s), 2)} offset:{SORT}
            """)
        for s in range(NS):
            if OPT["prio2"] == "1" and s in (0, 4, 8, 11):
                a(f"s_setprio {3 - (0, 4, 8, 11).index(s)}")
            put(s)
            pop(st, s)
        a(f"""
        {fin}:
        s_lshr_b32 s{sNPREV}, s{sNPREV}, 3
        s_add_u32 s{sNPREV}, s{sNPREV}, 15
        s_and_b32 s{sNPREV}, s{sNPREV}, -16
        s_add_u32 s{sBASE}, s{sBASE}, s{sNPREV}
        s_waitcnt lgkmcnt(0)
        s_barrier
        """)
        a.begin_tail()
        a(f"{nop}:")
        for s in range(NS):
            if s in (5, 10):
                a(f"""
                s_cmp_eq_u32 s{sW[st] + s}, 0
                s_cbranch_scc1 {fin}
                """)
            put(s)
            a(f"s_mov_b32 s{sW[st] + s}, 0")
        a(f"s_branch {fin}")
        a.end_tail()

    if early2:
        stamp(a, 4, sKT)
        phase_h_first()
    a("L_k2_loop:")
    for st in range(2):
        stamp(a, 4, sKT)
        phase_h(st)
        if st == 0:
            a("L_k2_afterh:")
        stamp(a, 5, sKT)
        phase_p()
        stamp(a, 6, sKT)
        phase_s(st)
        a(f"""
        s_add_u32 s{sKT}, s{sKT}, 1
        s_cmp_ge_u32 s{sKT}, s{sNT}
        """)
        a("s_cbranch_scc1 L_k2_final" if st == 0 else "s_cbranch_scc0 L_k2_loop")
    a("L_k2_final:")
    stamp(a, 1)
    regs = [vSTG, vSTG + 4, vSTG + 8] + [vZ + 4 * i for i in range(5)]
    masks = [32 + 2 * i for i in range(8)]
    copy_reads(list(range(8)), regs, masks)
    a("s_waitcnt lgkmcnt(0)")
    copy_stores(list(range(8)), regs, masks)
    stamp_flush(a, 1, sWS, sWAVE)
    a("""
    L_k2_end:
    s_endpgm
    """)
    a.flush_tail()
    a("L_k2_last:")
    return name, nv, 80, LDS


def k3(a):
    name = "accum_out_kernel"
    kernel_header(a, name)
    D = int(OPT["d3"])
    ACC, MISC = 0, 1024
    LDS = 131072
    sWAVE, sB = 3, 4
    sWS, sM, sDI, sOUT = 8, 12, 16, 20
    sMASK, sT, sU, sL, sLIVE, sR2 = 24, 26, 27, 28, 29, 30
    sNE, sQB, sPASS, sBAS, sUNIT, sDONE = 31, 32, 33, 34, 35, 5
    sC, sP, sSEL = 36, 38, 6
    sW = 40
    sWD, sWU, sC8, sWX = 56, 64, 72, 76
    vLANE, vZERO, vIDX, vLEN, vIDX2, vLEN2, vW, vQ2 = 1, 2, 3, 4, 5, 6, 7, 8
    vT = 10
    vZ = 20
    vM = vZ + 2 * D
    vS = vM + 8
    vRR = vS + 16
    vFA = vRR + 16
    vDI = vFA + 16
    vE8 = vDI + 4
    vRB = vE8 + 4
    nrb = 2
    nv = vRB + 8 * nrb
    Z = lambda i: vZ + 2 * i
    EPOCH = 512 // D

    a(f"""
    s_cmp_ge_u32 s2, {NB}
    s_cbranch_scc1 L_k3_end
    """)
    if OPT["pf3"] == "1":
        code_prefetch(a, "accum_out_kernel", "L_text_end", 16384, nv, 76)
        nv += 1
    a(f"""
    s_load_dwordx2 s[6:7], s[0:1], 104
    s_load_dwordx2 s[36:37], s[0:1], 0
    s_load_dwordx2 s[38:39], s[0:1], 24
    s_load_dwordx2 s[40:41], s[0:1], 88
    s_load_dwordx2 s[42:43], s[0:1], 40
    s_load_dwordx8 s[44:51], s[0:1], 56
    v_lshrrev_b32 v{vT}, 6, v0
    v_and_b32 v{vLANE}, 63, v0
    v_readfirstlane_b32 s{sWAVE}, v{vT}
    s_and_b32 s{sB}, s2, 7
    s_lshl_b32 s{sB}, s{sB}, 5
    s_lshr_b32 s{sT}, s2, 3
    s_add_u32 s{sB}, s{sB}, s{sT}
    v_mov_b32 v{vZERO}, 0
    v_and_b32 v{vQ2}, 15, v0
    v_lshl_add_u32 v{vQ2}, v{vT}, 4, v{vQ2}
    v_bfe_u32 v{vT + 1}, v0, 4, 2
    v_lshl_add_u32 v{vQ2}, v{vT + 1}, 8, v{vQ2}
    v_add_u32 v{vQ2}, 0x400, v{vQ2}
    s_mov_b32 s{sR2}, {R2}
    s_mov_b32 s{sQB}, 0
    s_waitcnt lgkmcnt(0)
    """)
    stamp(a, 0)
    srd(a, sWS, 6, WS_BYTES)

    def desc_loads():
        a(f"""
        v_add_lshl_u32 v{vT}, s{sQB}, v0, 2
        v_add_lshl_u32 v{vT + 1}, s{sQB}, v{vQ2}, 2
        s_mul_i32 s{sT}, s{sB}, {ROW2}
        s_add_u32 s{sT}, s{sT}, {OFF2}
        s_mov_b32 s{sU}, {DIR2}
        buffer_load_dword v{vLEN}, v{vT}, {sr(sWS, 4)}, s{sT} offen
        buffer_load_dword v{vIDX}, v{vT}, {sr(sWS, 4)}, s{sU} offen
        buffer_load_dword v{vLEN2}, v{vT + 1}, {sr(sWS, 4)}, s{sT} offen
        buffer_load_dword v{vIDX2}, v{vT + 1}, {sr(sWS, 4)}, s{sU} offen
        """)

    def desc_build():
        a(f"""
        v_add_u32 v{vT}, s{sQB}, v0
        v_add_u32 v{vT + 1}, s{sQB}, v{vQ2}
        v_cmp_gt_u32 vcc, s{sNE}, v{vT}
        v_cmp_gt_u32 {sr(sMASK, 2)}, s{sNE}, v{vT + 1}
        s_mov_b32 s{sDONE}, 0
        s_nop 0
        v_cndmask_b32 v{vLEN}, 0, v{vLEN}, vcc
        v_cndmask_b32 v{vLEN2}, 0, v{vLEN2}, {sr(sMASK, 2)}
        v_and_b32 v{vT}, 0xffff, v{vLEN}
        v_and_b32 v{vT + 1}, 0xffff, v{vLEN2}
        v_lshrrev_b32 v{vLEN}, 16, v{vLEN}
        v_lshrrev_b32 v{vLEN2}, 16, v{vLEN2}
        v_add_u32 v{vIDX}, v{vIDX}, v{vT}
        v_add_u32 v{vIDX2}, v{vIDX2}, v{vT + 1}
        v_min_u32 v{vT}, {SEG}, v{vLEN}
        v_cmp_lt_u32 {sr(sMASK, 2)}, 0, v{vLEN}
        v_lshl_or_b32 v{vW}, v{vIDX}, 6, v{vT}
        s_nop 3
        """)

    def pop(i):
        back, stub, empty, issue = a.uid("pb"), a.uid("pr"), a.uid("pe"), a.uid("pi")
        a(f"""
        s_cmp_eq_u64 {sr(sMASK, 2)}, 0
        s_cbranch_scc1 {stub}
        {back}:
        s_ff1_i32_b64 s{sL}, {sr(sMASK, 2)}
        s_bitset0_b64 {sr(sMASK, 2)}, s{sL}
        v_readlane_b32 s{sW + i}, v{vW}, s{sL}
        s_lshr_b32 s{sT}, s{sW + i}, 6
        s_bfm_b64 exec, s{sW + i}, 0
        v_add_lshl_u32 v{Z(i)}, s{sT}, v{vLANE}, 3
        {issue}:
        buffer_load_dwordx2 {vr(Z(i), 2)}, v{Z(i)}, {sr(sWS, 4)}, s{sR2} offen {OPT['ld2']}
        """)
        a.begin_tail()
        a(f"""
        {stub}:
        s_cmp_lg_u32 s{sDONE}, 0
        s_cbranch_scc1 {empty}
        """)
        refill_code(a, vIDX, vLEN, vW, vT + 8, sMASK, pend=((vIDX, vLEN), (vIDX2, vLEN2)))
        a(f"""
        s_cmp_eq_u64 {sr(sMASK, 2)}, 0
        s_cbranch_scc0 {back}
        s_mov_b32 s{sDONE}, 1
        {empty}:
        s_mov_b32 s{sW + i}, 0
        s_mov_b64 exec, 0
        s_branch {issue}
        """)
        a.end_tail()

    def process(i):
        z, t = Z(i), vT
        a(f"""
        s_bfm_b64 exec, s{sW + i}, 0
        v_perm_b32 v{t + 4}, v{z + 1}, v{z}, s{sSEL}
        v_and_b32 v{t}, 0x1fff, v{z}
        v_bfe_u32 v{t + 1}, v{z}, 13, 13
        v_and_b32 v{t + 4}, 0xfcfc, v{t + 4}
        v_and_b32 v{t + 2}, 0x1fff, v{z + 1}
        v_bfe_u32 v{t + 3}, v{z + 1}, 13, 13
        v_add_u32 v{t + 4}, v{t + 4}, v{t + 4}
        v_lshl_add_u64 {vr(t, 2)}, {vr(t, 2)}, 0, {sr(sC, 2)}
        v_lshl_add_u64 {vr(t + 2, 2)}, {vr(t + 2, 2)}, 0, {sr(sC, 2)}
        ds_add_u64 v{t + 4}, {vr(t, 2)} offset:{ACC}
        ds_add_u64 v{t + 4}, {vr(t + 2, 2)} offset:{ACC + 512}
        """)

    def zero_acc():
        a(f"""
        v_mov_b32 v{vT}, 0
        v_mov_b32 v{vT + 1}, 0
        v_mov_b32 v{vT + 2}, 0
        v_mov_b32 v{vT + 3}, 0
        v_lshlrev_b32 v{vT + 4}, 4, v{vLANE}
        s_lshl_b32 s{sT}, s{sWAVE}, 11
        v_add_u32 v{vT + 4}, s{sT}, v{vT + 4}
        v_add_u32 v{vT + 5}, 0x10000, v{vT + 4}
        ds_write_b128 v{vT + 4}, {vr(vT, 4)} offset:{ACC}
        ds_write_b128 v{vT + 4}, {vr(vT, 4)} offset:{ACC + 32768}
        ds_write_b128 v{vT + 5}, {vr(vT, 4)} offset:{ACC}
        ds_write_b128 v{vT + 5}, {vr(vT, 4)} offset:{ACC + 32768}
        ds_write_b32 v{vZERO}, v{vZERO} offset:{MISC}
        """)

    desc_loads()
    srd(a, sM, 36, E * 8)
    srd(a, sDI, 38, E * 2)
    srd(a, sOUT, 40, E * 8)
    a(f"""
    s_add_u32 s6, s6, {CNT}
    s_addc_u32 s7, s7, 0
    s_load_dword s{sNE}, s[6:7], 0
    s_load_dwordx8 {sr(sWD, 8)}, s[48:49], 0
    s_load_dwordx8 {sr(sWU, 8)}, s[50:51], 0
    s_load_dwordx4 {sr(sC8, 4)}, s[42:43], 0
    s_mov_b64 s[92:93], s[44:45]
    s_mov_b64 s[94:95], s[46:47]
    """)
    for i in range(D):
        a(f"v_mov_b32 v{Z(i)}, 0")
    for i in range(16):
        a(f"v_mov_b32 v{vFA + i}, 0")
    zero_acc()
    a(f"""
    s_mul_i32 s{sT}, s{sB}, {SPAN}
    v_mov_b32 v{vT + 8}, 0x8000000
    v_add_u32 v{vE8}, s{sT}, v0
    v_add_u32 v{vE8 + 1}, 0x400, v{vE8}
    v_add_u32 v{vE8 + 2}, 0x800, v{vE8}
    v_add_u32 v{vE8 + 3}, 0xc00, v{vE8}
    v_cmp_gt_u32 vcc, {SPAN - 3072}, v0
    s_mov_b32 s{sC}, 0xfffff000
    s_mov_b32 s{sC + 1}, 0xffffefff
    v_cndmask_b32 v{vE8 + 3}, v{vT + 8}, v{vE8 + 3}, vcc
    s_lshr_b32 s{sBAS}, s{sWAVE}, 2
    s_lshl_b32 s{sBAS}, s{sBAS}, 1
    s_add_u32 s{sBAS}, s{sBAS}, 1
    s_mov_b32 s{sPASS}, 0
    s_waitcnt lgkmcnt(0)
    s_mov_b32 s{sSEL}, 0x0c0c0703
    s_add_u32 s{sNE}, s{sNE}, {FIX * NB}
    s_waitcnt vmcnt(0)
    """)
    stamp(a, 4)
    desc_build()
    for i in range(D):
        pop(i)
    def side_loads():
        a(f"""
        s_mov_b64 exec, -1
        v_lshlrev_b32 v{vT + 8}, 4, v{vLANE}
        s_mov_b32 s{sT}, {MAXS}
        buffer_load_dwordx4 {vr(vS, 4)}, v{vT + 8}, {sr(sWS, 4)}, s{sT} offen
        """)
        for r in range(4):
            a(f"v_lshlrev_b32 v{vDI + r}, 1, v{vE8 + r}")
        for r in range(4):
            a(f"buffer_load_ushort v{vDI + r}, v{vDI + r}, {sr(sDI, 4)}, 0 offen")
        for r in range(4):
            a(f"v_lshlrev_b32 v{vE8 + r}, 3, v{vE8 + r}")
        for r in range(4):
            a(f"buffer_load_dwordx2 {vr(vM + 2 * r, 2)}, v{vE8 + r}, {sr(sM, 4)}, 0 offen {OPT['ld_m']}")

    late = OPT["late3"] == "1"
    if OPT["prio3"] == "1":
        a("s_setprio 3")
    if late:
        a("s_barrier")
        side_loads()
    else:
        side_loads()
        a("s_barrier")
    stamp(a, 7)
    for i in range(D):
        a(f"s_waitcnt vmcnt({D - 1 + 9})")
        process(i)
        pop(i)
    a(f"""
    L_k3_loop:
    s_add_u32 s{sPASS}, s{sPASS}, 1
    s_cmp_eq_u32 s{sPASS}, s{sBAS}
    s_cbranch_scc1 L_k3_basis
    L_k3_basisback:
    """)
    if OPT["prio3"] == "1":
        n = 80 // D
        for p, at in ((2, n * 3 // 10), (1, n * 6 // 10), (0, n * 8 // 10)):
            lab = a.uid("prio")
            a(f"""
            s_cmp_lg_u32 s{sPASS}, {at}
            s_cbranch_scc1 {lab}
            s_setprio {p}
            {lab}:
            """)
    a(f"""
    s_cmp_eq_u32 s{sW}, 0
    s_cbranch_scc1 L_k3_drained
    s_cmp_ge_u32 s{sPASS}, {EPOCH}
    s_cbranch_scc1 L_k3_full
    L_k3_pass:
    """)
    for i in range(D):
        a(f"s_waitcnt vmcnt({D - 1})")
        process(i)
        pop(i)
    a(f"""
    s_branch L_k3_loop
    L_k3_drained:
    s_mov_b64 exec, -1
    s_add_u32 s{sQB}, s{sQB}, 2048
    s_cmp_lt_u32 s{sQB}, s{sNE}
    s_cbranch_scc1 L_k3_next
    s_sub_u32 s{sQB}, s{sQB}, 2048
    s_cmp_lt_u32 s{sPASS}, s{sBAS}
    s_cbranch_scc0 L_k3_join
    s_mov_b32 s{sBAS}, s{sPASS}
    s_branch L_k3_basis
    L_k3_join:
    """)
    stamp(a, 8)
    a(f"""
    s_waitcnt lgkmcnt(0)
    s_barrier
    """)
    stamp(a, 9)

    a.begin_tail()
    a("L_k3_next:")
    desc_loads()
    a("s_waitcnt vmcnt(0)")
    desc_build()
    a(f"""
    s_branch L_k3_prime
    L_k3_full:
    s_mov_b64 exec, -1
    v_mov_b32 v{vT}, 1
    ds_write_b32 v{vZERO}, v{vT} offset:{MISC}
    s_branch L_k3_join
    """)
    a.end_tail()

    def fold(rs):
        for r in rs:
            t = vRB + 4 * r
            a(f"""
            v_lshrrev_b32 v{vT}, 3, v{vE8 + r}
            v_add_u32 v{vT + 1}, {TOPK}, v{vT}
            v_add_u32 v{vT}, {TOPK << 6}, v{vT}
            v_and_b32 v{vT + 1}, 63, v{vT + 1}
            v_and_b32 v{vT}, 0xfc0, v{vT}
            v_lshl_or_b32 v{vT}, v{vT}, 2, v{vT + 1}
            v_lshlrev_b32 v{vT}, 3, v{vT}
            ds_read_b64 {vr(t, 2)}, v{vT} offset:{ACC}
            ds_read_b64 {vr(t + 2, 2)}, v{vT} offset:{ACC + 512}
            """)
        a(f"""
        ds_read_b32 v{vT + 4}, v{vZERO} offset:{MISC}
        s_waitcnt lgkmcnt(0)
        v_readfirstlane_b32 s{sLIVE}, v{vT + 4}
        """)
        for r in rs:
            t = vRB + 4 * r
            a(f"""
            v_lshrrev_b32 v{vT}, 31, v{t}
            v_lshrrev_b32 v{vT + 1}, 31, v{t + 2}
            v_add_u32 v{t + 1}, v{t + 1}, v{vT}
            v_add_u32 v{t + 3}, v{t + 3}, v{vT + 1}
            """)
            for j in range(4):
                a(f"v_cvt_f32_i32 v{t + j}, v{t + j}")
            for j in range(4):
                a(f"v_add_f32 v{vFA + 4 * r + j}, v{vFA + 4 * r + j}, v{t + j}")

    def wpair(sw):
        a(f"""
        s_lshl_b32 s{sP}, s{sw}, 16
        s_and_b32 s{sP + 1}, s{sw}, 0xffff0000
        """)

    def pkmac(first, dst, src):
        base, hi = src & ~1, src & 1
        if first:
            a(f"v_pk_mul_f32 {vr(dst, 2)}, {vr(base, 2)}, {sr(sP, 2)} op_sel:[{hi},0] op_sel_hi:[{hi},1]")
        else:
            a(f"v_pk_fma_f32 {vr(dst, 2)}, {vr(base, 2)}, {sr(sP, 2)}, {vr(dst, 2)} op_sel:[{hi},0,0] op_sel_hi:[{hi},1,1]")

    def epilogue(rs):
        for k in range(4):
            for jp in range(2):
                wpair(sWD + 2 * k + jp)
                for r in rs:
                    pkmac(k == 0, vRB + 4 * r + 2 * jp, vFA + 4 * r + k)
        for r in rs:
            for j in range(4):
                a(f"v_mul_f32 v{vRB + 4 * r + j}, v{vRB + 4 * r + j}, v{vS + 4 * r + j}")
        for k in range(4):
            for jp in range(2):
                wpair(sWU + 2 * k + jp)
                for r in rs:
                    pkmac(k == 0, vFA + 4 * r + 2 * jp, vRB + 4 * r + k)
        for r in rs:
            t, m = vRB + 4 * r, vM + 2 * r
            a(f"""
            v_lshlrev_b32 v{t}, 16, v{m}
            v_and_b32 v{t + 1}, 0xffff0000, v{m}
            v_lshlrev_b32 v{t + 2}, 16, v{m + 1}
            v_and_b32 v{t + 3}, 0xffff0000, v{m + 1}
            """)
            for j in range(4):
                a(f"v_fmac_f32 v{t + j}, v{vFA + 4 * r + j}, v{vRR + 4 * r + j}")
            a(f"""
            v_cvt_pk_bf16_f32 v{t}, v{t}, v{t + 1}
            v_cvt_pk_bf16_f32 v{t + 1}, v{t + 2}, v{t + 3}
            buffer_store_dwordx2 {vr(t, 2)}, v{vE8 + r}, {sr(sOUT, 4)}, 0 offen {OPT['st_out']}
            """)

    a(f"""
    s_cmp_eq_u32 s{sWAVE}, 0
    s_cbranch_scc1 L_k3_epi4
    """)
    for rs, pre in (([0, 1, 2], ""), ([0, 1, 2, 3], "L_k3_epi4:")):
        if pre:
            a(pre)
        fold(rs)
        a(f"""
        s_cmp_lg_u32 s{sLIVE}, 0
        s_cbranch_scc1 L_k3_again
        """)
        epilogue(rs)
        stamp_flush(a, 2, sWS, sWAVE)
        a("s_endpgm")
    a(f"""
    L_k3_again:
    s_barrier
    """)
    zero_acc()
    a(f"""
    s_mov_b32 s{sPASS}, s{sBAS}
    s_waitcnt lgkmcnt(0)
    s_barrier
    s_branch L_k3_basisback
    L_k3_prime:
    """)
    for i in range(D):
        pop(i)
    a("s_branch L_k3_basisback")

    def basis(rs):
        x = lambda n, kp: vRB + 8 * n + 2 * kp
        for n, r in enumerate(rs):
            a(f"v_lshlrev_b32 v{vDI + r}, 16, v{vDI + r}")
        for kp in range(4):
            wpair(sC8 + kp)

            def rnd():
                for n in range(len(rs)):
                    a(f"v_cvt_pk_bf16_f32 v{x(n, kp)}, v{x(n, kp)}, v{x(n, kp) + 1}")
                for n in range(len(rs)):
                    a(f"v_and_b32 v{x(n, kp) + 1}, 0xffff0000, v{x(n, kp)}")
                for n in range(len(rs)):
                    a(f"v_lshlrev_b32 v{x(n, kp)}, 16, v{x(n, kp)}")

            def each(op):
                for n in range(len(rs)):
                    for h in range(2):
                        a(op.format(v=f"v{x(n, kp) + h}"))
            for n, r in enumerate(rs):
                d = vDI + r
                hi = d & 1
                a(f"v_pk_add_f32 {vr(x(n, kp), 2)}, {vr(d & ~1, 2)}, {sr(sP, 2)} op_sel:[{hi},0] op_sel_hi:[{hi},1] neg_lo:[0,1] neg_hi:[0,1]")
            rnd()
            each("v_mul_f32 {v}, {v}, {v}")
            rnd()
            each("v_mul_f32 {v}, 0xc1200000, {v}")
            rnd()
            each("v_mul_f32 {v}, 0x3fb8aa3b, {v}")
            each("v_exp_f32 {v}, {v}")
            a("s_nop 0")
            rnd()
        for dst, ptr in ((vS, 94), (vRR, 92)):
            a(f"""
            s_load_dwordx16 {sr(sWX, 16)}, s[{ptr}:{ptr + 1}], 0
            s_waitcnt lgkmcnt(0)
            """)
            for k in range(8):
                for jp in range(2):
                    wpair(sWX + 2 * k + jp)
                    for n, r in enumerate(rs):
                        pkmac(k == 0, dst + 4 * r + 2 * jp, vRB + 8 * n + k)
        for r in rs:
            for j in range(4):
                a(f"v_mul_f32 v{vS + 4 * r + j}, v{vT + 9}, v{vS + 4 * r + j}")
            for jp in range(2):
                y = vRR + 4 * r + 2 * jp
                a(f"""
                v_cvt_pk_bf16_f32 v{y}, v{y}, v{y + 1}
                v_and_b32 v{y + 1}, 0xffff0000, v{y}
                v_lshlrev_b32 v{y}, 16, v{y}
                """)

    a(f"""
    L_k3_basis:
    s_mov_b64 exec, -1
    s_waitcnt vmcnt({D})
    """)
    stamp(a, 5)
    global_max(a, vS, sUNIT)
    a(f"""
    v_mov_b32 v{vT + 9}, s{sUNIT}
    v_mul_f32 v{vT + 9}, 0x39808081, v{vT + 9}
    """)
    basis([0, 1])
    a(f"""
    s_cmp_eq_u32 s{sWAVE}, 0
    s_cbranch_scc1 L_k3_basis23
    """)
    basis([2])
    stamp(a, 6)
    a("""
    s_branch L_k3_basisback
    L_k3_basis23:
    """)
    basis([2, 3])
    stamp(a, 6)
    a("""
    s_branch L_k3_basisback
    L_k3_end:
    s_endpgm
    """)
    a.flush_tail()
    a("L_text_end:")
    return name, nv, 96, LDS


HEADER = """; out = m + (((A @ w_down) * (rbf @ w_sbf)) @ w_up) * (rbf @ w_rbf),  A[e] = sum over idx_out == e of cos(f * angle) * m[idx_in]
"""


def build():
    a = Asm()
    ks = [k1(a), k2(a), k3(a)]
    out = HEADER
    for name, nv, ns, lds in ks:
        out += f"; @launch kernel={name} grid=({NB},1,1) block=(1024,1,1) lds={lds}\n"
    out += '.amdgcn_target "amdgcn-amd-amdhsa--gfx950"\n.text\n'
    out += a.text()
    out += '.section .rodata,"a"\n'
    for name, nv, ns, lds in ks:
        assert nv <= (127 if OPT["prof"] else 128), (name, nv)
        out += kernel_desc(name, 128 if OPT["prof"] else nv, 102 if OPT["prof"] else ns)
    return out


if __name__ == "__main__":
    path = sys.argv[1]
    for kv in sys.argv[2:]:
        k, v = kv.split("=")
        OPT[k] = v.replace("+", " ")
    open(path, "w").write(build())
```

```python
import sys
from asmlib import Asm, vr, sr, srd, wave_scan, kernel_header, kernel_desc, code_prefetch

E = 800000
T = 12800000
NB = 256
SPAN = 3125
CB4 = 4 * 1374390
N1 = 13312
DYN0 = 3 * NB * N1
NGRP = (T - DYN0) // 4096
NLAST = 3 * 4096
assert DYN0 + NGRP * 4096 == T
RT = DYN0 + NB * NLAST

R1A = 0
R1B = RT * 4
ROW1 = 4096 + 128
OFF1 = RT * 6
CNT = OFF1 + NB * ROW1
MAXS = CNT + 1024
DIR2 = MAXS + 1024
ROW2 = 65536 + 128
OFF2 = DIR2 + 65536
R2 = OFF2 + NB * ROW2
WS_BYTES = 268435456
assert OFF1 % 128 == 0 and R2 % 128 == 0 and OFF2 % 128 == 0
assert R2 + (1 << 27) <= 240000000
PAD2 = 14592
FIX = 5
NS = 15
SEG = 63
MAGIC = 0x4C001000
TOPK = 0x13
QMAX = 4080
MAXFLOOR = 0x0880

OPT = dict(ld_in="nt", st1="sc0 sc1", ld1="", st2="sc0 sc1", ld2="", ld_m="", st_out="", prof="", d3="5", k1early="0",
           k2early="1", greedy="0", prio3="1", late3="1", pf1="1", pf2="0", pf3="0", tlb="0", k1thr="", prio2="1", prio1="0", clpos="1", r3="128", hlag="0", mpos="2", nmain="14", cosr="1", st_off="", share3="24,18,13,9", basrev="0", basstep="2", bas0="1")
PROF = 240000000
VPROF = 127


def stamp(a, i, dyn=None):
    if not OPT["prof"]:
        return
    a("""
    s_memrealtime s[98:99]
    s_waitcnt lgkmcnt(0)
    """)
    if dyn is None:
        a(f"v_writelane_b32 v{VPROF}, s98, {i}")
    else:
        a(f"""
        s_lshl_b32 s99, s{dyn}, 2
        s_add_u32 m0, s99, {i}
        s_nop 0
        v_writelane_b32 v{VPROF}, s98, m0
        """)


def stamp_flush(a, kidx, sWS, sWAVE):
    if not OPT["prof"]:
        return
    stamp(a, 2)
    a("s_waitcnt vmcnt(0)")
    stamp(a, 3)
    lab = a.uid("pf")
    a(f"""
    s_mov_b64 exec, -1
    s_and_b32 s98, s{sWAVE}, 7
    s_cmp_lg_u32 s98, 0
    s_cbranch_scc1 {lab}
    s_lshr_b32 s98, s{sWAVE}, 3
    s_lshl_b32 s99, s2, 1
    s_add_u32 s98, s98, s99
    s_lshl_b32 s98, s98, 8
    s_add_u32 s98, s98, {PROF + kidx * 512 * 256}
    v_and_b32 v0, 63, v0
    v_lshlrev_b32 v0, 2, v0
    buffer_store_dword v{VPROF}, v0, s[{sWS}:{sWS + 3}], s98 offen
    {lab}:
    """)


def slice_loads(a, sM, sROW, sT, vX4, vTMP, dst):
    a(f"""
    s_and_b32 s{sT}, s{sROW}, -2
    s_lshl_b32 s{sT}, s{sT}, 3
    v_mov_b32 v{vTMP}, 0x40000000
    v_cmp_gt_u32 vcc, {(SPAN + 1) // 2 - 1024}, v0
    buffer_load_dwordx4 {vr(dst, 4)}, v{vX4}, {sr(sM, 4)}, s{sT} offen {OPT['ld_m']}
    s_add_u32 s{sT}, s{sT}, 16384
    v_cndmask_b32 v{vTMP}, v{vTMP}, v{vX4}, vcc
    buffer_load_dwordx4 {vr(dst + 4, 4)}, v{vTMP}, {sr(sM, 4)}, s{sT} offen {OPT['ld_m']}
    """)


def prefix_core(a, c, z, b, x, vX4, HOFF, POFF):
    a(f"""
    ds_write_b128 v{vX4}, {vr(z, 4)} offset:{HOFF}
    v_add_u32 v{b + 2}, v{c}, v{c + 1}
    v_add_u32 v{b + 3}, v{b + 2}, v{c + 2}
    v_add_u32 v{x + 1}, v{b + 3}, v{c + 3}
    v_mov_b32 v{x}, v{x + 1}
    """)
    wave_scan(a, "v_add_u32", x)
    a(f"""
    v_sub_u32 v{b}, v{x}, v{x + 1}
    v_add_u32 v{b + 1}, v{b}, v{c}
    v_add_u32 v{b + 2}, v{b}, v{b + 2}
    v_add_u32 v{b + 3}, v{b}, v{b + 3}
    ds_write_b128 v{vX4}, {vr(b, 4)} offset:{POFF}
    """)


def global_max(a, v4, sDST):
    a(f"""
    v_max3_u32 v{v4}, v{v4}, v{v4 + 1}, v{v4 + 2}
    v_max_u32 v{v4}, v{v4}, v{v4 + 3}
    """)
    wave_scan(a, "v_max_u32", v4)
    a(f"""
    s_nop 0
    v_readlane_b32 s{sDST}, v{v4}, 63
    s_nop 3
    s_max_u32 s{sDST}, s{sDST}, {MAXFLOOR}
    s_lshl_b32 s{sDST}, s{sDST}, 16
    """)


def k1(a):
    name = "part_in_kernel"
    kernel_header(a, name)
    HOFF, POFF, MISC, BUF = 0, 1024, 2048, 2176
    BUFB = BUF + N1 * 4
    sIN, sOUT, sANG, sWS, sM = 12, 16, 20, 24, 40
    sWAVE, sCB, sT, sA, sB, sU, sPOS = 3, 28, 29, 30, 31, 36, 37
    sTI = [32, 33, 34]
    sCL, sN, sG, sDBG, sLB = 47, 48, 49, 50, 35
    vX4, vX4b, vX2, vTI, vTA, vFOUR, vF = 1, 2, 3, 4, 5, 6, 7
    sets = []
    base = 8
    for s in range(2):
        sets.append(dict(i=base, o=base + 14, g=base + 28))
        base += 36
    vRANK = base
    vROW = vRANK + 13
    vSTG = vRANK + 14
    vC = vSTG + 20
    vCL = sets[0]['i'] + 13
    vZERO = sets[1]['i'] + 13
    nv = vC + 4
    ld = OPT["ld_in"]
    a(f"""
    s_cmp_ge_u32 s2, {NB}
    s_cbranch_scc1 L_k1_end
    """)
    if OPT["pf1"] == "1":
        code_prefetch(a, "part_in_kernel", "L_text_end", 57344, nv, 40)
        nv += 1
    a(f"""
    s_load_dwordx4 s[4:7], s[0:1], 8
    s_load_dwordx2 s[8:9], s[0:1], 32
    s_load_dwordx2 s[10:11], s[0:1], 104
    s_load_dwordx2 s[38:39], s[0:1], 0
    s_load_dwordx2 s[44:45], s[0:1], 48
    s_load_dwordx2 {sr(sDBG, 2)}, s[0:1], 96
    v_lshrrev_b32 v{vFOUR}, 6, v0
    v_lshlrev_b32 v{vX4}, 4, v0
    v_readfirstlane_b32 s{sWAVE}, v{vFOUR}
    v_add_u32 v{vX4b}, 0x10000, v{vX4}
    v_lshlrev_b32 v{vX2}, 3, v0
    v_lshlrev_b32 v{vTI}, 2, v0
    v_lshlrev_b32 v{vTA}, 1, v0
    v_mov_b32 v{vSTG}, 0
    v_mov_b32 v{vZERO}, 0
    s_mov_b32 s{sCB}, {CB4}
    v_mov_b32 v{vFOUR}, 4
    v_mul_u32_u24 v{vROW}, {4 * ROW1}, v0
    s_mov_b32 s{sTI[0]}, s2
    s_add_u32 s{sTI[1]}, s2, 256
    s_add_u32 s{sTI[2]}, s2, 512
    s_mul_i32 s{sLB}, s2, {NLAST}
    s_add_u32 s{sLB}, s{sLB}, {DYN0}
    s_mov_b32 s{sN}, 0
    s_waitcnt lgkmcnt(0)
    s_load_dword s46, s[44:45], 0
    """)
    stamp(a, 0)
    srd(a, sIN, 4, T * 4)
    srd(a, sOUT, 6, T * 4)
    srd(a, sANG, 8, T * 2)
    srd(a, sWS, 10, WS_BYTES)
    srd(a, sM, 38, E * 8)

    def loads(st, g):
        if g < 3:
            a(f"""
            buffer_load_dwordx4 {vr(st['i'] + 4 * g, 4)}, v{vX4}, {sr(sIN, 4)}, s{sA} offen {ld}
            buffer_load_dwordx4 {vr(st['o'] + 4 * g, 4)}, v{vX4}, {sr(sOUT, 4)}, s{sA} offen {ld}
            buffer_load_dwordx2 {vr(st['g'] + 2 * g, 2)}, v{vX2}, {sr(sANG, 4)}, s{sB} offen {ld}
            """)
        else:
            a(f"""
            buffer_load_dword v{st['i'] + 12}, v{vTI}, {sr(sIN, 4)}, s{sA} offen {ld}
            buffer_load_dword v{st['o'] + 12}, v{vTI}, {sr(sOUT, 4)}, s{sA} offen {ld}
            buffer_load_ushort v{st['g'] + 6}, v{vTA}, {sr(sANG, 4)}, s{sB} offen {ld}
            """)

    def load_group(k, g):
        a(f"""
        s_mul_i32 s{sB}, s{sTI[k]}, {N1 * 2}
        s_add_u32 s{sB}, s{sB}, {g * 8192}
        s_lshl_b32 s{sA}, s{sB}, 1
        """)
        loads(sets[k % 2], g)

    def claim_issue():
        lab = a.uid("ci")
        a(f"""
        s_cmp_lg_u32 s{sWAVE}, 0
        s_cbranch_scc1 {lab}
        s_mov_b32 s{sCL}, 1
        s_atomic_add s{sCL}, {sr(sDBG, 2)}, 0 glc
        {lab}:
        """)

    def claim_publish(n):
        lab = a.uid("cp")
        a(f"""
        s_cmp_lg_u32 s{sWAVE}, 0
        s_cbranch_scc1 {lab}
        v_mov_b32 v{vCL}, s{sCL}
        ds_write_b32 v{vZERO}, v{vCL} offset:{MISC + 4 + 4 * n}
        s_waitcnt lgkmcnt(0)
        {lab}:
        """)

    def claim_read(n):
        a(f"ds_read_b32 v{vCL}, v{vZERO} offset:{MISC + 4 + 4 * n}")

    def claimed_loads(g):
        r3 = int(OPT["r3"])
        r2 = NGRP - NB - r3
        assert r3 <= r2 <= NB
        if g == 0:
            a(f"""
            v_readfirstlane_b32 s{sG}, v{vCL}
            s_mov_b32 s{sN}, 1
            s_cmp_lt_u32 s{sG}, {r3}
            s_addc_u32 s{sN}, s{sN}, 0
            s_cmp_lt_u32 s{sG}, {r2}
            s_addc_u32 s{sN}, s{sN}, 0
            s_min_u32 s{sT}, s{sG}, {r3}
            s_min_u32 s{sU}, s{sG}, {r2}
            s_add_u32 s{sG}, s{sG}, s{sT}
            s_add_u32 s{sG}, s{sG}, s{sU}
            """)
        a(f"""
        s_add_u32 s{sB}, s{sG}, {g}
        s_cmp_gt_u32 s{sN}, {g}
        s_cselect_b32 s{sB}, s{sB}, {NGRP}
        s_lshl_b32 s{sB}, s{sB}, 13
        s_add_u32 s{sB}, s{sB}, {DYN0 * 2}
        s_lshl_b32 s{sA}, s{sB}, 1
        """)
        loads(sets[1], g)

    for g in range(4):
        load_group(0, g)
    a(f"""
    s_cmp_lg_u32 s{sWAVE}, 0
    s_cbranch_scc1 L_k1_noinit
    v_mov_b32 v{vSTG + 1}, 0
    v_mov_b32 v{vSTG + 2}, 0
    v_mov_b32 v{vSTG + 3}, 0
    ds_write_b128 v{vX4}, {vr(vSTG, 4)} offset:{HOFF}
    ds_write_b32 v{vSTG}, v{vSTG} offset:{MISC}
    s_cmp_lg_u32 s2, 0
    s_cbranch_scc1 L_k1_noinit
    s_mov_b32 s{sT}, {CNT}
    buffer_store_dword v{vSTG}, v{vTI}, {sr(sWS, 4)}, s{sT} offen
    L_k1_noinit:
    s_waitcnt lgkmcnt(0)
    s_lshl_b32 s46, s46, 16
    v_mov_b32 v{vF}, s46
    s_barrier
    """)
    for g in range(4):
        load_group(1, g)

    def copy_reads():
        lab = a.uid("cr")
        for i in range(4):
            a(f"ds_read_b128 {vr(vSTG + 4 * i, 4)}, v{vX4} offset:{BUF + i * 16384}")
        a(f"""
        s_cmp_ge_u32 s{sWAVE}, 14
        s_cbranch_scc1 {lab}
        ds_read_b128 {vr(vSTG + 16, 4)}, v{vX4b} offset:{BUF}
        {lab}:
        """)

    def copy_store(i, sTile):
        st = OPT["st1"]
        if i < 3:
            a(f"""
            s_mul_i32 s{sT}, s{sTile}, {N1 * 4}
            s_add_u32 s{sT}, s{sT}, {R1A + i * 16384}
            buffer_store_dwordx4 {vr(vSTG + 4 * i, 4)}, v{vX4}, {sr(sWS, 4)}, s{sT} offen {st}
            """)
        elif i == 3:
            a(f"""
            s_mul_i32 s{sT}, s{sTile}, {N1 * 4}
            s_add_u32 s{sT}, s{sT}, {R1A + 49152}
            s_mul_i32 s{sU}, s{sTile}, {N1 * 2}
            s_add_u32 s{sU}, s{sU}, {R1B - 4096}
            s_cmp_lt_u32 s{sWAVE}, 4
            s_cselect_b32 s{sT}, s{sT}, s{sU}
            buffer_store_dwordx4 {vr(vSTG + 12, 4)}, v{vX4}, {sr(sWS, 4)}, s{sT} offen {st}
            """)
        else:
            lab = a.uid("cs")
            a(f"""
            s_cmp_ge_u32 s{sWAVE}, 14
            s_cbranch_scc1 {lab}
            s_mul_i32 s{sT}, s{sTile}, {N1 * 2}
            s_add_u32 s{sT}, s{sT}, {R1B + 12288}
            buffer_store_dwordx4 {vr(vSTG + 16, 4)}, v{vX4}, {sr(sWS, 4)}, s{sT} offen {st}
            {lab}:
            """)

    def hist(st, js):
        for j in js:
            a(f"v_mul_hi_u32_u24 v{vRANK + j}, s{sCB}, v{st['i'] + j}")
        for j in js:
            a(f"v_lshl_or_b32 v{st['o'] + j}, v{st['i'] + j}, 20, v{st['o'] + j}")
        for j in js:
            a(f"v_and_b32 v{st['i'] + j}, 0x3fc, v{vRANK + j}")
        for j in js:
            a(f"ds_add_rtn_u32 v{vRANK + j}, v{st['i'] + j}, v{vFOUR} offset:{HOFF}")

    def cosines(regs):
        ops = ["v_lshlrev_b32 {x}, 16, {g}", "v_and_b32 {y}, 0xffff0000, {g}",
               f"v_mul_f32 {{x}}, v{vF}, {{x}}", f"v_mul_f32 {{y}}, v{vF}, {{y}}",
               "v_cvt_pk_bf16_f32 {g}, {x}, {y}",
               "v_lshlrev_b32 {x}, 16, {g}", "v_and_b32 {y}, 0xffff0000, {g}",
               "v_mul_f32 {x}, 0.15915494, {x}", "v_mul_f32 {y}, 0.15915494, {y}",
               "v_fract_f32 {x}, {x}", "v_fract_f32 {y}, {y}",
               "v_cos_f32 {x}, {x}", "v_cos_f32 {y}, {y}"]
        for op in ops:
            for n, g in enumerate(regs):
                a(op.format(g=f"v{g}", x=f"v{vC + 2 * n}", y=f"v{vC + 2 * n + 1}"))
        a("s_nop 0")
        if OPT["cosr"] == "1":
            for op in ops[4:7]:
                for n, g in enumerate(regs):
                    a(op.format(g=f"v{g}", x=f"v{vC + 2 * n}", y=f"v{vC + 2 * n + 1}"))
        for n, g in enumerate(regs):
            a(f"v_cvt_pk_f16_f32 v{g}, v{vC + 2 * n}, v{vC + 2 * n + 1}")

    def skip_unless(g, lab):
        a(f"""
        s_cmp_le_u32 s{sN}, {g}
        s_cbranch_scc1 {lab}
        """)

    def phase_h(k):
        st = sets[k % 2]
        if k > 0:
            copy_reads()
        if k == 1 and OPT["clpos"] == "0":
            claim_issue()
        if k > 0:
            a(f"s_waitcnt vmcnt({[0, 12, 9, 2 if OPT['mpos'] == '2' else 0][k]})")
        stores = [[0, 1], [2, 3], [4]] if k < 3 else [[0, 1], [2, 3, 4], []]
        for g in range(3):
            lab = a.uid("hg")
            if k == 0:
                a(f"s_waitcnt vmcnt({24 - 3 * g - 2})")
            if k == 3:
                skip_unless(g, lab)
            if OPT["prio1"] == "1":
                a(f"s_setprio {3 - g}")
            hist(st, range(4 * g, 4 * g + 4))
            if k == 3:
                cosines([st['g'] + 2 * g, st['g'] + 2 * g + 1])
                a(f"{lab}:")
            if k > 0:
                if g == 0:
                    a(f"s_waitcnt lgkmcnt({4 if k < 3 else 0})")
                for i in stores[g]:
                    copy_store(i, sTI[k - 1])
            if k == 0:
                a(f"s_waitcnt vmcnt({24 - 3 * g - 3})")
            if k == 1 and g == 1 and OPT["clpos"] == "1":
                claim_issue()
            if k < 3:
                cosines([st['g'] + 2 * g, st['g'] + 2 * g + 1])
        if k == 0:
            a("s_waitcnt vmcnt(12)")
        if k < 3:
            hist(st, [12])
            cosines([st['g'] + 6])
        a("s_waitcnt lgkmcnt(0)")
        if k == 1:
            claim_publish(0)
        a("s_barrier")

    def phase_p(k):
        lab = a.uid("p")
        c, z, b, x = vSTG, vSTG + 4, vSTG + 8, vSTG + 12
        a(f"""
        s_cmp_lg_u32 s{sWAVE}, 0
        s_cbranch_scc1 {lab}
        ds_read_b128 {vr(c, 4)}, v{vX4} offset:{HOFF}
        v_mov_b32 v{z}, 0
        v_mov_b32 v{z + 1}, 0
        v_mov_b32 v{z + 2}, 0
        v_mov_b32 v{z + 3}, 0
        s_waitcnt lgkmcnt(0)
        """)
        prefix_core(a, c, z, b, x, vX4, HOFF, POFF)
        a(f"""
        s_waitcnt lgkmcnt(0)
        {lab}:
        s_barrier
        """)

    def offsets_store(k):
        lab = a.uid("os")
        c, b = vSTG, vSTG + 8
        a(f"""
        s_cmp_lg_u32 s{sWAVE}, 0
        s_cbranch_scc1 {lab}
        s_and_b32 s{sT}, s2, 7
        s_mul_i32 s{sT}, s{sT}, {96 if k < 3 else 32}
        s_lshr_b32 s{sU}, s2, 3
        s_add_u32 s{sT}, s{sT}, s{sU}
        s_lshl_b32 s{sT}, s{sT}, 2
        s_add_u32 s{sT}, s{sT}, {OFF1 + (k * 128 if k < 3 else 768 * 4)}
        """)
        for j in range(4):
            a(f"v_lshl_or_b32 v{c + j}, v{c + j}, 16, v{b + j}")
        for j in range(4):
            a(f"buffer_store_dword v{c + j}, v{vROW}, {sr(sWS, 4)}, s{sT} offen {OPT['st_off']}" if OPT["st_off"] != "skip" else "s_nop 0")
            if j < 3:
                a(f"s_add_u32 s{sT}, s{sT}, {ROW1}")
        a(f"{lab}:")

    def scatter(st, js):
        for j in js:
            a(f"v_add_u32 v{vRANK + j}, v{st['i'] + j}, v{vRANK + j}")
        for j in js:
            a(f"ds_write_b32 v{vRANK + j}, v{st['o'] + j} offset:{BUF}")
        for j in js:
            a(f"v_lshrrev_b32 v{st['i'] + j}, 1, v{vRANK + j}")
        for j in js:
            op = "ds_write_b16" if j % 2 == 0 else "ds_write_b16_d16_hi"
            a(f"{op} v{st['i'] + j}, v{st['g'] + j // 2} offset:{BUFB}")

    vM8 = sets[0]['i']

    def phase_s(k):
        st = sets[k % 2]
        lab = a.uid("se")
        if k == 1:
            claim_read(0)
        if k < 3:
            for j in range(13):
                a(f"ds_read_b32 v{st['i'] + j}, v{st['i'] + j} offset:{POFF}")
        else:
            l2 = a.uid("sr")
            for g in range(3):
                skip_unless(g, l2)
                for j in range(4 * g, 4 * g + 4):
                    a(f"ds_read_b32 v{st['i'] + j}, v{st['i'] + j} offset:{POFF}")
            a(f"{l2}:")
        offsets_store(k)
        if k == 3 and OPT["mpos"] == "3":
            a(f"s_mul_i32 s{sU}, s2, {SPAN}")
            slice_loads(a, sM, sU, sT, vX4, vC, vM8)
        a("s_waitcnt lgkmcnt(0)")
        for g in range(3):
            if k == 3:
                skip_unless(g, lab)
            if OPT["prio1"] == "1":
                a(f"s_setprio {3 - g}")
            scatter(st, range(4 * g, 4 * g + 4))
            if k == 0:
                load_group(2, g)
            if k == 1:
                claimed_loads(g)
        if k < 3:
            scatter(st, [12])
        if k == 0:
            load_group(2, 3)
        if k == 2 and OPT["mpos"] == "2":
            a(f"s_mul_i32 s{sU}, s2, {SPAN}")
            slice_loads(a, sM, sU, sT, vX4, vC, vM8)
        a(f"""
        {lab}:
        s_waitcnt lgkmcnt(0)
        """)
        a("s_barrier")

    for k in range(4):
        stamp(a, 4 + 4 * k)
        phase_h(k)
        stamp(a, 5 + 4 * k)
        phase_p(k)
        stamp(a, 6 + 4 * k)
        phase_s(k)
    stamp(a, 1)
    a(f"""
    s_lshl_b32 s{sA}, s{sN}, 3
    s_min_u32 s{sB}, s{sA}, 16
    s_sub_i32 s{sA}, s{sA}, 16
    """)
    parts = [(f"s_cmp_gt_u32 s{sN}, {i}", BUF + i * 16384, 2, R1A + i * 16384) for i in range(3)]
    parts += [(f"s_cmp_lt_u32 s{sWAVE}, s{sB}", BUFB, 1, R1B), (f"s_cmp_lt_i32 s{sWAVE}, s{sA}", BUFB + 16384 - 65536, 1, R1B + 16384)]
    for i, (cond, off, sh, g) in enumerate(parts):
        lab = a.uid("fr")
        a(f"""
        {cond}
        s_cbranch_scc0 {lab}
        ds_read_b128 {vr(vSTG + 4 * i, 4)}, v{vX4 if i < 4 else vX4b} offset:{off}
        {lab}:
        """)
    a("s_waitcnt lgkmcnt(0)")
    for i, (cond, off, sh, g) in enumerate(parts):
        a(f"""
        {cond}
        s_cselect_b64 exec, -1, 0
        s_lshl_b32 s{sT}, s{sLB}, {sh}
        s_add_u32 s{sT}, s{sT}, {g}
        buffer_store_dwordx4 {vr(vSTG + 4 * i, 4)}, v{vX4}, {sr(sWS, 4)}, s{sT} offen {OPT['st1']}
        """)
    a("""
    s_mov_b64 exec, -1
    s_waitcnt vmcnt(5)
    """)
    for i in range(8):
        a(f"v_and_b32 v{vM8 + i}, 0x7fff7fff, v{vM8 + i}")
    for d, x, y in ((0, 0, 1), (2, 2, 3), (4, 4, 5), (6, 6, 7), (0, 0, 2), (4, 4, 6), (0, 0, 4)):
        a(f"v_pk_max_u16 v{vM8 + d}, v{vM8 + x}, v{vM8 + y}")
    a(f"""
    v_lshrrev_b32 v{vC}, 16, v{vM8}
    v_and_b32 v{vM8}, 0xffff, v{vM8}
    v_max_u32 v{vC}, v{vC}, v{vM8}
    v_mov_b32 v{vC + 1}, 0
    """)
    wave_scan(a, "v_max_u32", vC)
    a(f"""
    s_lshl_b64 exec, 1, 63
    ds_max_u32 v{vC + 1}, v{vC} offset:{MISC}
    s_waitcnt lgkmcnt(0)
    s_barrier
    s_cmp_lg_u32 s{sWAVE}, 0
    s_cbranch_scc1 L_k1_nomax
    ds_read_b32 v{vC}, v{vC + 1} offset:{MISC}
    s_lshl_b32 s{sT}, s2, 2
    s_add_u32 s{sT}, s{sT}, {MAXS}
    s_waitcnt lgkmcnt(0)
    buffer_store_dword v{vC}, v{vC + 1}, {sr(sWS, 4)}, s{sT} offen
    L_k1_nomax:
    """)
    stamp_flush(a, 0, sWS, sWAVE)
    a("""
    L_k1_end:
    s_endpgm
    """)
    return name, nv, 56, BUFB + N1 * 2


def refill_code(a, vIDX, vLEN, vW, vT, sMASK, pend=None):
    a(f"""
    s_mov_b64 exec, -1
    v_add_u32 v{vIDX}, {SEG}, v{vIDX}
    v_subrev_u32 v{vLEN}, {SEG}, v{vLEN}
    v_max_i32 v{vLEN}, 0, v{vLEN}
    """)
    if pend is not None:
        cur, pen = pend
        a(f"""
        v_cmp_eq_u32 vcc, 0, v{vLEN}
        s_nop 1
        """)
        for c, p in zip(cur, pen):
            a(f"v_cndmask_b32 v{c}, v{c}, v{p}, vcc")
        a(f"v_cndmask_b32 v{pen[1]}, v{pen[1]}, 0, vcc")
    a(f"""
    v_min_u32 v{vT}, {SEG}, v{vLEN}
    v_cmp_lt_u32 {sr(sMASK, 2)}, 0, v{vLEN}
    v_lshl_or_b32 v{vW}, v{vIDX}, 6, v{vT}
    s_nop 3
    """)


def k2(a):
    name = "gather_part_kernel"
    kernel_header(a, name)
    HOFF, POFF, MISC, SLICE, SORT = 0, 1024, 2048, 4096, 36864
    LDS = SORT + NS * 1024 * 8
    sWAVE, sB = 3, 4
    sWS, sM = 8, 12
    sK, sCB, sDONE, sNOLD = 16, 17, 18, 19
    sMASK, sQUOTA, sNT, sKT, sT, sU, sL = 20, 22, 23, 24, 25, 26, 27
    sBASE, sNPREV, sR1B, sBPREV, sQ = 28, 29, 31, 64, 65
    sW = [32, 48]
    sCM = [66, 68, 70]
    vLANE, vX4, vXA, vXB, vT2, vEIGHT, vIDX, vLEN, vW, vZERO, vROW = 1, 2, 3, 4, 5, 6, 7, 8, 9, 10, 11
    vT = 12
    vSTG = 16
    vR = [28, 28 + 2 * NS]
    vZ = 28 + 4 * NS
    nv = vZ + 2 * NS
    A = lambda st, s: vR[st] + 2 * s
    G = lambda st, s: vR[st] + 2 * s + 1
    Z = lambda s: vZ + 2 * s
    ld1 = OPT["ld1"]

    a(f"""
    s_cmp_ge_u32 s2, {NB}
    s_cbranch_scc1 L_k2_end
    """)
    if OPT["pf2"] == "1":
        code_prefetch(a, "gather_part_kernel", "L_k2_last", 24576, nv, 72)
        nv += 1
    a(f"""
    s_load_dwordx2 s[6:7], s[0:1], 104
    s_load_dwordx2 s[32:33], s[0:1], 0
    v_lshrrev_b32 v{vEIGHT}, 6, v0
    v_and_b32 v{vLANE}, 63, v0
    v_readfirstlane_b32 s{sWAVE}, v{vEIGHT}
    s_and_b32 s{sB}, s2, 7
    s_lshl_b32 s{sB}, s{sB}, 5
    s_lshr_b32 s{sT}, s2, 3
    s_add_u32 s{sB}, s{sB}, s{sT}
    v_lshlrev_b32 v{vX4}, 4, v0
    v_lshlrev_b32 v{vT2}, 1, v0
    s_mul_i32 s{sU}, s{sWAVE}, 48
    v_add_u32 v{vIDX}, s{sU}, v{vLANE}
    v_lshl_add_u32 v{vW}, v{vLANE}, 4, s{sWAVE}
    v_cmp_gt_u32 vcc, 48, v{vLANE}
    v_lshlrev_b32 v{vT + 3}, 4, v{vLANE}
    s_nop 0
    v_cndmask_b32 v{vIDX}, v{vW}, v{vIDX}, vcc
    v_lshlrev_b32 v{vT + 2}, 2, v{vIDX}
    v_mov_b32 v{vZERO}, 0
    v_mov_b32 v{vEIGHT}, 8
    s_mul_i32 s{sT}, s{sB}, {ROW1}
    s_add_u32 s{sT}, s{sT}, {OFF1}
    s_mov_b32 s{sU}, {MAXS}
    s_waitcnt lgkmcnt(0)
    """)
    stamp(a, 0)
    srd(a, sWS, 6, WS_BYTES)
    a(f"""
    buffer_load_dword v{vLEN}, v{vT + 2}, {sr(sWS, 4)}, s{sT} offen
    buffer_load_dwordx4 {vr(vZ, 4)}, v{vT + 3}, {sr(sWS, 4)}, s{sU} offen
    """)
    srd(a, sM, 32, E * 8)
    a(f"s_mul_i32 s{sU}, s{sB}, {SPAN}")
    slice_loads(a, sM, sU, sT, vX4, vT + 1, vSTG)
    a(f"""
    v_lshlrev_b32 v{vT + 2}, 2, v0
    ds_write_b32 v{vT + 2}, v{vZERO}
    s_and_b32 s{sU}, s{sU}, -2
    v_add_u32 v{vXA}, {SORT}, v{vX4}
    v_add_u32 v{vXB}, {SORT + 65536}, v{vX4}
    v_mul_u32_u24 v{vROW}, {4 * ROW2}, v{vLANE}
    s_mov_b32 s{sK}, {MAGIC}
    s_mov_b32 s{sCB}, {CB4}
    s_mov_b32 s{sR1B}, {R1B}
    s_mov_b32 s{sDONE}, 0
    s_mov_b32 s{sNOLD}, 0
    v_add_u32 v{vSTG + 8}, s{sU}, v{vT2}
    v_and_b32 v{vSTG + 8}, 0xfff, v{vSTG + 8}
    v_lshlrev_b32 v{vSTG + 8}, 3, v{vSTG + 8}
    v_xor_b32 v{vSTG + 9}, 0x4000, v{vSTG + 8}
    v_and_b32 v{vT}, 31, v{vIDX}
    v_lshrrev_b32 v{vT + 1}, 5, v{vIDX}
    v_mul_u32_u24 v{vT + 2}, 43, v{vT + 1}
    v_lshrrev_b32 v{vT + 2}, 7, v{vT + 2}
    v_mad_i32_i24 v{vT + 3}, v{vT + 2}, -3, v{vT + 1}
    v_lshl_add_u32 v{vT + 2}, v{vT}, 3, v{vT + 2}
    v_lshl_add_u32 v{vT + 2}, v{vT + 3}, 8, v{vT + 2}
    v_mul_u32_u24 v{vT + 2}, {N1}, v{vT + 2}
    v_subrev_u32 v{vT + 1}, 24, v{vT + 1}
    v_lshl_add_u32 v{vT}, v{vT}, 3, v{vT + 1}
    v_cmp_gt_u32 vcc, 48, v{vLANE}
    v_mul_u32_u24 v{vT}, {NLAST}, v{vT}
    v_add_u32 v{vT}, {DYN0}, v{vT}
    v_cndmask_b32 v{vIDX}, v{vT}, v{vT + 2}, vcc
    """)
    for st in range(2):
        for s in range(NS):
            a(f"v_mov_b32 v{A(st, s)}, 0")
            a(f"v_mov_b32 v{G(st, s)}, 0")
    a(f"""
    s_waitcnt vmcnt(3)
    v_bfe_u32 v{vT}, v{vLEN}, 2, 14
    v_lshrrev_b32 v{vLEN}, 18, v{vLEN}
    v_add_u32 v{vIDX}, v{vIDX}, v{vT}
    v_add_u32 v{vT + 1}, {SEG - 1}, v{vLEN}
    v_mul_u32_u24 v{vT + 1}, 16645, v{vT + 1}
    v_lshrrev_b32 v{vT + 1}, 20, v{vT + 1}
    v_min_u32 v{vT + 2}, {SEG}, v{vLEN}
    v_cmp_lt_u32 {sr(sMASK, 2)}, 0, v{vLEN}
    v_lshl_or_b32 v{vW}, v{vIDX}, 6, v{vT + 2}
    """)
    wave_scan(a, "v_add_u32", vT + 1)
    a(f"""
    s_nop 0
    v_readlane_b32 s{sT}, v{vT + 1}, 63
    s_nop 3
    s_add_u32 s{sQUOTA}, s{sT}, {FIX - 1}
    s_mul_i32 s{sQUOTA}, s{sQUOTA}, 52429
    s_lshr_b32 s{sQUOTA}, s{sQUOTA}, 18
    s_add_u32 s{sNT}, s{sT}, {NS - 1}
    s_mul_i32 s{sNT}, s{sNT}, 34953
    s_lshr_b32 s{sNT}, s{sNT}, 19
    """)

    def pop(st, s):
        back, stub, empty, issue = a.uid("pb"), a.uid("pr"), a.uid("pe"), a.uid("pi")
        w = sW[st] + s
        if s >= 12 and OPT["greedy"] != "1":
            a(f"""
            s_cmp_le_u32 s{sQUOTA}, {s}
            s_cbranch_scc1 {empty}
            """)
        a(f"""
        s_cmp_eq_u64 {sr(sMASK, 2)}, 0
        s_cbranch_scc1 {stub}
        {back}:
        s_ff1_i32_b64 s{sL}, {sr(sMASK, 2)}
        s_bitset0_b64 {sr(sMASK, 2)}, s{sL}
        v_readlane_b32 s{w}, v{vW}, s{sL}
        s_lshr_b32 s{sT}, s{w}, 6
        s_bfm_b64 exec, s{w}, 0
        v_add_lshl_u32 v{A(st, s)}, s{sT}, v{vLANE}, 2
        v_lshrrev_b32 v{G(st, s)}, 1, v{A(st, s)}
        {issue}:
        buffer_load_dword v{A(st, s)}, v{A(st, s)}, {sr(sWS, 4)}, 0 offen {ld1}
        buffer_load_ushort v{G(st, s)}, v{G(st, s)}, {sr(sWS, 4)}, s{sR1B} offen {ld1}
        """)
        a.begin_tail()
        a(f"""
        {stub}:
        s_cmp_lg_u32 s{sDONE}, 0
        s_cbranch_scc1 {empty}
        """)
        refill_code(a, vIDX, vLEN, vW, vT + 3, sMASK)
        a(f"""
        s_cmp_eq_u64 {sr(sMASK, 2)}, 0
        s_cbranch_scc0 {back}
        s_mov_b32 s{sDONE}, 1
        {empty}:
        s_mov_b32 s{w}, 0
        s_mov_b64 exec, 0
        s_branch {issue}
        """)
        a.end_tail()

    stamp(a, 60)
    for s in range(NS):
        pop(0, s)
    a("s_mov_b64 exec, -1")
    wave_scan(a, "v_add_u32", vT)
    a(f"""
    v_mov_b32 v{vT + 1}, s{sNT}
    s_waitcnt lgkmcnt(0)
    s_barrier
    s_lshl_b64 exec, 1, 63
    ds_max_u32 v{vZERO}, v{vT + 1} offset:{MISC}
    ds_add_u32 v{vZERO}, v{vT} offset:{MISC + 4}
    """)
    early2 = OPT["k2early"] == "1"
    if not early2:
        for s in range(NS):
            pop(1, s)
    a(f"""
    s_mov_b64 exec, -1
    s_waitcnt vmcnt({(2 if early2 else 4) * NS})
    """)
    stamp(a, 61)
    global_max(a, vZ, sT)
    a(f"""
    v_rcp_f32 v{vT}, s{sT}
    s_nop 0
    v_mul_f32 v{vT}, {float(QMAX * 4)}, v{vT}
    """.replace(str(float(QMAX * 4)), "0x467f0000"))
    for i in range(8):
        a(f"""
        v_lshlrev_b32 v{vT + 2}, 16, v{vSTG + i}
        v_and_b32 v{vT + 3}, 0xffff0000, v{vSTG + i}
        v_mul_f32 v{vT + 2}, v{vT}, v{vT + 2}
        v_mul_f32 v{vT + 3}, v{vT}, v{vT + 3}
        v_cvt_pk_f16_f32 v{vSTG + i}, v{vT + 2}, v{vT + 3}
        """)
    a(f"""
    ds_write_b128 v{vSTG + 8}, {vr(vSTG, 4)} offset:{SLICE}
    ds_write_b128 v{vSTG + 9}, {vr(vSTG + 4, 4)} offset:{SLICE}
    s_waitcnt lgkmcnt(0)
    s_barrier
    ds_read_b64 {vr(vT, 2)}, v{vZERO} offset:{MISC}
    s_waitcnt lgkmcnt(0)
    v_readfirstlane_b32 s{sNT}, v{vT}
    v_readfirstlane_b32 s{sBASE}, v{vT + 1}
    s_nop 3
    s_max_u32 s{sNT}, s{sNT}, {FIX}
    s_mul_i32 s{sT}, s{sB}, {PAD2}
    s_add_u32 s{sBASE}, s{sBASE}, s{sT}
    s_add_u32 s{sBASE}, s{sBASE}, 15
    s_and_b32 s{sBASE}, s{sBASE}, -16
    s_mov_b32 s{sKT}, 0
    s_mov_b32 s{sNPREV}, 0
    s_mov_b32 s{sBPREV}, {R2}
    """)

    def copy_reads(chunks, regs, masks):
        a("s_mov_b64 exec, -1")
        for i, m in zip(chunks, masks):
            a(f"""
            s_sub_i32 s{sT}, s{sNPREV}, {i * 2048}
            v_cmp_gt_i32 {sr(m, 2)}, s{sT}, v{vT2}
            """)
        for i, r, m in zip(chunks, regs, masks):
            addr = vXA if i < 4 else vXB
            a(f"""
            s_mov_b64 exec, {sr(m, 2)}
            ds_read_b128 {vr(r, 4)}, v{addr} offset:{(i % 4) * 16384}
            """)

    def copy_stores(chunks, regs, masks):
        for i, r, m in zip(chunks, regs, masks):
            lab = a.uid("cs")
            a(f"""
            s_mov_b64 exec, {sr(m, 2)}
            s_cbranch_execz {lab}
            s_add_u32 s{sT}, s{sBPREV}, {i * 16384}
            buffer_store_dwordx4 {vr(r, 4)}, v{vX4}, {sr(sWS, 4)}, s{sT} offen {OPT['st2']}
            {lab}:
            """)

    def gathers(st, bt):
        for s in bt:
            a(f"""
            s_bfm_b64 exec, s{sW[st] + s}, 0
            v_lshrrev_b32 v{Z(s)}, 17, v{A(st, s)}
            v_and_b32 v{Z(s)}, 0x7ff8, v{Z(s)}
            ds_read_b64 {vr(Z(s), 2)}, v{Z(s)} offset:{SLICE}
            """)

    def encode(st, bt):
        for s in bt:
            z, aa, g = Z(s), A(st, s), G(st, s)
            a(f"""
            s_bfm_b64 exec, s{sW[st] + s}, 0
            v_fma_mix_f32 v{vT}, v{z}, v{g}, s{sK} op_sel_hi:[1,1,0]
            v_fma_mix_f32 v{vT + 1}, v{z}, v{g}, s{sK} op_sel:[1,0,0] op_sel_hi:[1,1,0]
            v_fma_mix_f32 v{vT + 2}, v{z + 1}, v{g}, s{sK} op_sel_hi:[1,1,0]
            v_fma_mix_f32 v{vT + 3}, v{z + 1}, v{g}, s{sK} op_sel:[1,0,0] op_sel_hi:[1,1,0]
            v_and_b32 v{g}, 0xfffff, v{aa}
            v_lshl_add_u32 v{z}, v{vT + 1}, 13, v{vT}
            v_mul_hi_u32_u24 v{g}, s{sCB}, v{g}
            v_lshl_add_u32 v{z + 1}, v{vT + 3}, 13, v{vT + 2}
            v_lshrrev_b32 v{vT}, 6, v{aa}
            v_lshl_add_u32 v{z}, v{aa}, 26, v{z}
            v_and_b32 v{aa}, 0x3fc, v{g}
            v_lshl_add_u32 v{z + 1}, v{vT}, 26, v{z + 1}
            ds_add_rtn_u32 v{g}, v{aa}, v{vEIGHT} offset:{HOFF}
            """)

    def phase_h(st):
        greedy = OPT["greedy"] == "1"
        if greedy:
            b0, b1, b2, b3 = range(0, 5), range(5, 10), range(10, 15), None
        else:
            nm = int(OPT["nmain"])
            b0, b1, b2, b3 = range(0, 5), range(5, nm - 4), range(nm - 4, nm), range(nm, 15)
        regs = [vSTG, vSTG + 4, vSTG + 8]
        lab, w0, w1, short = a.uid("h3"), a.uid("hw0"), a.uid("hw1"), a.uid("hs")
        p2 = OPT["prio2"] == "1"
        if p2:
            a("s_setprio 3")
        copy_reads([0, 1, 2], regs, sCM)
        a(f"""
        s_cmp_lg_u32 s{sNOLD}, 0
        s_cbranch_scc1 {w0}
        s_waitcnt vmcnt({2 * NS})
        {w1}:
        """)
        a.begin_tail()
        a(f"""
        {w0}:
        s_waitcnt vmcnt(0)
        s_branch {w1}
        """)
        a.end_tail()
        LAG = int(OPT["hlag"])
        if LAG:
            n = 15 if greedy else int(OPT["nmain"])
            ds = [("C", 0), ("C", 1), ("C", 2)]
            swaps = {1: ([0, 1, 2], [3, 4, 5]), 5: ([3, 4, 5], [6, 7]), 9: ([6, 7], [])}
            for s in range(n + LAG):
                if s < n:
                    gathers(st, [s])
                    ds.append(("G", s))
                if s == LAG - 1:
                    a(f"""
                    s_cmp_eq_u32 s{sW[st] + LAG}, 0
                    s_cbranch_scc1 {short}
                    """)
                if s >= LAG:
                    e = s - LAG
                    tags = [("G", e)] + ([("C", swaps[e][0][-1])] if e in swaps else [])
                    a(f"s_waitcnt lgkmcnt({len(ds) - 1 - max(ds.index(t) for t in tags)})")
                    if e in swaps:
                        copy_stores(swaps[e][0], regs, sCM)
                        if swaps[e][1]:
                            copy_reads(swaps[e][1], regs, sCM)
                            ds.extend(("C", i) for i in swaps[e][1])
                    encode(st, [e])
                    ds.append(("R", e))
                    if p2 and e in (3, 7, 10):
                        a(f"s_setprio {2 - (3, 7, 10).index(e)}")
            b0 = range(LAG)
        else:
            gathers(st, b0)
            a(f"""
            s_cmp_eq_u32 s{sW[st] + 5}, 0
            s_cbranch_scc1 {short}
            """)
            gathers(st, b1)
            a(f"s_waitcnt lgkmcnt({len(b1)})")
            copy_stores([0, 1, 2], regs, sCM)
            copy_reads([3, 4, 5], regs, sCM)
            encode(st, b0)
            if p2:
                a("s_setprio 2")
            gathers(st, b2)
            a(f"s_waitcnt lgkmcnt({len(b0) + len(b2)})")
            copy_stores([3, 4, 5], regs, sCM)
            copy_reads([6, 7], regs, sCM)
            encode(st, b1)
            if p2:
                a("s_setprio 1")
            a(f"s_waitcnt lgkmcnt({len(b1)})")
            copy_stores([6, 7], regs, sCM)
            encode(st, b2)
        if b3:
            a(f"""
            s_cmp_eq_u32 s{sW[st] + b3[0]}, 0
            s_cbranch_scc1 {lab}
            """)
            gathers(st, b3)
            a("s_waitcnt lgkmcnt(0)")
            encode(st, b3)
        a(f"""
        {lab}:
        s_mov_b64 exec, -1
        s_waitcnt lgkmcnt(0)
        s_barrier
        """)
        a.begin_tail()
        a(f"""
        {short}:
        s_waitcnt lgkmcnt(0)
        """)
        copy_stores([0, 1, 2], regs, sCM)
        copy_reads([3, 4, 5], regs, sCM)
        a("s_waitcnt lgkmcnt(0)")
        copy_stores([3, 4, 5], regs, sCM)
        copy_reads([6, 7], regs, sCM)
        encode(st, b0)
        a(f"s_waitcnt lgkmcnt({len(b0)})")
        copy_stores([6, 7], regs, sCM)
        a(f"s_branch {lab}")
        a.end_tail()

    def phase_h_first():
        bs = [range(0, 5), range(5, 10), range(10, 15)]
        for n, bt in enumerate(bs):
            a(f"s_waitcnt vmcnt({2 * NS - 10})")
            gathers(0, bt)
            for s in bt:
                pop(1, s)
            if n:
                a("s_waitcnt lgkmcnt(5)")
                encode(0, bs[n - 1])
        a("s_waitcnt lgkmcnt(5)")
        encode(0, bs[2])
        a("""
        s_mov_b64 exec, -1
        s_waitcnt lgkmcnt(0)
        s_barrier
        s_branch L_k2_afterh
        """)

    c, z4, b4, x = vSTG, vSTG + 4, vSTG + 8, vT

    def phase_p():
        lab = a.uid("p")
        a(f"""
        s_cmp_lg_u32 s{sWAVE}, 0
        s_cbranch_scc1 {lab}
        ds_read_b128 {vr(c, 4)}, v{vX4} offset:{HOFF}
        v_mov_b32 v{z4}, 0
        v_mov_b32 v{z4 + 1}, 0
        v_mov_b32 v{z4 + 2}, 0
        v_mov_b32 v{z4 + 3}, 0
        s_waitcnt lgkmcnt(0)
        """)
        prefix_core(a, c, z4, b4, x, vX4, HOFF, POFF)
        a(f"""
        s_lshl_b64 exec, 1, 63
        ds_write_b32 v{vZERO}, v{x} offset:{MISC + 16}
        s_mov_b64 exec, -1
        s_waitcnt lgkmcnt(0)
        {lab}:
        s_barrier
        """)

    def offsets_store():
        lab, ovf, back = a.uid("os"), a.uid("ovf"), a.uid("ovfback")
        a(f"""
        s_cmp_lg_u32 s{sWAVE}, 0
        s_cbranch_scc1 {lab}
        s_mov_b64 exec, -1
        s_lshl_b32 s{sQ}, s{sKT}, 8
        s_add_u32 s{sQ}, s{sQ}, s{sB}
        s_cmp_ge_u32 s{sKT}, {FIX}
        s_cbranch_scc1 {ovf}
        {back}:
        s_lshl_b32 s{sQ}, s{sQ}, 2
        s_add_u32 s{sT}, s{sQ}, {OFF2}
        """)
        for j in range(4):
            a(f"v_lshrrev_b32 v{b4 + j}, 3, v{b4 + j}")
        for j in range(4):
            a(f"v_lshl_or_b32 v{c + j}, v{c + j}, 13, v{b4 + j}")
        for j in range(4):
            a(f"buffer_store_dword v{c + j}, v{vROW}, {sr(sWS, 4)}, s{sT} offen {OPT['st_off']}" if OPT["st_off"] != "skip" else "s_nop 0")
            if j < 3:
                a(f"s_add_u32 s{sT}, s{sT}, {ROW2}")
        a(f"""
        v_mov_b32 v{z4}, s{sBASE}
        s_add_u32 s{sT}, s{sQ}, {DIR2}
        s_mov_b64 exec, 1
        buffer_store_dword v{z4}, v{vZERO}, {sr(sWS, 4)}, s{sT} offen
        {lab}:
        """)
        a.begin_tail()
        a(f"""
        {ovf}:
        s_mov_b64 exec, 1
        v_mov_b32 v{z4}, 1
        s_mov_b32 s{sT}, {CNT}
        buffer_atomic_add v{z4}, v{vZERO}, {sr(sWS, 4)}, s{sT} offen sc0
        s_waitcnt vmcnt(0)
        v_readfirstlane_b32 s{sQ}, v{z4}
        s_mov_b64 exec, -1
        s_nop 3
        s_add_u32 s{sQ}, s{sQ}, {FIX * NB}
        s_branch {back}
        """)
        a.end_tail()

    def phase_s(st):
        l1, nop, fin = a.uid("sa"), a.uid("sn"), a.uid("sf")
        a(f"ds_read_b32 v{vT}, v{vZERO} offset:{MISC + 16}")
        for s in range(NS):
            if s in (5, int(OPT["nmain"])):
                a(f"""
                s_cmp_eq_u32 s{sW[st] + s}, 0
                s_cbranch_scc1 {l1}
                """)
            a(f"""
            s_bfm_b64 exec, s{sW[st] + s}, 0
            ds_read_b32 v{A(st, s)}, v{A(st, s)} offset:{POFF}
            """)
        a(f"{l1}:")
        offsets_store()
        a(f"""
        s_mov_b64 exec, -1
        s_mov_b32 s{sNOLD}, s{sDONE}
        s_lshl_b32 s{sBPREV}, s{sBASE}, 3
        s_add_u32 s{sBPREV}, s{sBPREV}, {R2}
        s_cmp_lg_u32 s{sDONE}, 0
        s_waitcnt lgkmcnt(0)
        v_readfirstlane_b32 s{sNPREV}, v{vT}
        s_cbranch_scc1 {nop}
        """)

        def put(s):
            a(f"""
            s_bfm_b64 exec, s{sW[st] + s}, 0
            v_add_u32 v{A(st, s)}, v{A(st, s)}, v{G(st, s)}
            ds_write_b64 v{A(st, s)}, {vr(Z(s), 2)} offset:{SORT}
            """)
        for s in range(NS):
            if OPT["prio2"] == "1" and s in (0, 4, 8, 11):
                a(f"s_setprio {3 - (0, 4, 8, 11).index(s)}")
            put(s)
            pop(st, s)
        a(f"""
        {fin}:
        s_lshr_b32 s{sNPREV}, s{sNPREV}, 3
        s_add_u32 s{sNPREV}, s{sNPREV}, 15
        s_and_b32 s{sNPREV}, s{sNPREV}, -16
        s_add_u32 s{sBASE}, s{sBASE}, s{sNPREV}
        s_waitcnt lgkmcnt(0)
        s_barrier
        """)
        a.begin_tail()
        a(f"{nop}:")
        for s in range(NS):
            if s in (5, 10):
                a(f"""
                s_cmp_eq_u32 s{sW[st] + s}, 0
                s_cbranch_scc1 {fin}
                """)
            put(s)
            a(f"s_mov_b32 s{sW[st] + s}, 0")
        a(f"s_branch {fin}")
        a.end_tail()

    if early2:
        stamp(a, 4, sKT)
        phase_h_first()
    a("L_k2_loop:")
    for st in range(2):
        stamp(a, 4, sKT)
        phase_h(st)
        if st == 0:
            a("L_k2_afterh:")
        stamp(a, 5, sKT)
        phase_p()
        stamp(a, 6, sKT)
        phase_s(st)
        a(f"""
        s_add_u32 s{sKT}, s{sKT}, 1
        s_cmp_ge_u32 s{sKT}, s{sNT}
        """)
        a("s_cbranch_scc1 L_k2_final" if st == 0 else "s_cbranch_scc0 L_k2_loop")
    a("L_k2_final:")
    stamp(a, 1)
    regs = [vSTG, vSTG + 4, vSTG + 8] + [vZ + 4 * i for i in range(5)]
    masks = [32 + 2 * i for i in range(8)]
    copy_reads(list(range(8)), regs, masks)
    a("s_waitcnt lgkmcnt(0)")
    copy_stores(list(range(8)), regs, masks)
    stamp_flush(a, 1, sWS, sWAVE)
    a("""
    L_k2_end:
    s_endpgm
    """)
    a.flush_tail()
    a("L_k2_last:")
    return name, nv, 80, LDS


def k3(a):
    name = "accum_out_kernel"
    kernel_header(a, name)
    D = int(OPT["d3"])
    ACC, MISC = 0, 1024
    LDS = 131072
    sWAVE, sB = 3, 4
    sWS, sM, sDI, sOUT = 8, 12, 16, 20
    sMASK, sT, sU, sL, sLIVE, sR2 = 24, 26, 27, 28, 29, 30
    sNE, sQB, sPASS, sBAS, sUNIT, sDONE = 31, 32, 33, 34, 35, 5
    sC, sP, sSEL = 36, 38, 6
    sW = 40
    sWD, sWU, sC8, sWX = 56, 64, 72, 76
    vLANE, vZERO, vIDX, vLEN, vIDX2, vLEN2, vW, vQ2 = 1, 2, 3, 4, 5, 6, 7, 8
    vT = 10
    vZ = 20
    vM = vZ + 2 * D
    vS = vM + 8
    vRR = vS + 16
    vFA = vRR + 16
    vDI = vFA + 16
    vE8 = vDI + 4
    vRB = vE8 + 4
    nrb = 2
    nv = vRB + 8 * nrb
    Z = lambda i: vZ + 2 * i
    EPOCH = 512 // D

    a(f"""
    s_cmp_ge_u32 s2, {NB}
    s_cbranch_scc1 L_k3_end
    """)
    if OPT["pf3"] == "1":
        code_prefetch(a, "accum_out_kernel", "L_text_end", 16384, nv, 76)
        nv += 1
    a(f"""
    s_load_dwordx2 s[6:7], s[0:1], 104
    s_load_dwordx2 s[36:37], s[0:1], 0
    s_load_dwordx2 s[38:39], s[0:1], 24
    s_load_dwordx2 s[40:41], s[0:1], 88
    s_load_dwordx2 s[42:43], s[0:1], 40
    s_load_dwordx8 s[44:51], s[0:1], 56
    v_lshrrev_b32 v{vT}, 6, v0
    v_and_b32 v{vLANE}, 63, v0
    v_readfirstlane_b32 s{sWAVE}, v{vT}
    s_and_b32 s{sB}, s2, 7
    s_lshl_b32 s{sB}, s{sB}, 5
    s_lshr_b32 s{sT}, s2, 3
    s_add_u32 s{sB}, s{sB}, s{sT}
    v_mov_b32 v{vZERO}, 0
    """)
    cs = [int(x) for x in OPT["share3"].split(",")]
    assert sum(cs) == 64
    pack = lambda v: v[0] | v[1] << 8 | v[2] << 16 | v[3] << 24
    pre = [sum(cs[:g]) for g in range(4)]
    a(f"""
    s_lshr_b32 s{sT}, s{sWAVE}, 2
    s_and_b32 s{sU}, s{sWAVE}, 3
    s_lshl_b32 s{sL}, s{sT}, 3
    s_lshr_b32 s{sPASS}, {pack(cs)}, s{sL}
    s_and_b32 s{sPASS}, s{sPASS}, 0xff
    s_lshr_b32 s{sBAS}, {pack(pre)}, s{sL}
    s_and_b32 s{sBAS}, s{sBAS}, 0xff
    s_mul_i32 s{sL}, s{sU}, s{sPASS}
    s_lshl2_add_u32 s{sL}, s{sBAS}, s{sL}
    s_lshl_b32 s{sT}, s{sWAVE}, 6
    s_sub_u32 s{sT}, s{sT}, s{sL}
    s_sub_u32 s{sT}, s{sT}, s{sPASS}
    s_add_u32 s{sT}, s{sT}, 0x500
    s_add_u32 s{sL}, s{sL}, 0x400
    v_cmp_gt_u32 vcc, s{sPASS}, v{vLANE}
    v_add_u32 v{vT + 1}, s{sL}, v{vLANE}
    v_add_u32 v{vQ2}, s{sT}, v{vLANE}
    v_cndmask_b32 v{vQ2}, v{vQ2}, v{vT + 1}, vcc
    s_mov_b32 s{sR2}, {R2}
    s_mov_b32 s{sQB}, 0
    s_waitcnt lgkmcnt(0)
    """)
    stamp(a, 0)
    srd(a, sWS, 6, WS_BYTES)

    def desc_loads():
        a(f"""
        v_add_lshl_u32 v{vT}, s{sQB}, v0, 2
        v_add_lshl_u32 v{vT + 1}, s{sQB}, v{vQ2}, 2
        s_mul_i32 s{sT}, s{sB}, {ROW2}
        s_add_u32 s{sT}, s{sT}, {OFF2}
        s_mov_b32 s{sU}, {DIR2}
        buffer_load_dword v{vLEN}, v{vT}, {sr(sWS, 4)}, s{sT} offen
        buffer_load_dword v{vIDX}, v{vT}, {sr(sWS, 4)}, s{sU} offen
        buffer_load_dword v{vLEN2}, v{vT + 1}, {sr(sWS, 4)}, s{sT} offen
        buffer_load_dword v{vIDX2}, v{vT + 1}, {sr(sWS, 4)}, s{sU} offen
        """)

    def desc_build():
        a(f"""
        v_add_u32 v{vT}, s{sQB}, v0
        v_add_u32 v{vT + 1}, s{sQB}, v{vQ2}
        v_cmp_gt_u32 vcc, s{sNE}, v{vT}
        v_cmp_gt_u32 {sr(sMASK, 2)}, s{sNE}, v{vT + 1}
        s_mov_b32 s{sDONE}, 0
        s_nop 0
        v_cndmask_b32 v{vLEN}, 0, v{vLEN}, vcc
        v_cndmask_b32 v{vLEN2}, 0, v{vLEN2}, {sr(sMASK, 2)}
        v_and_b32 v{vT}, 0xffff, v{vLEN}
        v_and_b32 v{vT + 1}, 0xffff, v{vLEN2}
        v_lshrrev_b32 v{vLEN}, 16, v{vLEN}
        v_lshrrev_b32 v{vLEN2}, 16, v{vLEN2}
        v_add_u32 v{vIDX}, v{vIDX}, v{vT}
        v_add_u32 v{vIDX2}, v{vIDX2}, v{vT + 1}
        v_min_u32 v{vT}, {SEG}, v{vLEN}
        v_cmp_lt_u32 {sr(sMASK, 2)}, 0, v{vLEN}
        v_lshl_or_b32 v{vW}, v{vIDX}, 6, v{vT}
        s_nop 3
        """)

    def pop(i):
        back, stub, empty, issue = a.uid("pb"), a.uid("pr"), a.uid("pe"), a.uid("pi")
        a(f"""
        s_cmp_eq_u64 {sr(sMASK, 2)}, 0
        s_cbranch_scc1 {stub}
        {back}:
        s_ff1_i32_b64 s{sL}, {sr(sMASK, 2)}
        s_bitset0_b64 {sr(sMASK, 2)}, s{sL}
        v_readlane_b32 s{sW + i}, v{vW}, s{sL}
        s_lshr_b32 s{sT}, s{sW + i}, 6
        s_bfm_b64 exec, s{sW + i}, 0
        v_add_lshl_u32 v{Z(i)}, s{sT}, v{vLANE}, 3
        {issue}:
        buffer_load_dwordx2 {vr(Z(i), 2)}, v{Z(i)}, {sr(sWS, 4)}, s{sR2} offen {OPT['ld2']}
        """)
        a.begin_tail()
        a(f"""
        {stub}:
        s_cmp_lg_u32 s{sDONE}, 0
        s_cbranch_scc1 {empty}
        """)
        refill_code(a, vIDX, vLEN, vW, vT + 8, sMASK, pend=((vIDX, vLEN), (vIDX2, vLEN2)))
        a(f"""
        s_cmp_eq_u64 {sr(sMASK, 2)}, 0
        s_cbranch_scc0 {back}
        s_mov_b32 s{sDONE}, 1
        {empty}:
        s_mov_b32 s{sW + i}, 0
        s_mov_b64 exec, 0
        s_branch {issue}
        """)
        a.end_tail()

    def process(i):
        z, t = Z(i), vT
        a(f"""
        s_bfm_b64 exec, s{sW + i}, 0
        v_perm_b32 v{t + 4}, v{z + 1}, v{z}, s{sSEL}
        v_and_b32 v{t}, 0x1fff, v{z}
        v_bfe_u32 v{t + 1}, v{z}, 13, 13
        v_and_b32 v{t + 4}, 0xfcfc, v{t + 4}
        v_and_b32 v{t + 2}, 0x1fff, v{z + 1}
        v_bfe_u32 v{t + 3}, v{z + 1}, 13, 13
        v_add_u32 v{t + 4}, v{t + 4}, v{t + 4}
        v_lshl_add_u64 {vr(t, 2)}, {vr(t, 2)}, 0, {sr(sC, 2)}
        v_lshl_add_u64 {vr(t + 2, 2)}, {vr(t + 2, 2)}, 0, {sr(sC, 2)}
        ds_add_u64 v{t + 4}, {vr(t, 2)} offset:{ACC}
        ds_add_u64 v{t + 4}, {vr(t + 2, 2)} offset:{ACC + 512}
        """)

    def zero_acc():
        a(f"""
        v_mov_b32 v{vT}, 0
        v_mov_b32 v{vT + 1}, 0
        v_mov_b32 v{vT + 2}, 0
        v_mov_b32 v{vT + 3}, 0
        v_lshlrev_b32 v{vT + 4}, 4, v{vLANE}
        s_lshl_b32 s{sT}, s{sWAVE}, 11
        v_add_u32 v{vT + 4}, s{sT}, v{vT + 4}
        v_add_u32 v{vT + 5}, 0x10000, v{vT + 4}
        ds_write_b128 v{vT + 4}, {vr(vT, 4)} offset:{ACC}
        ds_write_b128 v{vT + 4}, {vr(vT, 4)} offset:{ACC + 32768}
        ds_write_b128 v{vT + 5}, {vr(vT, 4)} offset:{ACC}
        ds_write_b128 v{vT + 5}, {vr(vT, 4)} offset:{ACC + 32768}
        ds_write_b32 v{vZERO}, v{vZERO} offset:{MISC}
        """)

    desc_loads()
    srd(a, sM, 36, E * 8)
    srd(a, sDI, 38, E * 2)
    srd(a, sOUT, 40, E * 8)
    a(f"""
    s_add_u32 s6, s6, {CNT}
    s_addc_u32 s7, s7, 0
    s_load_dword s{sNE}, s[6:7], 0
    s_load_dwordx8 {sr(sWD, 8)}, s[48:49], 0
    s_load_dwordx8 {sr(sWU, 8)}, s[50:51], 0
    s_load_dwordx4 {sr(sC8, 4)}, s[42:43], 0
    s_mov_b64 s[92:93], s[44:45]
    s_mov_b64 s[94:95], s[46:47]
    """)
    for i in range(D):
        a(f"v_mov_b32 v{Z(i)}, 0")
    for i in range(16):
        a(f"v_mov_b32 v{vFA + i}, 0")
    zero_acc()
    a(f"""
    s_mul_i32 s{sT}, s{sB}, {SPAN}
    v_mov_b32 v{vT + 8}, 0x8000000
    v_add_u32 v{vE8}, s{sT}, v0
    v_add_u32 v{vE8 + 1}, 0x400, v{vE8}
    v_add_u32 v{vE8 + 2}, 0x800, v{vE8}
    v_add_u32 v{vE8 + 3}, 0xc00, v{vE8}
    v_cmp_gt_u32 vcc, {SPAN - 3072}, v0
    s_mov_b32 s{sC}, 0xfffff000
    s_mov_b32 s{sC + 1}, 0xffffefff
    v_cndmask_b32 v{vE8 + 3}, v{vT + 8}, v{vE8 + 3}, vcc
    s_lshr_b32 s{sBAS}, s{sWAVE}, 2
    s_xor_b32 s{sBAS}, s{sBAS}, {3 if OPT["basrev"] == "1" else 0}
    s_mul_i32 s{sBAS}, s{sBAS}, {int(OPT["basstep"])}
    s_add_u32 s{sBAS}, s{sBAS}, {int(OPT["bas0"])}
    s_mov_b32 s{sPASS}, 0
    s_waitcnt lgkmcnt(0)
    s_mov_b32 s{sSEL}, 0x0c0c0703
    s_add_u32 s{sNE}, s{sNE}, {FIX * NB}
    s_waitcnt vmcnt(0)
    """)
    stamp(a, 4)
    desc_build()
    for i in range(D):
        pop(i)
    def side_loads():
        a(f"""
        s_mov_b64 exec, -1
        v_lshlrev_b32 v{vT + 8}, 4, v{vLANE}
        s_mov_b32 s{sT}, {MAXS}
        buffer_load_dwordx4 {vr(vS, 4)}, v{vT + 8}, {sr(sWS, 4)}, s{sT} offen
        """)
        for r in range(4):
            a(f"v_lshlrev_b32 v{vDI + r}, 1, v{vE8 + r}")
        for r in range(4):
            a(f"buffer_load_ushort v{vDI + r}, v{vDI + r}, {sr(sDI, 4)}, 0 offen")
        for r in range(4):
            a(f"v_lshlrev_b32 v{vE8 + r}, 3, v{vE8 + r}")
        for r in range(4):
            a(f"buffer_load_dwordx2 {vr(vM + 2 * r, 2)}, v{vE8 + r}, {sr(sM, 4)}, 0 offen {OPT['ld_m']}")

    late = OPT["late3"] == "1"
    if OPT["prio3"] == "1":
        a("s_setprio 3")
    if late:
        a("s_barrier")
        side_loads()
    else:
        side_loads()
        a("s_barrier")
    stamp(a, 7)
    for i in range(D):
        a(f"s_waitcnt vmcnt({D - 1 + 9})")
        process(i)
        pop(i)
    a(f"""
    L_k3_loop:
    s_add_u32 s{sPASS}, s{sPASS}, 1
    s_cmp_eq_u32 s{sPASS}, s{sBAS}
    s_cbranch_scc1 L_k3_basis
    L_k3_basisback:
    """)
    if OPT["prio3"] == "1":
        n = 80 // D
        for p, at in ((2, n * 3 // 10), (1, n * 6 // 10), (0, n * 8 // 10)):
            lab = a.uid("prio")
            a(f"""
            s_cmp_lg_u32 s{sPASS}, {at}
            s_cbranch_scc1 {lab}
            s_setprio {p}
            {lab}:
            """)
    a(f"""
    s_cmp_eq_u32 s{sW}, 0
    s_cbranch_scc1 L_k3_drained
    s_cmp_ge_u32 s{sPASS}, {EPOCH}
    s_cbranch_scc1 L_k3_full
    L_k3_pass:
    """)
    for i in range(D):
        a(f"s_waitcnt vmcnt({D - 1})")
        process(i)
        pop(i)
    a(f"""
    s_branch L_k3_loop
    L_k3_drained:
    s_mov_b64 exec, -1
    s_add_u32 s{sQB}, s{sQB}, 2048
    s_cmp_lt_u32 s{sQB}, s{sNE}
    s_cbranch_scc1 L_k3_next
    s_sub_u32 s{sQB}, s{sQB}, 2048
    s_cmp_lt_u32 s{sPASS}, s{sBAS}
    s_cbranch_scc0 L_k3_join
    s_mov_b32 s{sBAS}, s{sPASS}
    s_branch L_k3_basis
    L_k3_join:
    """)
    stamp(a, 8)
    a(f"""
    s_waitcnt lgkmcnt(0)
    s_barrier
    """)
    stamp(a, 9)

    a.begin_tail()
    a("L_k3_next:")
    desc_loads()
    a("s_waitcnt vmcnt(0)")
    desc_build()
    a(f"""
    s_branch L_k3_prime
    L_k3_full:
    s_mov_b64 exec, -1
    v_mov_b32 v{vT}, 1
    ds_write_b32 v{vZERO}, v{vT} offset:{MISC}
    s_branch L_k3_join
    """)
    a.end_tail()

    def fold(rs):
        for r in rs:
            t = vRB + 4 * r
            a(f"""
            v_lshrrev_b32 v{vT}, 3, v{vE8 + r}
            v_add_u32 v{vT + 1}, {TOPK}, v{vT}
            v_add_u32 v{vT}, {TOPK << 6}, v{vT}
            v_and_b32 v{vT + 1}, 63, v{vT + 1}
            v_and_b32 v{vT}, 0xfc0, v{vT}
            v_lshl_or_b32 v{vT}, v{vT}, 2, v{vT + 1}
            v_lshlrev_b32 v{vT}, 3, v{vT}
            ds_read_b64 {vr(t, 2)}, v{vT} offset:{ACC}
            ds_read_b64 {vr(t + 2, 2)}, v{vT} offset:{ACC + 512}
            """)
        a(f"""
        ds_read_b32 v{vT + 4}, v{vZERO} offset:{MISC}
        s_waitcnt lgkmcnt(0)
        v_readfirstlane_b32 s{sLIVE}, v{vT + 4}
        """)
        for r in rs:
            t = vRB + 4 * r
            a(f"""
            v_lshrrev_b32 v{vT}, 31, v{t}
            v_lshrrev_b32 v{vT + 1}, 31, v{t + 2}
            v_add_u32 v{t + 1}, v{t + 1}, v{vT}
            v_add_u32 v{t + 3}, v{t + 3}, v{vT + 1}
            """)
            for j in range(4):
                a(f"v_cvt_f32_i32 v{t + j}, v{t + j}")
            for j in range(4):
                a(f"v_add_f32 v{vFA + 4 * r + j}, v{vFA + 4 * r + j}, v{t + j}")

    def wpair(sw):
        a(f"""
        s_lshl_b32 s{sP}, s{sw}, 16
        s_and_b32 s{sP + 1}, s{sw}, 0xffff0000
        """)

    def pkmac(first, dst, src):
        base, hi = src & ~1, src & 1
        if first:
            a(f"v_pk_mul_f32 {vr(dst, 2)}, {vr(base, 2)}, {sr(sP, 2)} op_sel:[{hi},0] op_sel_hi:[{hi},1]")
        else:
            a(f"v_pk_fma_f32 {vr(dst, 2)}, {vr(base, 2)}, {sr(sP, 2)}, {vr(dst, 2)} op_sel:[{hi},0,0] op_sel_hi:[{hi},1,1]")

    def epilogue(rs):
        for k in range(4):
            for jp in range(2):
                wpair(sWD + 2 * k + jp)
                for r in rs:
                    pkmac(k == 0, vRB + 4 * r + 2 * jp, vFA + 4 * r + k)
        for r in rs:
            for j in range(4):
                a(f"v_mul_f32 v{vRB + 4 * r + j}, v{vRB + 4 * r + j}, v{vS + 4 * r + j}")
        for k in range(4):
            for jp in range(2):
                wpair(sWU + 2 * k + jp)
                for r in rs:
                    pkmac(k == 0, vFA + 4 * r + 2 * jp, vRB + 4 * r + k)
        for r in rs:
            t, m = vRB + 4 * r, vM + 2 * r
            a(f"""
            v_lshlrev_b32 v{t}, 16, v{m}
            v_and_b32 v{t + 1}, 0xffff0000, v{m}
            v_lshlrev_b32 v{t + 2}, 16, v{m + 1}
            v_and_b32 v{t + 3}, 0xffff0000, v{m + 1}
            """)
            for j in range(4):
                a(f"v_fmac_f32 v{t + j}, v{vFA + 4 * r + j}, v{vRR + 4 * r + j}")
            a(f"""
            v_cvt_pk_bf16_f32 v{t}, v{t}, v{t + 1}
            v_cvt_pk_bf16_f32 v{t + 1}, v{t + 2}, v{t + 3}
            buffer_store_dwordx2 {vr(t, 2)}, v{vE8 + r}, {sr(sOUT, 4)}, 0 offen {OPT['st_out']}
            """)

    a(f"""
    s_cmp_eq_u32 s{sWAVE}, 0
    s_cbranch_scc1 L_k3_epi4
    """)
    for rs, pre in (([0, 1, 2], ""), ([0, 1, 2, 3], "L_k3_epi4:")):
        if pre:
            a(pre)
        fold(rs)
        a(f"""
        s_cmp_lg_u32 s{sLIVE}, 0
        s_cbranch_scc1 L_k3_again
        """)
        epilogue(rs)
        stamp_flush(a, 2, sWS, sWAVE)
        a("s_endpgm")
    a(f"""
    L_k3_again:
    s_barrier
    """)
    zero_acc()
    a(f"""
    s_mov_b32 s{sPASS}, s{sBAS}
    s_waitcnt lgkmcnt(0)
    s_barrier
    s_branch L_k3_basisback
    L_k3_prime:
    """)
    for i in range(D):
        pop(i)
    a("s_branch L_k3_basisback")

    def basis(rs):
        x = lambda n, kp: vRB + 8 * n + 2 * kp
        for n, r in enumerate(rs):
            a(f"v_lshlrev_b32 v{vDI + r}, 16, v{vDI + r}")
        for kp in range(4):
            wpair(sC8 + kp)

            def rnd():
                for n in range(len(rs)):
                    a(f"v_cvt_pk_bf16_f32 v{x(n, kp)}, v{x(n, kp)}, v{x(n, kp) + 1}")
                for n in range(len(rs)):
                    a(f"v_and_b32 v{x(n, kp) + 1}, 0xffff0000, v{x(n, kp)}")
                for n in range(len(rs)):
                    a(f"v_lshlrev_b32 v{x(n, kp)}, 16, v{x(n, kp)}")

            def each(op):
                for n in range(len(rs)):
                    for h in range(2):
                        a(op.format(v=f"v{x(n, kp) + h}"))
            for n, r in enumerate(rs):
                d = vDI + r
                hi = d & 1
                a(f"v_pk_add_f32 {vr(x(n, kp), 2)}, {vr(d & ~1, 2)}, {sr(sP, 2)} op_sel:[{hi},0] op_sel_hi:[{hi},1] neg_lo:[0,1] neg_hi:[0,1]")
            rnd()
            each("v_mul_f32 {v}, {v}, {v}")
            rnd()
            each("v_mul_f32 {v}, 0xc1200000, {v}")
            rnd()
            each("v_mul_f32 {v}, 0x3fb8aa3b, {v}")
            each("v_exp_f32 {v}, {v}")
            a("s_nop 0")
            rnd()
        for dst, ptr in ((vS, 94), (vRR, 92)):
            a(f"""
            s_load_dwordx16 {sr(sWX, 16)}, s[{ptr}:{ptr + 1}], 0
            s_waitcnt lgkmcnt(0)
            """)
            for k in range(8):
                for jp in range(2):
                    wpair(sWX + 2 * k + jp)
                    for n, r in enumerate(rs):
                        pkmac(k == 0, dst + 4 * r + 2 * jp, vRB + 8 * n + k)
        for r in rs:
            for j in range(4):
                a(f"v_mul_f32 v{vS + 4 * r + j}, v{vT + 9}, v{vS + 4 * r + j}")
            for jp in range(2):
                y = vRR + 4 * r + 2 * jp
                a(f"""
                v_cvt_pk_bf16_f32 v{y}, v{y}, v{y + 1}
                v_and_b32 v{y + 1}, 0xffff0000, v{y}
                v_lshlrev_b32 v{y}, 16, v{y}
                """)

    a(f"""
    L_k3_basis:
    s_mov_b64 exec, -1
    s_waitcnt vmcnt({D})
    """)
    stamp(a, 5)
    global_max(a, vS, sUNIT)
    a(f"""
    v_mov_b32 v{vT + 9}, s{sUNIT}
    v_mul_f32 v{vT + 9}, 0x39808081, v{vT + 9}
    """)
    basis([0, 1])
    a(f"""
    s_cmp_eq_u32 s{sWAVE}, 0
    s_cbranch_scc1 L_k3_basis23
    """)
    basis([2])
    stamp(a, 6)
    a("""
    s_branch L_k3_basisback
    L_k3_basis23:
    """)
    basis([2, 3])
    stamp(a, 6)
    a("""
    s_branch L_k3_basisback
    L_k3_end:
    s_endpgm
    """)
    a.flush_tail()
    a("L_text_end:")
    return name, nv, 96, LDS


HEADER = """; out = m + (((A @ w_down) * (rbf @ w_sbf)) @ w_up) * (rbf @ w_rbf),  A[e] = sum over idx_out == e of cos(f * angle) * m[idx_in]
"""


def build():
    a = Asm()
    ks = [k1(a), k2(a), k3(a)]
    out = HEADER
    for name, nv, ns, lds in ks:
        out += f"; @launch kernel={name} grid=({NB},1,1) block=(1024,1,1) lds={lds}\n"
    out += '.amdgcn_target "amdgcn-amd-amdhsa--gfx950"\n.text\n'
    out += a.text()
    out += '.section .rodata,"a"\n'
    for name, nv, ns, lds in ks:
        assert nv <= (127 if OPT["prof"] else 128), (name, nv)
        out += kernel_desc(name, 128 if OPT["prof"] else nv, 102 if OPT["prof"] else ns)
    return out


if __name__ == "__main__":
    path = sys.argv[1]
    for kv in sys.argv[2:]:
        k, v = kv.split("=")
        OPT[k] = v.replace("+", " ")
    open(path, "w").write(build())
```

```python
import sys
from asmlib import Asm, vr, sr, srd, wave_scan, kernel_header, kernel_desc, code_prefetch

E = 800000
T = 12800000
NB = 256
SPAN = 3125
CB4 = 4 * 1374390
N1 = 13312
DYN0 = 3 * NB * N1
NGRP = (T - DYN0) // 4096
NLAST = 3 * 4096
assert DYN0 + NGRP * 4096 == T
RT = DYN0 + NB * NLAST

R1A = 0
R1B = RT * 4
ROW1 = 4096 + 128
OFF1 = RT * 6
CNT = OFF1 + NB * ROW1
MAXS = CNT + 1024
DIR2 = MAXS + 1024
ROW2 = 65536 + 128
OFF2 = DIR2 + 65536
R2 = OFF2 + NB * ROW2
WS_BYTES = 268435456
assert OFF1 % 128 == 0 and R2 % 128 == 0 and OFF2 % 128 == 0
assert R2 + (1 << 27) <= 240000000
PAD2 = 14592
FIX = 5
NS = 15
SEG = 63
MAGIC = 0x4C001000
TOPK = 0x13
QMAX = 4080
MAXFLOOR = 0x0880

OPT = dict(ld_in="nt", st1="sc0 sc1", ld1="", st2="sc0 sc1", ld2="", ld_m="", st_out="", prof="", d3="5", k1early="0",
           k2early="1", greedy="0", prio3="1", late3="1", pf1="1", pf2="0", pf3="1", tlb="0", k1thr="", prio2="1", prio1="0", clpos="1", r3="128", hlag="0", mpos="2", nmain="14", cosr="1", st_off="", share3="24,18,13,9", basrev="0", basstep="2", bas0="1", epi1="1")
PROF = 240000000
VPROF = 127


def stamp(a, i, dyn=None):
    if not OPT["prof"]:
        return
    a("""
    s_memrealtime s[98:99]
    s_waitcnt lgkmcnt(0)
    """)
    if dyn is None:
        a(f"v_writelane_b32 v{VPROF}, s98, {i}")
    else:
        a(f"""
        s_lshl_b32 s99, s{dyn}, 2
        s_add_u32 m0, s99, {i}
        s_nop 0
        v_writelane_b32 v{VPROF}, s98, m0
        """)


def stamp_flush(a, kidx, sWS, sWAVE):
    if not OPT["prof"]:
        return
    stamp(a, 2)
    a("s_waitcnt vmcnt(0)")
    stamp(a, 3)
    lab = a.uid("pf")
    a(f"""
    s_mov_b64 exec, -1
    s_and_b32 s98, s{sWAVE}, 7
    s_cmp_lg_u32 s98, 0
    s_cbranch_scc1 {lab}
    s_lshr_b32 s98, s{sWAVE}, 3
    s_lshl_b32 s99, s2, 1
    s_add_u32 s98, s98, s99
    s_lshl_b32 s98, s98, 8
    s_add_u32 s98, s98, {PROF + kidx * 512 * 256}
    v_and_b32 v0, 63, v0
    v_lshlrev_b32 v0, 2, v0
    buffer_store_dword v{VPROF}, v0, s[{sWS}:{sWS + 3}], s98 offen
    {lab}:
    """)


def slice_loads(a, sM, sROW, sT, vX4, vTMP, dst):
    a(f"""
    s_and_b32 s{sT}, s{sROW}, -2
    s_lshl_b32 s{sT}, s{sT}, 3
    v_mov_b32 v{vTMP}, 0x40000000
    v_cmp_gt_u32 vcc, {(SPAN + 1) // 2 - 1024}, v0
    buffer_load_dwordx4 {vr(dst, 4)}, v{vX4}, {sr(sM, 4)}, s{sT} offen {OPT['ld_m']}
    s_add_u32 s{sT}, s{sT}, 16384
    v_cndmask_b32 v{vTMP}, v{vTMP}, v{vX4}, vcc
    buffer_load_dwordx4 {vr(dst + 4, 4)}, v{vTMP}, {sr(sM, 4)}, s{sT} offen {OPT['ld_m']}
    """)


def prefix_core(a, c, z, b, x, vX4, HOFF, POFF):
    a(f"""
    ds_write_b128 v{vX4}, {vr(z, 4)} offset:{HOFF}
    v_add_u32 v{b + 2}, v{c}, v{c + 1}
    v_add_u32 v{b + 3}, v{b + 2}, v{c + 2}
    v_add_u32 v{x + 1}, v{b + 3}, v{c + 3}
    v_mov_b32 v{x}, v{x + 1}
    """)
    wave_scan(a, "v_add_u32", x)
    a(f"""
    v_sub_u32 v{b}, v{x}, v{x + 1}
    v_add_u32 v{b + 1}, v{b}, v{c}
    v_add_u32 v{b + 2}, v{b}, v{b + 2}
    v_add_u32 v{b + 3}, v{b}, v{b + 3}
    ds_write_b128 v{vX4}, {vr(b, 4)} offset:{POFF}
    """)


def global_max(a, v4, sDST):
    a(f"""
    v_max3_u32 v{v4}, v{v4}, v{v4 + 1}, v{v4 + 2}
    v_max_u32 v{v4}, v{v4}, v{v4 + 3}
    """)
    wave_scan(a, "v_max_u32", v4)
    a(f"""
    s_nop 0
    v_readlane_b32 s{sDST}, v{v4}, 63
    s_nop 3
    s_max_u32 s{sDST}, s{sDST}, {MAXFLOOR}
    s_lshl_b32 s{sDST}, s{sDST}, 16
    """)


def k1(a):
    name = "part_in_kernel"
    kernel_header(a, name)
    HOFF, POFF, MISC, BUF = 0, 1024, 2048, 2176
    BUFB = BUF + N1 * 4
    sIN, sOUT, sANG, sWS, sM = 12, 16, 20, 24, 40
    sWAVE, sCB, sT, sA, sB, sU, sPOS = 3, 28, 29, 30, 31, 36, 37
    sTI = [32, 33, 34]
    sCL, sN, sG, sDBG, sLB = 47, 48, 49, 50, 35
    vX4, vX4b, vX2, vTI, vTA, vFOUR, vF = 1, 2, 3, 4, 5, 6, 7
    sets = []
    base = 8
    for s in range(2):
        sets.append(dict(i=base, o=base + 14, g=base + 28))
        base += 36
    vRANK = base
    vROW = vRANK + 13
    vSTG = vRANK + 14
    vC = vSTG + 20
    vCL = sets[0]['i'] + 13
    vZERO = sets[1]['i'] + 13
    nv = vC + 4
    ld = OPT["ld_in"]
    a(f"""
    s_cmp_ge_u32 s2, {NB}
    s_cbranch_scc1 L_k1_end
    """)
    if OPT["pf1"] == "1":
        code_prefetch(a, "part_in_kernel", "L_text_end", 57344, nv, 40)
        nv += 1
    a(f"""
    s_load_dwordx4 s[4:7], s[0:1], 8
    s_load_dwordx2 s[8:9], s[0:1], 32
    s_load_dwordx2 s[10:11], s[0:1], 104
    s_load_dwordx2 s[38:39], s[0:1], 0
    s_load_dwordx2 s[44:45], s[0:1], 48
    s_load_dwordx2 {sr(sDBG, 2)}, s[0:1], 96
    v_lshrrev_b32 v{vFOUR}, 6, v0
    v_lshlrev_b32 v{vX4}, 4, v0
    v_readfirstlane_b32 s{sWAVE}, v{vFOUR}
    v_add_u32 v{vX4b}, 0x10000, v{vX4}
    v_lshlrev_b32 v{vX2}, 3, v0
    v_lshlrev_b32 v{vTI}, 2, v0
    v_lshlrev_b32 v{vTA}, 1, v0
    v_mov_b32 v{vSTG}, 0
    v_mov_b32 v{vZERO}, 0
    s_mov_b32 s{sCB}, {CB4}
    v_mov_b32 v{vFOUR}, 4
    v_mul_u32_u24 v{vROW}, {4 * ROW1}, v0
    s_mov_b32 s{sTI[0]}, s2
    s_add_u32 s{sTI[1]}, s2, 256
    s_add_u32 s{sTI[2]}, s2, 512
    s_mul_i32 s{sLB}, s2, {NLAST}
    s_add_u32 s{sLB}, s{sLB}, {DYN0}
    s_mov_b32 s{sN}, 0
    s_waitcnt lgkmcnt(0)
    s_load_dword s46, s[44:45], 0
    """)
    stamp(a, 0)
    srd(a, sIN, 4, T * 4)
    srd(a, sOUT, 6, T * 4)
    srd(a, sANG, 8, T * 2)
    srd(a, sWS, 10, WS_BYTES)
    srd(a, sM, 38, E * 8)

    def loads(st, g):
        if g < 3:
            a(f"""
            buffer_load_dwordx4 {vr(st['i'] + 4 * g, 4)}, v{vX4}, {sr(sIN, 4)}, s{sA} offen {ld}
            buffer_load_dwordx4 {vr(st['o'] + 4 * g, 4)}, v{vX4}, {sr(sOUT, 4)}, s{sA} offen {ld}
            buffer_load_dwordx2 {vr(st['g'] + 2 * g, 2)}, v{vX2}, {sr(sANG, 4)}, s{sB} offen {ld}
            """)
        else:
            a(f"""
            buffer_load_dword v{st['i'] + 12}, v{vTI}, {sr(sIN, 4)}, s{sA} offen {ld}
            buffer_load_dword v{st['o'] + 12}, v{vTI}, {sr(sOUT, 4)}, s{sA} offen {ld}
            buffer_load_ushort v{st['g'] + 6}, v{vTA}, {sr(sANG, 4)}, s{sB} offen {ld}
            """)

    def load_group(k, g):
        a(f"""
        s_mul_i32 s{sB}, s{sTI[k]}, {N1 * 2}
        s_add_u32 s{sB}, s{sB}, {g * 8192}
        s_lshl_b32 s{sA}, s{sB}, 1
        """)
        loads(sets[k % 2], g)

    def claim_issue():
        lab = a.uid("ci")
        a(f"""
        s_cmp_lg_u32 s{sWAVE}, 0
        s_cbranch_scc1 {lab}
        s_mov_b32 s{sCL}, 1
        s_atomic_add s{sCL}, {sr(sDBG, 2)}, 0 glc
        {lab}:
        """)

    def claim_publish(n):
        lab = a.uid("cp")
        a(f"""
        s_cmp_lg_u32 s{sWAVE}, 0
        s_cbranch_scc1 {lab}
        v_mov_b32 v{vCL}, s{sCL}
        ds_write_b32 v{vZERO}, v{vCL} offset:{MISC + 4 + 4 * n}
        s_waitcnt lgkmcnt(0)
        {lab}:
        """)

    def claim_read(n):
        a(f"ds_read_b32 v{vCL}, v{vZERO} offset:{MISC + 4 + 4 * n}")

    def claimed_loads(g):
        r3 = int(OPT["r3"])
        r2 = NGRP - NB - r3
        assert r3 <= r2 <= NB
        if g == 0:
            a(f"""
            v_readfirstlane_b32 s{sG}, v{vCL}
            s_mov_b32 s{sN}, 1
            s_cmp_lt_u32 s{sG}, {r3}
            s_addc_u32 s{sN}, s{sN}, 0
            s_cmp_lt_u32 s{sG}, {r2}
            s_addc_u32 s{sN}, s{sN}, 0
            s_min_u32 s{sT}, s{sG}, {r3}
            s_min_u32 s{sU}, s{sG}, {r2}
            s_add_u32 s{sG}, s{sG}, s{sT}
            s_add_u32 s{sG}, s{sG}, s{sU}
            """)
        a(f"""
        s_add_u32 s{sB}, s{sG}, {g}
        s_cmp_gt_u32 s{sN}, {g}
        s_cselect_b32 s{sB}, s{sB}, {NGRP}
        s_lshl_b32 s{sB}, s{sB}, 13
        s_add_u32 s{sB}, s{sB}, {DYN0 * 2}
        s_lshl_b32 s{sA}, s{sB}, 1
        """)
        loads(sets[1], g)

    for g in range(4):
        load_group(0, g)
    a(f"""
    s_cmp_lg_u32 s{sWAVE}, 0
    s_cbranch_scc1 L_k1_noinit
    v_mov_b32 v{vSTG + 1}, 0
    v_mov_b32 v{vSTG + 2}, 0
    v_mov_b32 v{vSTG + 3}, 0
    ds_write_b128 v{vX4}, {vr(vSTG, 4)} offset:{HOFF}
    ds_write_b32 v{vSTG}, v{vSTG} offset:{MISC}
    s_cmp_lg_u32 s2, 0
    s_cbranch_scc1 L_k1_noinit
    s_mov_b32 s{sT}, {CNT}
    buffer_store_dword v{vSTG}, v{vTI}, {sr(sWS, 4)}, s{sT} offen
    L_k1_noinit:
    s_waitcnt lgkmcnt(0)
    s_lshl_b32 s46, s46, 16
    v_mov_b32 v{vF}, s46
    s_barrier
    """)
    for g in range(4):
        load_group(1, g)

    def copy_reads():
        lab = a.uid("cr")
        for i in range(4):
            a(f"ds_read_b128 {vr(vSTG + 4 * i, 4)}, v{vX4} offset:{BUF + i * 16384}")
        a(f"""
        s_cmp_ge_u32 s{sWAVE}, 14
        s_cbranch_scc1 {lab}
        ds_read_b128 {vr(vSTG + 16, 4)}, v{vX4b} offset:{BUF}
        {lab}:
        """)

    def copy_store(i, sTile):
        st = OPT["st1"]
        if i < 3:
            a(f"""
            s_mul_i32 s{sT}, s{sTile}, {N1 * 4}
            s_add_u32 s{sT}, s{sT}, {R1A + i * 16384}
            buffer_store_dwordx4 {vr(vSTG + 4 * i, 4)}, v{vX4}, {sr(sWS, 4)}, s{sT} offen {st}
            """)
        elif i == 3:
            a(f"""
            s_mul_i32 s{sT}, s{sTile}, {N1 * 4}
            s_add_u32 s{sT}, s{sT}, {R1A + 49152}
            s_mul_i32 s{sU}, s{sTile}, {N1 * 2}
            s_add_u32 s{sU}, s{sU}, {R1B - 4096}
            s_cmp_lt_u32 s{sWAVE}, 4
            s_cselect_b32 s{sT}, s{sT}, s{sU}
            buffer_store_dwordx4 {vr(vSTG + 12, 4)}, v{vX4}, {sr(sWS, 4)}, s{sT} offen {st}
            """)
        else:
            lab = a.uid("cs")
            a(f"""
            s_cmp_ge_u32 s{sWAVE}, 14
            s_cbranch_scc1 {lab}
            s_mul_i32 s{sT}, s{sTile}, {N1 * 2}
            s_add_u32 s{sT}, s{sT}, {R1B + 12288}
            buffer_store_dwordx4 {vr(vSTG + 16, 4)}, v{vX4}, {sr(sWS, 4)}, s{sT} offen {st}
            {lab}:
            """)

    def hist(st, js):
        for j in js:
            a(f"v_mul_hi_u32_u24 v{vRANK + j}, s{sCB}, v{st['i'] + j}")
        for j in js:
            a(f"v_lshl_or_b32 v{st['o'] + j}, v{st['i'] + j}, 20, v{st['o'] + j}")
        for j in js:
            a(f"v_and_b32 v{st['i'] + j}, 0x3fc, v{vRANK + j}")
        for j in js:
            a(f"ds_add_rtn_u32 v{vRANK + j}, v{st['i'] + j}, v{vFOUR} offset:{HOFF}")

    def cosines(regs):
        ops = ["v_lshlrev_b32 {x}, 16, {g}", "v_and_b32 {y}, 0xffff0000, {g}",
               f"v_mul_f32 {{x}}, v{vF}, {{x}}", f"v_mul_f32 {{y}}, v{vF}, {{y}}",
               "v_cvt_pk_bf16_f32 {g}, {x}, {y}",
               "v_lshlrev_b32 {x}, 16, {g}", "v_and_b32 {y}, 0xffff0000, {g}",
               "v_mul_f32 {x}, 0.15915494, {x}", "v_mul_f32 {y}, 0.15915494, {y}",
               "v_fract_f32 {x}, {x}", "v_fract_f32 {y}, {y}",
               "v_cos_f32 {x}, {x}", "v_cos_f32 {y}, {y}"]
        for op in ops:
            for n, g in enumerate(regs):
                a(op.format(g=f"v{g}", x=f"v{vC + 2 * n}", y=f"v{vC + 2 * n + 1}"))
        a("s_nop 0")
        if OPT["cosr"] == "1":
            for op in ops[4:7]:
                for n, g in enumerate(regs):
                    a(op.format(g=f"v{g}", x=f"v{vC + 2 * n}", y=f"v{vC + 2 * n + 1}"))
        for n, g in enumerate(regs):
            a(f"v_cvt_pk_f16_f32 v{g}, v{vC + 2 * n}, v{vC + 2 * n + 1}")

    def skip_unless(g, lab):
        a(f"""
        s_cmp_le_u32 s{sN}, {g}
        s_cbranch_scc1 {lab}
        """)

    def phase_h(k):
        st = sets[k % 2]
        if k > 0:
            copy_reads()
        if k == 1 and OPT["clpos"] == "0":
            claim_issue()
        if k > 0:
            a(f"s_waitcnt vmcnt({[0, 12, 9, 2 if OPT['mpos'] == '2' else 0][k]})")
        stores = [[0, 1], [2, 3], [4]] if k < 3 else [[0, 1], [2, 3, 4], []]
        for g in range(3):
            lab = a.uid("hg")
            if k == 0:
                a(f"s_waitcnt vmcnt({24 - 3 * g - 2})")
            if k == 3:
                skip_unless(g, lab)
            if OPT["prio1"] == "1":
                a(f"s_setprio {3 - g}")
            hist(st, range(4 * g, 4 * g + 4))
            if k == 3:
                cosines([st['g'] + 2 * g, st['g'] + 2 * g + 1])
                a(f"{lab}:")
            if k > 0:
                if g == 0:
                    a(f"s_waitcnt lgkmcnt({4 if k < 3 else 0})")
                for i in stores[g]:
                    copy_store(i, sTI[k - 1])
            if k == 0:
                a(f"s_waitcnt vmcnt({24 - 3 * g - 3})")
            if k == 1 and g == 1 and OPT["clpos"] == "1":
                claim_issue()
            if k < 3:
                cosines([st['g'] + 2 * g, st['g'] + 2 * g + 1])
        if k == 0:
            a("s_waitcnt vmcnt(12)")
        if k < 3:
            hist(st, [12])
            cosines([st['g'] + 6])
        a("s_waitcnt lgkmcnt(0)")
        if k == 1:
            claim_publish(0)
        a("s_barrier")

    def phase_p(k):
        lab = a.uid("p")
        c, z, b, x = vSTG, vSTG + 4, vSTG + 8, vSTG + 12
        a(f"""
        s_cmp_lg_u32 s{sWAVE}, 0
        s_cbranch_scc1 {lab}
        ds_read_b128 {vr(c, 4)}, v{vX4} offset:{HOFF}
        v_mov_b32 v{z}, 0
        v_mov_b32 v{z + 1}, 0
        v_mov_b32 v{z + 2}, 0
        v_mov_b32 v{z + 3}, 0
        s_waitcnt lgkmcnt(0)
        """)
        prefix_core(a, c, z, b, x, vX4, HOFF, POFF)
        a(f"""
        s_waitcnt lgkmcnt(0)
        {lab}:
        s_barrier
        """)

    def offsets_store(k):
        lab = a.uid("os")
        c, b = vSTG, vSTG + 8
        a(f"""
        s_cmp_lg_u32 s{sWAVE}, 0
        s_cbranch_scc1 {lab}
        s_and_b32 s{sT}, s2, 7
        s_mul_i32 s{sT}, s{sT}, {96 if k < 3 else 32}
        s_lshr_b32 s{sU}, s2, 3
        s_add_u32 s{sT}, s{sT}, s{sU}
        s_lshl_b32 s{sT}, s{sT}, 2
        s_add_u32 s{sT}, s{sT}, {OFF1 + (k * 128 if k < 3 else 768 * 4)}
        """)
        for j in range(4):
            a(f"v_lshl_or_b32 v{c + j}, v{c + j}, 16, v{b + j}")
        for j in range(4):
            a(f"buffer_store_dword v{c + j}, v{vROW}, {sr(sWS, 4)}, s{sT} offen {OPT['st_off']}" if OPT["st_off"] != "skip" else "s_nop 0")
            if j < 3:
                a(f"s_add_u32 s{sT}, s{sT}, {ROW1}")
        a(f"{lab}:")

    def scatter(st, js):
        for j in js:
            a(f"v_add_u32 v{vRANK + j}, v{st['i'] + j}, v{vRANK + j}")
        for j in js:
            a(f"ds_write_b32 v{vRANK + j}, v{st['o'] + j} offset:{BUF}")
        for j in js:
            a(f"v_lshrrev_b32 v{st['i'] + j}, 1, v{vRANK + j}")
        for j in js:
            op = "ds_write_b16" if j % 2 == 0 else "ds_write_b16_d16_hi"
            a(f"{op} v{st['i'] + j}, v{st['g'] + j // 2} offset:{BUFB}")

    vM8 = sets[0]['i']

    def phase_s(k):
        st = sets[k % 2]
        lab = a.uid("se")
        if k == 1:
            claim_read(0)
        if k < 3:
            for j in range(13):
                a(f"ds_read_b32 v{st['i'] + j}, v{st['i'] + j} offset:{POFF}")
        else:
            l2 = a.uid("sr")
            for g in range(3):
                skip_unless(g, l2)
                for j in range(4 * g, 4 * g + 4):
                    a(f"ds_read_b32 v{st['i'] + j}, v{st['i'] + j} offset:{POFF}")
            a(f"{l2}:")
        offsets_store(k)
        if k == 3 and OPT["mpos"] == "3":
            a(f"s_mul_i32 s{sU}, s2, {SPAN}")
            slice_loads(a, sM, sU, sT, vX4, vC, vM8)
        a("s_waitcnt lgkmcnt(0)")
        for g in range(3):
            if k == 3:
                skip_unless(g, lab)
            if OPT["prio1"] == "1":
                a(f"s_setprio {3 - g}")
            scatter(st, range(4 * g, 4 * g + 4))
            if k == 0:
                load_group(2, g)
            if k == 1:
                claimed_loads(g)
        if k < 3:
            scatter(st, [12])
        if k == 0:
            load_group(2, 3)
        if k == 2 and OPT["mpos"] == "2":
            a(f"s_mul_i32 s{sU}, s2, {SPAN}")
            slice_loads(a, sM, sU, sT, vX4, vC, vM8)
        a(f"""
        {lab}:
        s_waitcnt lgkmcnt(0)
        """)
        a("s_barrier")

    for k in range(4):
        stamp(a, 4 + 4 * k)
        phase_h(k)
        stamp(a, 5 + 4 * k)
        phase_p(k)
        stamp(a, 6 + 4 * k)
        phase_s(k)
    stamp(a, 1)
    a(f"""
    s_lshl_b32 s{sA}, s{sN}, 3
    s_min_u32 s{sB}, s{sA}, 16
    s_sub_i32 s{sA}, s{sA}, 16
    """)
    parts = [(f"s_cmp_gt_u32 s{sN}, {i}", BUF + i * 16384, 2, R1A + i * 16384) for i in range(3)]
    parts += [(f"s_cmp_lt_u32 s{sWAVE}, s{sB}", BUFB, 1, R1B), (f"s_cmp_lt_i32 s{sWAVE}, s{sA}", BUFB + 16384 - 65536, 1, R1B + 16384)]
    for i, (cond, off, sh, g) in enumerate(parts):
        lab = a.uid("fr")
        a(f"""
        {cond}
        s_cbranch_scc0 {lab}
        ds_read_b128 {vr(vSTG + 4 * i, 4)}, v{vX4 if i < 4 else vX4b} offset:{off}
        {lab}:
        """)
    a("s_waitcnt lgkmcnt(0)")
    for i, (cond, off, sh, g) in enumerate(parts):
        a(f"""
        {cond}
        s_cselect_b64 exec, -1, 0
        s_lshl_b32 s{sT}, s{sLB}, {sh}
        s_add_u32 s{sT}, s{sT}, {g}
        buffer_store_dwordx4 {vr(vSTG + 4 * i, 4)}, v{vX4}, {sr(sWS, 4)}, s{sT} offen {OPT['st1']}
        """)
    a("""
    s_mov_b64 exec, -1
    s_waitcnt vmcnt(5)
    """)
    for i in range(8):
        a(f"v_and_b32 v{vM8 + i}, 0x7fff7fff, v{vM8 + i}")
    for d, x, y in ((0, 0, 1), (2, 2, 3), (4, 4, 5), (6, 6, 7), (0, 0, 2), (4, 4, 6), (0, 0, 4)):
        a(f"v_pk_max_u16 v{vM8 + d}, v{vM8 + x}, v{vM8 + y}")
    a(f"""
    v_lshrrev_b32 v{vC}, 16, v{vM8}
    v_and_b32 v{vM8}, 0xffff, v{vM8}
    v_max_u32 v{vC}, v{vC}, v{vM8}
    v_mov_b32 v{vC + 1}, 0
    """)
    wave_scan(a, "v_max_u32", vC)
    a(f"""
    s_lshl_b64 exec, 1, 63
    ds_max_u32 v{vC + 1}, v{vC} offset:{MISC}
    s_waitcnt lgkmcnt(0)
    s_barrier
    s_cmp_lg_u32 s{sWAVE}, 0
    s_cbranch_scc1 L_k1_nomax
    ds_read_b32 v{vC}, v{vC + 1} offset:{MISC}
    s_lshl_b32 s{sT}, s2, 2
    s_add_u32 s{sT}, s{sT}, {MAXS}
    s_waitcnt lgkmcnt(0)
    buffer_store_dword v{vC}, v{vC + 1}, {sr(sWS, 4)}, s{sT} offen
    L_k1_nomax:
    """)
    stamp_flush(a, 0, sWS, sWAVE)
    a("""
    L_k1_end:
    s_endpgm
    """)
    return name, nv, 56, BUFB + N1 * 2


def refill_code(a, vIDX, vLEN, vW, vT, sMASK, pend=None):
    a(f"""
    s_mov_b64 exec, -1
    v_add_u32 v{vIDX}, {SEG}, v{vIDX}
    v_subrev_u32 v{vLEN}, {SEG}, v{vLEN}
    v_max_i32 v{vLEN}, 0, v{vLEN}
    """)
    if pend is not None:
        cur, pen = pend
        a(f"""
        v_cmp_eq_u32 vcc, 0, v{vLEN}
        s_nop 1
        """)
        for c, p in zip(cur, pen):
            a(f"v_cndmask_b32 v{c}, v{c}, v{p}, vcc")
        a(f"v_cndmask_b32 v{pen[1]}, v{pen[1]}, 0, vcc")
    a(f"""
    v_min_u32 v{vT}, {SEG}, v{vLEN}
    v_cmp_lt_u32 {sr(sMASK, 2)}, 0, v{vLEN}
    v_lshl_or_b32 v{vW}, v{vIDX}, 6, v{vT}
    s_nop 3
    """)


def k2(a):
    name = "gather_part_kernel"
    kernel_header(a, name)
    HOFF, POFF, MISC, SLICE, SORT = 0, 1024, 2048, 4096, 36864
    LDS = SORT + NS * 1024 * 8
    sWAVE, sB = 3, 4
    sWS, sM = 8, 12
    sK, sCB, sDONE, sNOLD = 16, 17, 18, 19
    sMASK, sQUOTA, sNT, sKT, sT, sU, sL = 20, 22, 23, 24, 25, 26, 27
    sBASE, sNPREV, sR1B, sBPREV, sQ = 28, 29, 31, 64, 65
    sW = [32, 48]
    sCM = [66, 68, 70]
    vLANE, vX4, vXA, vXB, vT2, vEIGHT, vIDX, vLEN, vW, vZERO, vROW = 1, 2, 3, 4, 5, 6, 7, 8, 9, 10, 11
    vT = 12
    vSTG = 16
    vR = [28, 28 + 2 * NS]
    vZ = 28 + 4 * NS
    nv = vZ + 2 * NS
    A = lambda st, s: vR[st] + 2 * s
    G = lambda st, s: vR[st] + 2 * s + 1
    Z = lambda s: vZ + 2 * s
    ld1 = OPT["ld1"]

    a(f"""
    s_cmp_ge_u32 s2, {NB}
    s_cbranch_scc1 L_k2_end
    """)
    if OPT["pf2"] == "1":
        code_prefetch(a, "gather_part_kernel", "L_k2_last", 24576, nv, 72)
        nv += 1
    a(f"""
    s_load_dwordx2 s[6:7], s[0:1], 104
    s_load_dwordx2 s[32:33], s[0:1], 0
    v_lshrrev_b32 v{vEIGHT}, 6, v0
    v_and_b32 v{vLANE}, 63, v0
    v_readfirstlane_b32 s{sWAVE}, v{vEIGHT}
    s_and_b32 s{sB}, s2, 7
    s_lshl_b32 s{sB}, s{sB}, 5
    s_lshr_b32 s{sT}, s2, 3
    s_add_u32 s{sB}, s{sB}, s{sT}
    v_lshlrev_b32 v{vX4}, 4, v0
    v_lshlrev_b32 v{vT2}, 1, v0
    s_mul_i32 s{sU}, s{sWAVE}, 48
    v_add_u32 v{vIDX}, s{sU}, v{vLANE}
    v_lshl_add_u32 v{vW}, v{vLANE}, 4, s{sWAVE}
    v_cmp_gt_u32 vcc, 48, v{vLANE}
    v_lshlrev_b32 v{vT + 3}, 4, v{vLANE}
    s_nop 0
    v_cndmask_b32 v{vIDX}, v{vW}, v{vIDX}, vcc
    v_lshlrev_b32 v{vT + 2}, 2, v{vIDX}
    v_mov_b32 v{vZERO}, 0
    v_mov_b32 v{vEIGHT}, 8
    s_mul_i32 s{sT}, s{sB}, {ROW1}
    s_add_u32 s{sT}, s{sT}, {OFF1}
    s_mov_b32 s{sU}, {MAXS}
    s_waitcnt lgkmcnt(0)
    """)
    stamp(a, 0)
    srd(a, sWS, 6, WS_BYTES)
    a(f"""
    buffer_load_dword v{vLEN}, v{vT + 2}, {sr(sWS, 4)}, s{sT} offen
    buffer_load_dwordx4 {vr(vZ, 4)}, v{vT + 3}, {sr(sWS, 4)}, s{sU} offen
    """)
    srd(a, sM, 32, E * 8)
    a(f"s_mul_i32 s{sU}, s{sB}, {SPAN}")
    slice_loads(a, sM, sU, sT, vX4, vT + 1, vSTG)
    a(f"""
    v_lshlrev_b32 v{vT + 2}, 2, v0
    ds_write_b32 v{vT + 2}, v{vZERO}
    s_and_b32 s{sU}, s{sU}, -2
    v_add_u32 v{vXA}, {SORT}, v{vX4}
    v_add_u32 v{vXB}, {SORT + 65536}, v{vX4}
    v_mul_u32_u24 v{vROW}, {4 * ROW2}, v{vLANE}
    s_mov_b32 s{sK}, {MAGIC}
    s_mov_b32 s{sCB}, {CB4}
    s_mov_b32 s{sR1B}, {R1B}
    s_mov_b32 s{sDONE}, 0
    s_mov_b32 s{sNOLD}, 0
    v_add_u32 v{vSTG + 8}, s{sU}, v{vT2}
    v_and_b32 v{vSTG + 8}, 0xfff, v{vSTG + 8}
    v_lshlrev_b32 v{vSTG + 8}, 3, v{vSTG + 8}
    v_xor_b32 v{vSTG + 9}, 0x4000, v{vSTG + 8}
    v_and_b32 v{vT}, 31, v{vIDX}
    v_lshrrev_b32 v{vT + 1}, 5, v{vIDX}
    v_mul_u32_u24 v{vT + 2}, 43, v{vT + 1}
    v_lshrrev_b32 v{vT + 2}, 7, v{vT + 2}
    v_mad_i32_i24 v{vT + 3}, v{vT + 2}, -3, v{vT + 1}
    v_lshl_add_u32 v{vT + 2}, v{vT}, 3, v{vT + 2}
    v_lshl_add_u32 v{vT + 2}, v{vT + 3}, 8, v{vT + 2}
    v_mul_u32_u24 v{vT + 2}, {N1}, v{vT + 2}
    v_subrev_u32 v{vT + 1}, 24, v{vT + 1}
    v_lshl_add_u32 v{vT}, v{vT}, 3, v{vT + 1}
    v_cmp_gt_u32 vcc, 48, v{vLANE}
    v_mul_u32_u24 v{vT}, {NLAST}, v{vT}
    v_add_u32 v{vT}, {DYN0}, v{vT}
    v_cndmask_b32 v{vIDX}, v{vT}, v{vT + 2}, vcc
    """)
    for st in range(2):
        for s in range(NS):
            a(f"v_mov_b32 v{A(st, s)}, 0")
            a(f"v_mov_b32 v{G(st, s)}, 0")
    a(f"""
    s_waitcnt vmcnt(3)
    v_bfe_u32 v{vT}, v{vLEN}, 2, 14
    v_lshrrev_b32 v{vLEN}, 18, v{vLEN}
    v_add_u32 v{vIDX}, v{vIDX}, v{vT}
    v_add_u32 v{vT + 1}, {SEG - 1}, v{vLEN}
    v_mul_u32_u24 v{vT + 1}, 16645, v{vT + 1}
    v_lshrrev_b32 v{vT + 1}, 20, v{vT + 1}
    v_min_u32 v{vT + 2}, {SEG}, v{vLEN}
    v_cmp_lt_u32 {sr(sMASK, 2)}, 0, v{vLEN}
    v_lshl_or_b32 v{vW}, v{vIDX}, 6, v{vT + 2}
    """)
    wave_scan(a, "v_add_u32", vT + 1)
    a(f"""
    s_nop 0
    v_readlane_b32 s{sT}, v{vT + 1}, 63
    s_nop 3
    s_add_u32 s{sQUOTA}, s{sT}, {FIX - 1}
    s_mul_i32 s{sQUOTA}, s{sQUOTA}, 52429
    s_lshr_b32 s{sQUOTA}, s{sQUOTA}, 18
    s_add_u32 s{sNT}, s{sT}, {NS - 1}
    s_mul_i32 s{sNT}, s{sNT}, 34953
    s_lshr_b32 s{sNT}, s{sNT}, 19
    """)

    def pop(st, s):
        back, stub, empty, issue = a.uid("pb"), a.uid("pr"), a.uid("pe"), a.uid("pi")
        w = sW[st] + s
        if s >= 12 and OPT["greedy"] != "1":
            a(f"""
            s_cmp_le_u32 s{sQUOTA}, {s}
            s_cbranch_scc1 {empty}
            """)
        a(f"""
        s_cmp_eq_u64 {sr(sMASK, 2)}, 0
        s_cbranch_scc1 {stub}
        {back}:
        s_ff1_i32_b64 s{sL}, {sr(sMASK, 2)}
        s_bitset0_b64 {sr(sMASK, 2)}, s{sL}
        v_readlane_b32 s{w}, v{vW}, s{sL}
        s_lshr_b32 s{sT}, s{w}, 6
        s_bfm_b64 exec, s{w}, 0
        v_add_lshl_u32 v{A(st, s)}, s{sT}, v{vLANE}, 2
        v_lshrrev_b32 v{G(st, s)}, 1, v{A(st, s)}
        {issue}:
        buffer_load_dword v{A(st, s)}, v{A(st, s)}, {sr(sWS, 4)}, 0 offen {ld1}
        buffer_load_ushort v{G(st, s)}, v{G(st, s)}, {sr(sWS, 4)}, s{sR1B} offen {ld1}
        """)
        a.begin_tail()
        a(f"""
        {stub}:
        s_cmp_lg_u32 s{sDONE}, 0
        s_cbranch_scc1 {empty}
        """)
        refill_code(a, vIDX, vLEN, vW, vT + 3, sMASK)
        a(f"""
        s_cmp_eq_u64 {sr(sMASK, 2)}, 0
        s_cbranch_scc0 {back}
        s_mov_b32 s{sDONE}, 1
        {empty}:
        s_mov_b32 s{w}, 0
        s_mov_b64 exec, 0
        s_branch {issue}
        """)
        a.end_tail()

    stamp(a, 60)
    for s in range(NS):
        pop(0, s)
    a("s_mov_b64 exec, -1")
    wave_scan(a, "v_add_u32", vT)
    a(f"""
    v_mov_b32 v{vT + 1}, s{sNT}
    s_waitcnt lgkmcnt(0)
    s_barrier
    s_lshl_b64 exec, 1, 63
    ds_max_u32 v{vZERO}, v{vT + 1} offset:{MISC}
    ds_add_u32 v{vZERO}, v{vT} offset:{MISC + 4}
    """)
    early2 = OPT["k2early"] == "1"
    if not early2:
        for s in range(NS):
            pop(1, s)
    a(f"""
    s_mov_b64 exec, -1
    s_waitcnt vmcnt({(2 if early2 else 4) * NS})
    """)
    stamp(a, 61)
    global_max(a, vZ, sT)
    a(f"""
    v_rcp_f32 v{vT}, s{sT}
    s_nop 0
    v_mul_f32 v{vT}, {float(QMAX * 4)}, v{vT}
    """.replace(str(float(QMAX * 4)), "0x467f0000"))
    for i in range(8):
        a(f"""
        v_lshlrev_b32 v{vT + 2}, 16, v{vSTG + i}
        v_and_b32 v{vT + 3}, 0xffff0000, v{vSTG + i}
        v_mul_f32 v{vT + 2}, v{vT}, v{vT + 2}
        v_mul_f32 v{vT + 3}, v{vT}, v{vT + 3}
        v_cvt_pk_f16_f32 v{vSTG + i}, v{vT + 2}, v{vT + 3}
        """)
    a(f"""
    ds_write_b128 v{vSTG + 8}, {vr(vSTG, 4)} offset:{SLICE}
    ds_write_b128 v{vSTG + 9}, {vr(vSTG + 4, 4)} offset:{SLICE}
    s_waitcnt lgkmcnt(0)
    s_barrier
    ds_read_b64 {vr(vT, 2)}, v{vZERO} offset:{MISC}
    s_waitcnt lgkmcnt(0)
    v_readfirstlane_b32 s{sNT}, v{vT}
    v_readfirstlane_b32 s{sBASE}, v{vT + 1}
    s_nop 3
    s_max_u32 s{sNT}, s{sNT}, {FIX}
    s_mul_i32 s{sT}, s{sB}, {PAD2}
    s_add_u32 s{sBASE}, s{sBASE}, s{sT}
    s_add_u32 s{sBASE}, s{sBASE}, 15
    s_and_b32 s{sBASE}, s{sBASE}, -16
    s_mov_b32 s{sKT}, 0
    s_mov_b32 s{sNPREV}, 0
    s_mov_b32 s{sBPREV}, {R2}
    """)

    def copy_reads(chunks, regs, masks):
        a("s_mov_b64 exec, -1")
        for i, m in zip(chunks, masks):
            a(f"""
            s_sub_i32 s{sT}, s{sNPREV}, {i * 2048}
            v_cmp_gt_i32 {sr(m, 2)}, s{sT}, v{vT2}
            """)
        for i, r, m in zip(chunks, regs, masks):
            addr = vXA if i < 4 else vXB
            a(f"""
            s_mov_b64 exec, {sr(m, 2)}
            ds_read_b128 {vr(r, 4)}, v{addr} offset:{(i % 4) * 16384}
            """)

    def copy_stores(chunks, regs, masks):
        for i, r, m in zip(chunks, regs, masks):
            lab = a.uid("cs")
            a(f"""
            s_mov_b64 exec, {sr(m, 2)}
            s_cbranch_execz {lab}
            s_add_u32 s{sT}, s{sBPREV}, {i * 16384}
            buffer_store_dwordx4 {vr(r, 4)}, v{vX4}, {sr(sWS, 4)}, s{sT} offen {OPT['st2']}
            {lab}:
            """)

    def gathers(st, bt):
        for s in bt:
            a(f"""
            s_bfm_b64 exec, s{sW[st] + s}, 0
            v_lshrrev_b32 v{Z(s)}, 17, v{A(st, s)}
            v_and_b32 v{Z(s)}, 0x7ff8, v{Z(s)}
            ds_read_b64 {vr(Z(s), 2)}, v{Z(s)} offset:{SLICE}
            """)

    def encode(st, bt):
        for s in bt:
            z, aa, g = Z(s), A(st, s), G(st, s)
            a(f"""
            s_bfm_b64 exec, s{sW[st] + s}, 0
            v_fma_mix_f32 v{vT}, v{z}, v{g}, s{sK} op_sel_hi:[1,1,0]
            v_fma_mix_f32 v{vT + 1}, v{z}, v{g}, s{sK} op_sel:[1,0,0] op_sel_hi:[1,1,0]
            v_fma_mix_f32 v{vT + 2}, v{z + 1}, v{g}, s{sK} op_sel_hi:[1,1,0]
            v_fma_mix_f32 v{vT + 3}, v{z + 1}, v{g}, s{sK} op_sel:[1,0,0] op_sel_hi:[1,1,0]
            v_and_b32 v{g}, 0xfffff, v{aa}
            v_lshl_add_u32 v{z}, v{vT + 1}, 13, v{vT}
            v_mul_hi_u32_u24 v{g}, s{sCB}, v{g}
            v_lshl_add_u32 v{z + 1}, v{vT + 3}, 13, v{vT + 2}
            v_lshrrev_b32 v{vT}, 6, v{aa}
            v_lshl_add_u32 v{z}, v{aa}, 26, v{z}
            v_and_b32 v{aa}, 0x3fc, v{g}
            v_lshl_add_u32 v{z + 1}, v{vT}, 26, v{z + 1}
            ds_add_rtn_u32 v{g}, v{aa}, v{vEIGHT} offset:{HOFF}
            """)

    def phase_h(st):
        greedy = OPT["greedy"] == "1"
        if greedy:
            b0, b1, b2, b3 = range(0, 5), range(5, 10), range(10, 15), None
        else:
            nm = int(OPT["nmain"])
            b0, b1, b2, b3 = range(0, 5), range(5, nm - 4), range(nm - 4, nm), range(nm, 15)
        regs = [vSTG, vSTG + 4, vSTG + 8]
        lab, w0, w1, short = a.uid("h3"), a.uid("hw0"), a.uid("hw1"), a.uid("hs")
        p2 = OPT["prio2"] == "1"
        if p2:
            a("s_setprio 3")
        copy_reads([0, 1, 2], regs, sCM)
        a(f"""
        s_cmp_lg_u32 s{sNOLD}, 0
        s_cbranch_scc1 {w0}
        s_waitcnt vmcnt({2 * NS})
        {w1}:
        """)
        a.begin_tail()
        a(f"""
        {w0}:
        s_waitcnt vmcnt(0)
        s_branch {w1}
        """)
        a.end_tail()
        LAG = int(OPT["hlag"])
        if LAG:
            n = 15 if greedy else int(OPT["nmain"])
            ds = [("C", 0), ("C", 1), ("C", 2)]
            swaps = {1: ([0, 1, 2], [3, 4, 5]), 5: ([3, 4, 5], [6, 7]), 9: ([6, 7], [])}
            for s in range(n + LAG):
                if s < n:
                    gathers(st, [s])
                    ds.append(("G", s))
                if s == LAG - 1:
                    a(f"""
                    s_cmp_eq_u32 s{sW[st] + LAG}, 0
                    s_cbranch_scc1 {short}
                    """)
                if s >= LAG:
                    e = s - LAG
                    tags = [("G", e)] + ([("C", swaps[e][0][-1])] if e in swaps else [])
                    a(f"s_waitcnt lgkmcnt({len(ds) - 1 - max(ds.index(t) for t in tags)})")
                    if e in swaps:
                        copy_stores(swaps[e][0], regs, sCM)
                        if swaps[e][1]:
                            copy_reads(swaps[e][1], regs, sCM)
                            ds.extend(("C", i) for i in swaps[e][1])
                    encode(st, [e])
                    ds.append(("R", e))
                    if p2 and e in (3, 7, 10):
                        a(f"s_setprio {2 - (3, 7, 10).index(e)}")
            b0 = range(LAG)
        else:
            gathers(st, b0)
            a(f"""
            s_cmp_eq_u32 s{sW[st] + 5}, 0
            s_cbranch_scc1 {short}
            """)
            gathers(st, b1)
            a(f"s_waitcnt lgkmcnt({len(b1)})")
            copy_stores([0, 1, 2], regs, sCM)
            copy_reads([3, 4, 5], regs, sCM)
            encode(st, b0)
            if p2:
                a("s_setprio 2")
            gathers(st, b2)
            a(f"s_waitcnt lgkmcnt({len(b0) + len(b2)})")
            copy_stores([3, 4, 5], regs, sCM)
            copy_reads([6, 7], regs, sCM)
            encode(st, b1)
            if p2:
                a("s_setprio 1")
            a(f"s_waitcnt lgkmcnt({len(b1)})")
            copy_stores([6, 7], regs, sCM)
            encode(st, b2)
        if b3:
            a(f"""
            s_cmp_eq_u32 s{sW[st] + b3[0]}, 0
            s_cbranch_scc1 {lab}
            """)
            gathers(st, b3)
            a("s_waitcnt lgkmcnt(0)")
            encode(st, b3)
        a(f"""
        {lab}:
        s_mov_b64 exec, -1
        s_waitcnt lgkmcnt(0)
        s_barrier
        """)
        a.begin_tail()
        a(f"""
        {short}:
        s_waitcnt lgkmcnt(0)
        """)
        copy_stores([0, 1, 2], regs, sCM)
        copy_reads([3, 4, 5], regs, sCM)
        a("s_waitcnt lgkmcnt(0)")
        copy_stores([3, 4, 5], regs, sCM)
        copy_reads([6, 7], regs, sCM)
        encode(st, b0)
        a(f"s_waitcnt lgkmcnt({len(b0)})")
        copy_stores([6, 7], regs, sCM)
        a(f"s_branch {lab}")
        a.end_tail()

    def phase_h_first():
        bs = [range(0, 5), range(5, 10), range(10, 15)]
        for n, bt in enumerate(bs):
            a(f"s_waitcnt vmcnt({2 * NS - 10})")
            gathers(0, bt)
            for s in bt:
                pop(1, s)
            if n:
                a("s_waitcnt lgkmcnt(5)")
                encode(0, bs[n - 1])
        a("s_waitcnt lgkmcnt(5)")
        encode(0, bs[2])
        a("""
        s_mov_b64 exec, -1
        s_waitcnt lgkmcnt(0)
        s_barrier
        s_branch L_k2_afterh
        """)

    c, z4, b4, x = vSTG, vSTG + 4, vSTG + 8, vT

    def phase_p():
        lab = a.uid("p")
        a(f"""
        s_cmp_lg_u32 s{sWAVE}, 0
        s_cbranch_scc1 {lab}
        ds_read_b128 {vr(c, 4)}, v{vX4} offset:{HOFF}
        v_mov_b32 v{z4}, 0
        v_mov_b32 v{z4 + 1}, 0
        v_mov_b32 v{z4 + 2}, 0
        v_mov_b32 v{z4 + 3}, 0
        s_waitcnt lgkmcnt(0)
        """)
        prefix_core(a, c, z4, b4, x, vX4, HOFF, POFF)
        a(f"""
        s_lshl_b64 exec, 1, 63
        ds_write_b32 v{vZERO}, v{x} offset:{MISC + 16}
        s_mov_b64 exec, -1
        s_waitcnt lgkmcnt(0)
        {lab}:
        s_barrier
        """)

    def offsets_store():
        lab, ovf, back = a.uid("os"), a.uid("ovf"), a.uid("ovfback")
        a(f"""
        s_cmp_lg_u32 s{sWAVE}, 0
        s_cbranch_scc1 {lab}
        s_mov_b64 exec, -1
        s_lshl_b32 s{sQ}, s{sKT}, 8
        s_add_u32 s{sQ}, s{sQ}, s{sB}
        s_cmp_ge_u32 s{sKT}, {FIX}
        s_cbranch_scc1 {ovf}
        {back}:
        s_lshl_b32 s{sQ}, s{sQ}, 2
        s_add_u32 s{sT}, s{sQ}, {OFF2}
        """)
        for j in range(4):
            a(f"v_lshrrev_b32 v{b4 + j}, 3, v{b4 + j}")
        for j in range(4):
            a(f"v_lshl_or_b32 v{c + j}, v{c + j}, 13, v{b4 + j}")
        for j in range(4):
            a(f"buffer_store_dword v{c + j}, v{vROW}, {sr(sWS, 4)}, s{sT} offen {OPT['st_off']}" if OPT["st_off"] != "skip" else "s_nop 0")
            if j < 3:
                a(f"s_add_u32 s{sT}, s{sT}, {ROW2}")
        a(f"""
        v_mov_b32 v{z4}, s{sBASE}
        s_add_u32 s{sT}, s{sQ}, {DIR2}
        s_mov_b64 exec, 1
        buffer_store_dword v{z4}, v{vZERO}, {sr(sWS, 4)}, s{sT} offen
        {lab}:
        """)
        a.begin_tail()
        a(f"""
        {ovf}:
        s_mov_b64 exec, 1
        v_mov_b32 v{z4}, 1
        s_mov_b32 s{sT}, {CNT}
        buffer_atomic_add v{z4}, v{vZERO}, {sr(sWS, 4)}, s{sT} offen sc0
        s_waitcnt vmcnt(0)
        v_readfirstlane_b32 s{sQ}, v{z4}
        s_mov_b64 exec, -1
        s_nop 3
        s_add_u32 s{sQ}, s{sQ}, {FIX * NB}
        s_branch {back}
        """)
        a.end_tail()

    def phase_s(st):
        l1, nop, fin = a.uid("sa"), a.uid("sn"), a.uid("sf")
        a(f"ds_read_b32 v{vT}, v{vZERO} offset:{MISC + 16}")
        for s in range(NS):
            if s in (5, int(OPT["nmain"])):
                a(f"""
                s_cmp_eq_u32 s{sW[st] + s}, 0
                s_cbranch_scc1 {l1}
                """)
            a(f"""
            s_bfm_b64 exec, s{sW[st] + s}, 0
            ds_read_b32 v{A(st, s)}, v{A(st, s)} offset:{POFF}
            """)
        a(f"{l1}:")
        offsets_store()
        a(f"""
        s_mov_b64 exec, -1
        s_mov_b32 s{sNOLD}, s{sDONE}
        s_lshl_b32 s{sBPREV}, s{sBASE}, 3
        s_add_u32 s{sBPREV}, s{sBPREV}, {R2}
        s_cmp_lg_u32 s{sDONE}, 0
        s_waitcnt lgkmcnt(0)
        v_readfirstlane_b32 s{sNPREV}, v{vT}
        s_cbranch_scc1 {nop}
        """)

        def put(s):
            a(f"""
            s_bfm_b64 exec, s{sW[st] + s}, 0
            v_add_u32 v{A(st, s)}, v{A(st, s)}, v{G(st, s)}
            ds_write_b64 v{A(st, s)}, {vr(Z(s), 2)} offset:{SORT}
            """)
        for s in range(NS):
            if OPT["prio2"] == "1" and s in (0, 4, 8, 11):
                a(f"s_setprio {3 - (0, 4, 8, 11).index(s)}")
            put(s)
            pop(st, s)
        a(f"""
        {fin}:
        s_lshr_b32 s{sNPREV}, s{sNPREV}, 3
        s_add_u32 s{sNPREV}, s{sNPREV}, 15
        s_and_b32 s{sNPREV}, s{sNPREV}, -16
        s_add_u32 s{sBASE}, s{sBASE}, s{sNPREV}
        s_waitcnt lgkmcnt(0)
        s_barrier
        """)
        a.begin_tail()
        a(f"{nop}:")
        for s in range(NS):
            if s in (5, 10):
                a(f"""
                s_cmp_eq_u32 s{sW[st] + s}, 0
                s_cbranch_scc1 {fin}
                """)
            put(s)
            a(f"s_mov_b32 s{sW[st] + s}, 0")
        a(f"s_branch {fin}")
        a.end_tail()

    if early2:
        stamp(a, 4, sKT)
        phase_h_first()
    a("L_k2_loop:")
    for st in range(2):
        stamp(a, 4, sKT)
        phase_h(st)
        if st == 0:
            a("L_k2_afterh:")
        stamp(a, 5, sKT)
        phase_p()
        stamp(a, 6, sKT)
        phase_s(st)
        a(f"""
        s_add_u32 s{sKT}, s{sKT}, 1
        s_cmp_ge_u32 s{sKT}, s{sNT}
        """)
        a("s_cbranch_scc1 L_k2_final" if st == 0 else "s_cbranch_scc0 L_k2_loop")
    a("L_k2_final:")
    stamp(a, 1)
    regs = [vSTG, vSTG + 4, vSTG + 8] + [vZ + 4 * i for i in range(5)]
    masks = [32 + 2 * i for i in range(8)]
    copy_reads(list(range(8)), regs, masks)
    a("s_waitcnt lgkmcnt(0)")
    copy_stores(list(range(8)), regs, masks)
    stamp_flush(a, 1, sWS, sWAVE)
    a("""
    L_k2_end:
    s_endpgm
    """)
    a.flush_tail()
    a("L_k2_last:")
    return name, nv, 80, LDS


def k3(a):
    name = "accum_out_kernel"
    kernel_header(a, name)
    D = int(OPT["d3"])
    ACC, MISC = 0, 1024
    LDS = 131072
    sWAVE, sB = 3, 4
    sWS, sM, sDI, sOUT = 8, 12, 16, 20
    sMASK, sT, sU, sL, sLIVE, sR2 = 24, 26, 27, 28, 29, 30
    sNE, sQB, sPASS, sBAS, sUNIT, sDONE = 31, 32, 33, 34, 35, 5
    sC, sP, sSEL = 36, 38, 6
    sW = 40
    sWD, sWU, sC8, sWX = 56, 64, 72, 76
    vLANE, vZERO, vIDX, vLEN, vIDX2, vLEN2, vW, vQ2 = 1, 2, 3, 4, 5, 6, 7, 8
    vT = 10
    vZ = 20
    vM = vZ + 2 * D
    vS = vM + 8
    vRR = vS + 16
    vFA = vRR + 16
    vDI = vFA + 16
    vE8 = vDI + 4
    vRB = vE8 + 4
    nrb = 2
    nv = vRB + 8 * nrb
    Z = lambda i: vZ + 2 * i
    EPOCH = 512 // D

    a(f"""
    s_cmp_ge_u32 s2, {NB}
    s_cbranch_scc1 L_k3_end
    """)
    if OPT["pf3"] == "1":
        code_prefetch(a, "accum_out_kernel", "L_text_end", 16384, nv, 76)
        nv += 1
    a(f"""
    s_load_dwordx2 s[6:7], s[0:1], 104
    s_load_dwordx2 s[36:37], s[0:1], 0
    s_load_dwordx2 s[38:39], s[0:1], 24
    s_load_dwordx2 s[40:41], s[0:1], 88
    s_load_dwordx2 s[42:43], s[0:1], 40
    s_load_dwordx8 s[44:51], s[0:1], 56
    v_lshrrev_b32 v{vT}, 6, v0
    v_and_b32 v{vLANE}, 63, v0
    v_readfirstlane_b32 s{sWAVE}, v{vT}
    s_and_b32 s{sB}, s2, 7
    s_lshl_b32 s{sB}, s{sB}, 5
    s_lshr_b32 s{sT}, s2, 3
    s_add_u32 s{sB}, s{sB}, s{sT}
    v_mov_b32 v{vZERO}, 0
    """)
    cs = [int(x) for x in OPT["share3"].split(",")]
    assert sum(cs) == 64
    pack = lambda v: v[0] | v[1] << 8 | v[2] << 16 | v[3] << 24
    pre = [sum(cs[:g]) for g in range(4)]
    a(f"""
    s_lshr_b32 s{sT}, s{sWAVE}, 2
    s_and_b32 s{sU}, s{sWAVE}, 3
    s_lshl_b32 s{sL}, s{sT}, 3
    s_lshr_b32 s{sPASS}, {pack(cs)}, s{sL}
    s_and_b32 s{sPASS}, s{sPASS}, 0xff
    s_lshr_b32 s{sBAS}, {pack(pre)}, s{sL}
    s_and_b32 s{sBAS}, s{sBAS}, 0xff
    s_mul_i32 s{sL}, s{sU}, s{sPASS}
    s_lshl2_add_u32 s{sL}, s{sBAS}, s{sL}
    s_lshl_b32 s{sT}, s{sWAVE}, 6
    s_sub_u32 s{sT}, s{sT}, s{sL}
    s_sub_u32 s{sT}, s{sT}, s{sPASS}
    s_add_u32 s{sT}, s{sT}, 0x500
    s_add_u32 s{sL}, s{sL}, 0x400
    v_cmp_gt_u32 vcc, s{sPASS}, v{vLANE}
    v_add_u32 v{vT + 1}, s{sL}, v{vLANE}
    v_add_u32 v{vQ2}, s{sT}, v{vLANE}
    v_cndmask_b32 v{vQ2}, v{vQ2}, v{vT + 1}, vcc
    s_mov_b32 s{sR2}, {R2}
    s_mov_b32 s{sQB}, 0
    s_waitcnt lgkmcnt(0)
    """)
    stamp(a, 0)
    srd(a, sWS, 6, WS_BYTES)

    def desc_loads():
        a(f"""
        v_add_lshl_u32 v{vT}, s{sQB}, v0, 2
        v_add_lshl_u32 v{vT + 1}, s{sQB}, v{vQ2}, 2
        s_mul_i32 s{sT}, s{sB}, {ROW2}
        s_add_u32 s{sT}, s{sT}, {OFF2}
        s_mov_b32 s{sU}, {DIR2}
        buffer_load_dword v{vLEN}, v{vT}, {sr(sWS, 4)}, s{sT} offen
        buffer_load_dword v{vIDX}, v{vT}, {sr(sWS, 4)}, s{sU} offen
        buffer_load_dword v{vLEN2}, v{vT + 1}, {sr(sWS, 4)}, s{sT} offen
        buffer_load_dword v{vIDX2}, v{vT + 1}, {sr(sWS, 4)}, s{sU} offen
        """)

    def desc_build():
        a(f"""
        v_add_u32 v{vT}, s{sQB}, v0
        v_add_u32 v{vT + 1}, s{sQB}, v{vQ2}
        v_cmp_gt_u32 vcc, s{sNE}, v{vT}
        v_cmp_gt_u32 {sr(sMASK, 2)}, s{sNE}, v{vT + 1}
        s_mov_b32 s{sDONE}, 0
        s_nop 0
        v_cndmask_b32 v{vLEN}, 0, v{vLEN}, vcc
        v_cndmask_b32 v{vLEN2}, 0, v{vLEN2}, {sr(sMASK, 2)}
        v_and_b32 v{vT}, 0xffff, v{vLEN}
        v_and_b32 v{vT + 1}, 0xffff, v{vLEN2}
        v_lshrrev_b32 v{vLEN}, 16, v{vLEN}
        v_lshrrev_b32 v{vLEN2}, 16, v{vLEN2}
        v_add_u32 v{vIDX}, v{vIDX}, v{vT}
        v_add_u32 v{vIDX2}, v{vIDX2}, v{vT + 1}
        v_min_u32 v{vT}, {SEG}, v{vLEN}
        v_cmp_lt_u32 {sr(sMASK, 2)}, 0, v{vLEN}
        v_lshl_or_b32 v{vW}, v{vIDX}, 6, v{vT}
        s_nop 3
        """)

    def pop(i):
        back, stub, empty, issue = a.uid("pb"), a.uid("pr"), a.uid("pe"), a.uid("pi")
        a(f"""
        s_cmp_eq_u64 {sr(sMASK, 2)}, 0
        s_cbranch_scc1 {stub}
        {back}:
        s_ff1_i32_b64 s{sL}, {sr(sMASK, 2)}
        s_bitset0_b64 {sr(sMASK, 2)}, s{sL}
        v_readlane_b32 s{sW + i}, v{vW}, s{sL}
        s_lshr_b32 s{sT}, s{sW + i}, 6
        s_bfm_b64 exec, s{sW + i}, 0
        v_add_lshl_u32 v{Z(i)}, s{sT}, v{vLANE}, 3
        {issue}:
        buffer_load_dwordx2 {vr(Z(i), 2)}, v{Z(i)}, {sr(sWS, 4)}, s{sR2} offen {OPT['ld2']}
        """)
        a.begin_tail()
        a(f"""
        {stub}:
        s_cmp_lg_u32 s{sDONE}, 0
        s_cbranch_scc1 {empty}
        """)
        refill_code(a, vIDX, vLEN, vW, vT + 8, sMASK, pend=((vIDX, vLEN), (vIDX2, vLEN2)))
        a(f"""
        s_cmp_eq_u64 {sr(sMASK, 2)}, 0
        s_cbranch_scc0 {back}
        s_mov_b32 s{sDONE}, 1
        {empty}:
        s_mov_b32 s{sW + i}, 0
        s_mov_b64 exec, 0
        s_branch {issue}
        """)
        a.end_tail()

    def process(i):
        z, t = Z(i), vT
        a(f"""
        s_bfm_b64 exec, s{sW + i}, 0
        v_perm_b32 v{t + 4}, v{z + 1}, v{z}, s{sSEL}
        v_and_b32 v{t}, 0x1fff, v{z}
        v_bfe_u32 v{t + 1}, v{z}, 13, 13
        v_and_b32 v{t + 4}, 0xfcfc, v{t + 4}
        v_and_b32 v{t + 2}, 0x1fff, v{z + 1}
        v_bfe_u32 v{t + 3}, v{z + 1}, 13, 13
        v_add_u32 v{t + 4}, v{t + 4}, v{t + 4}
        v_lshl_add_u64 {vr(t, 2)}, {vr(t, 2)}, 0, {sr(sC, 2)}
        v_lshl_add_u64 {vr(t + 2, 2)}, {vr(t + 2, 2)}, 0, {sr(sC, 2)}
        ds_add_u64 v{t + 4}, {vr(t, 2)} offset:{ACC}
        ds_add_u64 v{t + 4}, {vr(t + 2, 2)} offset:{ACC + 512}
        """)

    def zero_acc():
        a(f"""
        v_mov_b32 v{vT}, 0
        v_mov_b32 v{vT + 1}, 0
        v_mov_b32 v{vT + 2}, 0
        v_mov_b32 v{vT + 3}, 0
        v_lshlrev_b32 v{vT + 4}, 4, v{vLANE}
        s_lshl_b32 s{sT}, s{sWAVE}, 11
        v_add_u32 v{vT + 4}, s{sT}, v{vT + 4}
        v_add_u32 v{vT + 5}, 0x10000, v{vT + 4}
        ds_write_b128 v{vT + 4}, {vr(vT, 4)} offset:{ACC}
        ds_write_b128 v{vT + 4}, {vr(vT, 4)} offset:{ACC + 32768}
        ds_write_b128 v{vT + 5}, {vr(vT, 4)} offset:{ACC}
        ds_write_b128 v{vT + 5}, {vr(vT, 4)} offset:{ACC + 32768}
        ds_write_b32 v{vZERO}, v{vZERO} offset:{MISC}
        """)

    desc_loads()
    srd(a, sM, 36, E * 8)
    srd(a, sDI, 38, E * 2)
    srd(a, sOUT, 40, E * 8)
    a(f"""
    s_add_u32 s6, s6, {CNT}
    s_addc_u32 s7, s7, 0
    s_load_dword s{sNE}, s[6:7], 0
    s_load_dwordx8 {sr(sWD, 8)}, s[48:49], 0
    s_load_dwordx8 {sr(sWU, 8)}, s[50:51], 0
    s_load_dwordx4 {sr(sC8, 4)}, s[42:43], 0
    s_mov_b64 s[92:93], s[44:45]
    s_mov_b64 s[94:95], s[46:47]
    """)
    for i in range(D):
        a(f"v_mov_b32 v{Z(i)}, 0")
    for i in range(16):
        a(f"v_mov_b32 v{vFA + i}, 0")
    zero_acc()
    a(f"""
    s_mul_i32 s{sT}, s{sB}, {SPAN}
    v_mov_b32 v{vT + 8}, 0x8000000
    v_add_u32 v{vE8}, s{sT}, v0
    v_add_u32 v{vE8 + 1}, 0x400, v{vE8}
    v_add_u32 v{vE8 + 2}, 0x800, v{vE8}
    v_add_u32 v{vE8 + 3}, 0xc00, v{vE8}
    v_cmp_gt_u32 vcc, {SPAN - 3072}, v0
    s_mov_b32 s{sC}, 0xfffff000
    s_mov_b32 s{sC + 1}, 0xffffefff
    v_cndmask_b32 v{vE8 + 3}, v{vT + 8}, v{vE8 + 3}, vcc
    s_lshr_b32 s{sBAS}, s{sWAVE}, 2
    s_xor_b32 s{sBAS}, s{sBAS}, {3 if OPT["basrev"] == "1" else 0}
    s_mul_i32 s{sBAS}, s{sBAS}, {int(OPT["basstep"])}
    s_add_u32 s{sBAS}, s{sBAS}, {int(OPT["bas0"])}
    s_mov_b32 s{sPASS}, 0
    s_waitcnt lgkmcnt(0)
    s_mov_b32 s{sSEL}, 0x0c0c0703
    s_add_u32 s{sNE}, s{sNE}, {FIX * NB}
    s_waitcnt vmcnt(0)
    """)
    stamp(a, 4)
    desc_build()
    for i in range(D):
        pop(i)
    def side_loads():
        a(f"""
        s_mov_b64 exec, -1
        v_lshlrev_b32 v{vT + 8}, 4, v{vLANE}
        s_mov_b32 s{sT}, {MAXS}
        buffer_load_dwordx4 {vr(vS, 4)}, v{vT + 8}, {sr(sWS, 4)}, s{sT} offen
        """)
        for r in range(4):
            a(f"v_lshlrev_b32 v{vDI + r}, 1, v{vE8 + r}")
        for r in range(4):
            a(f"buffer_load_ushort v{vDI + r}, v{vDI + r}, {sr(sDI, 4)}, 0 offen")
        for r in range(4):
            a(f"v_lshlrev_b32 v{vE8 + r}, 3, v{vE8 + r}")
        for r in range(4):
            a(f"buffer_load_dwordx2 {vr(vM + 2 * r, 2)}, v{vE8 + r}, {sr(sM, 4)}, 0 offen {OPT['ld_m']}")

    late = OPT["late3"] == "1"
    if OPT["prio3"] == "1":
        a("s_setprio 3")
    if late:
        a("s_barrier")
        side_loads()
    else:
        side_loads()
        a("s_barrier")
    stamp(a, 7)
    for i in range(D):
        a(f"s_waitcnt vmcnt({D - 1 + 9})")
        process(i)
        pop(i)
    a(f"""
    L_k3_loop:
    s_add_u32 s{sPASS}, s{sPASS}, 1
    s_cmp_eq_u32 s{sPASS}, s{sBAS}
    s_cbranch_scc1 L_k3_basis
    L_k3_basisback:
    """)
    if OPT["prio3"] == "1":
        n = 80 // D
        for p, at in ((2, n * 3 // 10), (1, n * 6 // 10), (0, n * 8 // 10)):
            lab = a.uid("prio")
            a(f"""
            s_cmp_lg_u32 s{sPASS}, {at}
            s_cbranch_scc1 {lab}
            s_setprio {p}
            {lab}:
            """)
    a(f"""
    s_cmp_eq_u32 s{sW}, 0
    s_cbranch_scc1 L_k3_drained
    s_cmp_ge_u32 s{sPASS}, {EPOCH}
    s_cbranch_scc1 L_k3_full
    L_k3_pass:
    """)
    for i in range(D):
        a(f"s_waitcnt vmcnt({D - 1})")
        process(i)
        pop(i)
    a(f"""
    s_branch L_k3_loop
    L_k3_drained:
    s_mov_b64 exec, -1
    s_add_u32 s{sQB}, s{sQB}, 2048
    s_cmp_lt_u32 s{sQB}, s{sNE}
    s_cbranch_scc1 L_k3_next
    s_sub_u32 s{sQB}, s{sQB}, 2048
    s_cmp_lt_u32 s{sPASS}, s{sBAS}
    s_cbranch_scc0 L_k3_join
    s_mov_b32 s{sBAS}, s{sPASS}
    s_branch L_k3_basis
    L_k3_join:
    """)
    stamp(a, 8)
    a(f"""
    s_waitcnt lgkmcnt(0)
    s_barrier
    """)
    stamp(a, 9)

    a.begin_tail()
    a("L_k3_next:")
    desc_loads()
    a("s_waitcnt vmcnt(0)")
    desc_build()
    a(f"""
    s_branch L_k3_prime
    L_k3_full:
    s_mov_b64 exec, -1
    v_mov_b32 v{vT}, 1
    ds_write_b32 v{vZERO}, v{vT} offset:{MISC}
    s_branch L_k3_join
    """)
    a.end_tail()

    def fold(rs):
        for r in rs:
            t = vRB + 4 * r
            a(f"""
            v_lshrrev_b32 v{vT}, 3, v{vE8 + r}
            v_add_u32 v{vT + 1}, {TOPK}, v{vT}
            v_add_u32 v{vT}, {TOPK << 6}, v{vT}
            v_and_b32 v{vT + 1}, 63, v{vT + 1}
            v_and_b32 v{vT}, 0xfc0, v{vT}
            v_lshl_or_b32 v{vT}, v{vT}, 2, v{vT + 1}
            v_lshlrev_b32 v{vT}, 3, v{vT}
            ds_read_b64 {vr(t, 2)}, v{vT} offset:{ACC}
            ds_read_b64 {vr(t + 2, 2)}, v{vT} offset:{ACC + 512}
            """)
        a(f"""
        ds_read_b32 v{vT + 4}, v{vZERO} offset:{MISC}
        s_waitcnt lgkmcnt(0)
        v_readfirstlane_b32 s{sLIVE}, v{vT + 4}
        """)
        for r in rs:
            t = vRB + 4 * r
            a(f"""
            v_lshrrev_b32 v{vT}, 31, v{t}
            v_lshrrev_b32 v{vT + 1}, 31, v{t + 2}
            v_add_u32 v{t + 1}, v{t + 1}, v{vT}
            v_add_u32 v{t + 3}, v{t + 3}, v{vT + 1}
            """)
            for j in range(4):
                a(f"v_cvt_f32_i32 v{t + j}, v{t + j}")
            for j in range(4):
                a(f"v_add_f32 v{vFA + 4 * r + j}, v{vFA + 4 * r + j}, v{t + j}")

    def wpair(sw):
        a(f"""
        s_lshl_b32 s{sP}, s{sw}, 16
        s_and_b32 s{sP + 1}, s{sw}, 0xffff0000
        """)

    def pkmac(first, dst, src):
        base, hi = src & ~1, src & 1
        if first:
            a(f"v_pk_mul_f32 {vr(dst, 2)}, {vr(base, 2)}, {sr(sP, 2)} op_sel:[{hi},0] op_sel_hi:[{hi},1]")
        else:
            a(f"v_pk_fma_f32 {vr(dst, 2)}, {vr(base, 2)}, {sr(sP, 2)}, {vr(dst, 2)} op_sel:[{hi},0,0] op_sel_hi:[{hi},1,1]")

    def epilogue(rs):
        for k in range(4):
            for jp in range(2):
                wpair(sWD + 2 * k + jp)
                for r in rs:
                    pkmac(k == 0, vRB + 4 * r + 2 * jp, vFA + 4 * r + k)
        for r in rs:
            for j in range(4):
                a(f"v_mul_f32 v{vRB + 4 * r + j}, v{vRB + 4 * r + j}, v{vS + 4 * r + j}")
        for k in range(4):
            for jp in range(2):
                wpair(sWU + 2 * k + jp)
                for r in rs:
                    pkmac(k == 0, vFA + 4 * r + 2 * jp, vRB + 4 * r + k)
        for r in rs:
            t, m = vRB + 4 * r, vM + 2 * r
            a(f"""
            v_lshlrev_b32 v{t}, 16, v{m}
            v_and_b32 v{t + 1}, 0xffff0000, v{m}
            v_lshlrev_b32 v{t + 2}, 16, v{m + 1}
            v_and_b32 v{t + 3}, 0xffff0000, v{m + 1}
            """)
            for j in range(4):
                a(f"v_fmac_f32 v{t + j}, v{vFA + 4 * r + j}, v{vRR + 4 * r + j}")
            a(f"""
            v_cvt_pk_bf16_f32 v{t}, v{t}, v{t + 1}
            v_cvt_pk_bf16_f32 v{t + 1}, v{t + 2}, v{t + 3}
            buffer_store_dwordx2 {vr(t, 2)}, v{vE8 + r}, {sr(sOUT, 4)}, 0 offen {OPT['st_out']}
            """)

    if OPT["epi1"] == "1":
        a(f"""
        s_cmp_lg_u32 s{sWAVE}, 0
        s_cbranch_scc1 L_k3_fold3
        """)
        fold([3])
        a("L_k3_fold3:")
        fold([0, 1, 2])
        a(f"""
        s_cmp_lg_u32 s{sLIVE}, 0
        s_cbranch_scc1 L_k3_again
        """)
        epilogue([0, 1, 2])
        a(f"""
        s_cmp_lg_u32 s{sWAVE}, 0
        s_cbranch_scc1 L_k3_epi3
        """)
        epilogue([3])
        a("L_k3_epi3:")
        stamp_flush(a, 2, sWS, sWAVE)
        a("s_endpgm")
    else:
        a(f"""
        s_cmp_eq_u32 s{sWAVE}, 0
        s_cbranch_scc1 L_k3_epi4
        """)
        for rs, pre in (([0, 1, 2], ""), ([0, 1, 2, 3], "L_k3_epi4:")):
            if pre:
                a(pre)
            fold(rs)
            a(f"""
            s_cmp_lg_u32 s{sLIVE}, 0
            s_cbranch_scc1 L_k3_again
            """)
            epilogue(rs)
            stamp_flush(a, 2, sWS, sWAVE)
            a("s_endpgm")
    a(f"""
    L_k3_again:
    s_barrier
    """)
    zero_acc()
    a(f"""
    s_mov_b32 s{sPASS}, s{sBAS}
    s_waitcnt lgkmcnt(0)
    s_barrier
    s_branch L_k3_basisback
    L_k3_prime:
    """)
    for i in range(D):
        pop(i)
    a("s_branch L_k3_basisback")

    def basis(rs):
        x = lambda n, kp: vRB + 8 * n + 2 * kp
        for n, r in enumerate(rs):
            a(f"v_lshlrev_b32 v{vDI + r}, 16, v{vDI + r}")
        for kp in range(4):
            wpair(sC8 + kp)

            def rnd():
                for n in range(len(rs)):
                    a(f"v_cvt_pk_bf16_f32 v{x(n, kp)}, v{x(n, kp)}, v{x(n, kp) + 1}")
                for n in range(len(rs)):
                    a(f"v_and_b32 v{x(n, kp) + 1}, 0xffff0000, v{x(n, kp)}")
                for n in range(len(rs)):
                    a(f"v_lshlrev_b32 v{x(n, kp)}, 16, v{x(n, kp)}")

            def each(op):
                for n in range(len(rs)):
                    for h in range(2):
                        a(op.format(v=f"v{x(n, kp) + h}"))
            for n, r in enumerate(rs):
                d = vDI + r
                hi = d & 1
                a(f"v_pk_add_f32 {vr(x(n, kp), 2)}, {vr(d & ~1, 2)}, {sr(sP, 2)} op_sel:[{hi},0] op_sel_hi:[{hi},1] neg_lo:[0,1] neg_hi:[0,1]")
            rnd()
            each("v_mul_f32 {v}, {v}, {v}")
            rnd()
            each("v_mul_f32 {v}, 0xc1200000, {v}")
            rnd()
            each("v_mul_f32 {v}, 0x3fb8aa3b, {v}")
            each("v_exp_f32 {v}, {v}")
            a("s_nop 0")
            rnd()
        for dst, ptr in ((vS, 94), (vRR, 92)):
            a(f"""
            s_load_dwordx16 {sr(sWX, 16)}, s[{ptr}:{ptr + 1}], 0
            s_waitcnt lgkmcnt(0)
            """)
            for k in range(8):
                for jp in range(2):
                    wpair(sWX + 2 * k + jp)
                    for n, r in enumerate(rs):
                        pkmac(k == 0, dst + 4 * r + 2 * jp, vRB + 8 * n + k)
        for r in rs:
            for j in range(4):
                a(f"v_mul_f32 v{vS + 4 * r + j}, v{vT + 9}, v{vS + 4 * r + j}")
            for jp in range(2):
                y = vRR + 4 * r + 2 * jp
                a(f"""
                v_cvt_pk_bf16_f32 v{y}, v{y}, v{y + 1}
                v_and_b32 v{y + 1}, 0xffff0000, v{y}
                v_lshlrev_b32 v{y}, 16, v{y}
                """)

    a(f"""
    L_k3_basis:
    s_mov_b64 exec, -1
    s_waitcnt vmcnt({D})
    """)
    stamp(a, 5)
    global_max(a, vS, sUNIT)
    a(f"""
    v_mov_b32 v{vT + 9}, s{sUNIT}
    v_mul_f32 v{vT + 9}, 0x39808081, v{vT + 9}
    """)
    basis([0, 1])
    if OPT["epi1"] == "1":
        basis([2])
        a(f"""
        s_cmp_lg_u32 s{sWAVE}, 0
        s_cbranch_scc1 L_k3_basisback
        """)
        basis([3])
    else:
        a(f"""
        s_cmp_eq_u32 s{sWAVE}, 0
        s_cbranch_scc1 L_k3_basis23
        """)
        basis([2])
        stamp(a, 6)
        a("""
        s_branch L_k3_basisback
        L_k3_basis23:
        """)
        basis([2, 3])
    stamp(a, 6)
    a("""
    s_branch L_k3_basisback
    L_k3_end:
    s_endpgm
    """)
    a.flush_tail()
    a("L_text_end:")
    return name, nv, 96, LDS


HEADER = """; out = m + (((A @ w_down) * (rbf @ w_sbf)) @ w_up) * (rbf @ w_rbf),  A[e] = sum over idx_out == e of cos(f * angle) * m[idx_in]
"""


def build():
    a = Asm()
    ks = [k1(a), k2(a), k3(a)]
    out = HEADER
    for name, nv, ns, lds in ks:
        out += f"; @launch kernel={name} grid=({NB},1,1) block=(1024,1,1) lds={lds}\n"
    out += '.amdgcn_target "amdgcn-amd-amdhsa--gfx950"\n.text\n'
    out += a.text()
    out += '.section .rodata,"a"\n'
    for name, nv, ns, lds in ks:
        assert nv <= (127 if OPT["prof"] else 128), (name, nv)
        out += kernel_desc(name, 128 if OPT["prof"] else nv, 102 if OPT["prof"] else ns)
    return out


if __name__ == "__main__":
    path = sys.argv[1]
    for kv in sys.argv[2:]:
        k, v = kv.split("=")
        OPT[k] = v.replace("+", " ")
    open(path, "w").write(build())
```
